```python
import torch

def _softmax(x, axis=-1):
    return torch.softmax(x, dim=axis)
def _gelu(x):
    return torch.nn.functional.gelu(x, approximate="tanh")
def _silu(x):
    return torch.nn.functional.silu(x)
def _sigmoid(x):
    return torch.sigmoid(x)
def _layernorm(x, axis=-1, eps=1e-5):
    m = x.mean(dim=axis, keepdim=True)
    v = x.var(dim=axis, keepdim=True, unbiased=False)
    return (x - m) / torch.sqrt(v + eps)
def _scatter_add(tgt, idx, src, axis=0):
    return tgt.clone().index_add_(axis, idx, src)
def _segment_sum(src, seg, n):
    out = torch.zeros((n,) + src.shape[1:], dtype=src.dtype)
    return out.index_add_(0, seg, src)
def _pad(x, pw):
    flat = tuple(v for pair in reversed(pw) for v in pair)
    return torch.nn.functional.pad(x, flat)

kernel_name = 'interleave_layers__linear_kernel_hedgehog__glu_gated_bilinear__prompt'

def setup_inputs():

    _w = (lambda a: (lambda t: t.to(torch.bfloat16) if t.is_floating_point() else t)(torch.as_tensor(a)))
    def _A_setup():
        B, S, D, H = 1, 2048, 512, 32
        Dh = D // H
        return {
            "x": _w((lambda *s: torch.randn(*s, dtype=torch.bfloat16) * 0.05)(B, S, D)),
            "wqkv": _w((lambda *s: torch.randn(*s, dtype=torch.bfloat16) * 0.4)(D, 3 * D)),
            "w_phi": _w((lambda *s: torch.randn(*s, dtype=torch.bfloat16) * 0.4)(H, Dh, Dh) * (Dh ** -0.5)),
            "wo": _w((lambda *s: torch.randn(*s, dtype=torch.bfloat16) * 0.05)(D, D)),
        }
    _A_in = _A_setup()

    def _B_setup():
        B, S, D, F = 1, 2048, 512, 1792
        return {
            "x": _w((lambda *s: torch.randn(*s, dtype=torch.bfloat16) * 0.05)(B, S, D)),
            "w_gate": _w((lambda *s: torch.randn(*s, dtype=torch.bfloat16) * 1.6)(D, F) * (D ** -0.5)),
            "w_up": _w((lambda *s: torch.randn(*s, dtype=torch.bfloat16) * 1.6)(D, F) * (D ** -0.5)),
            "w_down": _w((lambda *s: torch.randn(*s, dtype=torch.bfloat16) * 1.6)(F, D) * (F ** -0.5)),
        }
    _B_in = _B_setup()

    return {
        "A_x": _A_in["x"],
        "A_wqkv": _A_in["wqkv"],
        "A_w_phi": _A_in["w_phi"],
        "A_wo": _A_in["wo"],
        "B_x": _B_in["x"],
        "B_w_gate": _B_in["w_gate"],
        "B_w_up": _B_in["w_up"],
        "B_w_down": _B_in["w_down"],
    }

def reference(A_x, A_wqkv, A_w_phi, A_wo, B_x, B_w_gate, B_w_up, B_w_down):
    def _A_ref(x, wqkv, w_phi, wo):
        B, S, D = x.shape
        H = 32; Dh = D // H
        qkv = (lambda x, *d: x.permute(*d))((x @ wqkv).reshape(B, S, 3, H, Dh), 2, 0, 3, 1, 4)
        q, k, v = qkv[0], qkv[1], qkv[2]
        pq = torch.einsum("bhsd,hdf->bhsf", q, w_phi)
        pk = torch.einsum("bhsd,hdf->bhsf", k, w_phi)
        phi_q = torch.concatenate([_softmax(pq, axis=-1), _softmax(-pq, axis=-1)], axis=-1)
        phi_k = torch.concatenate([_softmax(pk, axis=-1), _softmax(-pk, axis=-1)], axis=-1)
        kv = torch.einsum("bhsf,bhsd->bhfd", phi_k, v)
        z  = torch.einsum("bhsf->bhf", phi_k)
        num = torch.einsum("bhqf,bhfd->bhqd", phi_q, kv)
        den = torch.einsum("bhqf,bhf->bhq", phi_q, z)[..., None] + 1e-6
        o = num / den
        return (lambda x, *d: x.permute(*d))(o, 0, 2, 1, 3).reshape(B, S, D) @ wo

    def _B_ref(x, w_gate, w_up, w_down):
        g = torch.einsum("bsd,df->bsf", x, w_gate)
        u = torch.einsum("bsd,df->bsf", x, w_up)
        h = g * u
        return torch.einsum("bsf,fd->bsd", h, w_down)

    x = A_x
    x = x + _A_ref(_layernorm(x, axis=-1), A_wqkv, A_w_phi, A_wo)
    x = x + _B_ref(_layernorm(x, axis=-1), B_w_gate, B_w_up, B_w_down)
    x = x + _A_ref(_layernorm(x, axis=-1), A_wqkv, A_w_phi, A_wo)
    x = x + _B_ref(_layernorm(x, axis=-1), B_w_gate, B_w_up, B_w_down)
    return x
```

```python
import sys
NAME = "interleave_layers__linear_kernel_hedgehog__glu_gated_bilinear__prompt"
KD = """
.section .rodata,"a"
.p2align 6
.amdhsa_kernel {name}
  .amdhsa_next_free_vgpr {vgpr}
  .amdhsa_next_free_sgpr 102
  .amdhsa_accum_offset {vgpr}
  .amdhsa_group_segment_fixed_size 0
  .amdhsa_kernarg_size 88
  .amdhsa_user_sgpr_count 2
  .amdhsa_user_sgpr_kernarg_segment_ptr 1
  .amdhsa_system_sgpr_workgroup_id_x 1
.end_amdhsa_kernel
"""
MB = 1 << 20
WS = dict(qkv=0, phi=8*MB, kv=16*MB, o=18*MB, x1=20*MB, h=22*MB, x2=30*MB, x3=32*MB)
SZ = dict(qkv=6*MB, phi=8*MB, kv=MB, o=2*MB, x1=2*MB, h=7*MB, x2=2*MB, x3=2*MB)
ARG = dict(A_x=(0, 2*MB), wqkv=(8, 512*1536*2), wphi=(16, 16384), wo=(24, 512*512*2), wg=(40, 512*1792*2),
           wu=(48, 512*1792*2), wd=(56, 1792*512*2), out=(64, 2*MB))
launches, code, kds = [], [], []

def base(b, s):
    if b in ARG: return f"s_load_dwordx2 s[{s}:{s+1}], s[0:1], {ARG[b][0]}\n", ""
    return f"s_load_dwordx2 s[{s}:{s+1}], s[0:1], 80\n", f"s_add_u32 s{s}, s{s}, {WS[b]}\ns_addc_u32 s{s+1}, s{s+1}, 0\n"
def size(b): return ARG[b][1] if b in ARG else SZ[b]
def srds(lst):
    a = b = ""
    for buf, s in lst:
        l, f = base(buf, s); a += l
        b += f + f"s_mov_b32 s{s+2}, {size(buf)}\ns_mov_b32 s{s+3}, 0x20000\n"
    return a + "s_waitcnt lgkmcnt(0)\n" + b
def kernel(name, grid, body, vgpr=128):
    launches.append(f"; @launch kernel={name} grid=({grid},1,1) block=(256,1,1) lds=0")
    code.append(f".globl {name}\n.p2align 8\n.type {name},@function\n{name}:\ns_cmp_ge_u32 s2, {grid}\ns_cbranch_scc1 L_end_{name}\n{body}L_end_{name}:\ns_endpgm\n")
    kds.append(KD.format(name=name, vgpr=vgpr))
def rne(v, t):
    return f"v_cvt_pk_bf16_f32 v{v}, v{v}, v{v}\nv_lshlrev_b32 v{v}, 16, v{v}\n"

def gemm(name, x, K, ws, N, out, ln, res=None, scale=None):
    nb = N // 256
    two = len(ws) == 2
    s = srds([(x, 8), (ws[0], 12), (ws[-1], 16), (out, 20), (res or x, 24)])
    s += f"s_and_b32 s4, s2, 2047\ns_lshr_b32 s5, s2, 11\ns_lshl_b32 s5, s5, 8\nv_add_u32 v1, s5, v0\nv_lshlrev_b32 v2, 1, v1\n"
    s += f"s_mul_i32 s6, s4, {K*2}\ns_add_u32 s8, s8, s6\ns_addc_u32 s9, s9, 0\n"
    for r in range(4, 10): s += f"v_mov_b32 v{r}, 0\n"
    s += f"s_mov_b32 s28, 0\ns_mov_b32 s29, 0\nL_k_{name}:\n"
    s += "s_load_dwordx16 s[32:47], s[8:9], s29\n"
    for j in range(32):
        s += f"buffer_load_ushort v{16+j}, v2, s[12:15], s28 offen\n"
        if two: s += f"buffer_load_ushort v{48+j}, v2, s[16:19], s28 offen\n"
        s += f"s_add_u32 s28, s28, {N*2}\n"
    s += "s_waitcnt vmcnt(0) lgkmcnt(0)\n"
    for j in range(32):
        s += (f"s_lshl_b32 s30, s{32+j//2}, 16\n" if j % 2 == 0 else f"s_and_b32 s30, s{32+j//2}, 0xffff0000\n")
        s += f"v_lshlrev_b32 v{16+j}, 16, v{16+j}\nv_fmac_f32 v4, s30, v{16+j}\nv_add_f32 v6, v6, v{16+j}\n"
        if two: s += f"v_lshlrev_b32 v{48+j}, 16, v{48+j}\nv_fmac_f32 v5, s30, v{48+j}\nv_add_f32 v7, v7, v{48+j}\n"
        if ln: s += f"v_mov_b32 v10, s30\nv_add_f32 v8, v8, v10\nv_fmac_f32 v9, v10, v10\n"
    s += f"s_add_u32 s29, s29, 64\ns_cmp_lt_u32 s29, {K*2}\ns_cbranch_scc1 L_k_{name}\n"
    if ln:
        s += f"v_mul_f32 v8, {1.0/K}, v8\nv_mul_f32 v9, {1.0/K}, v9\nv_fma_f32 v9, -v8, v8, v9\nv_add_f32 v9, 1e-5, v9\nv_rsq_f32 v9, v9\ns_nop 1\n"
        s += "v_fma_f32 v4, -v8, v6, v4\nv_mul_f32 v4, v4, v9\nv_fma_f32 v5, -v8, v7, v5\nv_mul_f32 v5, v5, v9\n"
    if two: s += "v_mul_f32 v4, v4, v5\n"
    s += f"s_mul_i32 s6, s4, {N*2}\n"
    if res:
        s += "buffer_load_ushort v5, v2, s[24:27], s6 offen\ns_waitcnt vmcnt(0)\nv_lshlrev_b32 v5, 16, v5\nv_add_f32 v4, v4, v5\n"
    if scale: s += f"v_mul_f32 v4, {scale}, v4\n"
    s += "v_cvt_pk_bf16_f32 v4, v4, v4\nbuffer_store_short v4, v2, s[20:23], s6 offen\ns_waitcnt vmcnt(0)\n"
    kernel(name, 2048 * nb, s)

def phi(name):
    s = srds([("qkv", 8), ("wphi", 12), ("phi", 16)])
    s += "s_and_b32 s4, s2, 31\ns_lshr_b32 s5, s2, 5\ns_and_b32 s6, s5, 1\ns_lshr_b32 s5, s5, 1\n"
    s += "s_lshl_b32 s5, s5, 8\nv_add_u32 v1, s5, v0\nv_mul_u32_u24 v2, 3072, v1\ns_lshl_b32 s7, s4, 5\ns_lshl_b32 s28, s6, 10\ns_add_u32 s7, s7, s28\n"
    s += "buffer_load_dwordx4 v[4:7], v2, s[8:11], s7 offen\nbuffer_load_dwordx4 v[8:11], v2, s[8:11], s7 offen offset:16\n"
    s += "s_lshl_b32 s28, s4, 9\ns_add_u32 s12, s12, s28\ns_addc_u32 s13, s13, 0\n"
    for f in range(16): s += f"v_mov_b32 v{32+f}, 0\n"
    s += "s_waitcnt vmcnt(0)\n"
    for d in range(16):
        s += (f"v_lshlrev_b32 v{16+d}, 16, v{4+d//2}\n" if d % 2 == 0 else f"v_and_b32 v{16+d}, 0xffff0000, v{4+d//2}\n")
    for d in range(16):
        s += f"s_load_dwordx8 s[32:39], s[12:13], {32*d}\ns_waitcnt lgkmcnt(0)\n"
        for f in range(16):
            s += (f"s_lshl_b32 s30, s{32+f//2}, 16\n" if f % 2 == 0 else f"s_and_b32 s30, s{32+f//2}, 0xffff0000\n")
            s += f"v_fmac_f32 v{32+f}, s30, v{16+d}\n"
    for sg in range(2):
        if sg:
            for f in range(16): s += f"v_sub_f32 v{32+f}, 0, v{32+f}\n"
        s += "v_max_f32 v12, v32, v33\n"
        for f in range(2, 16): s += f"v_max_f32 v12, v12, v{32+f}\n"
        s += "v_mov_b32 v13, 0\n"
        for f in range(16):
            s += f"v_sub_f32 v14, v{32+f}, v12\nv_mul_f32 v14, 0x3fb8aa3b, v14\nv_exp_f32 v{48+16*sg+f}, v14\ns_nop 0\nv_add_f32 v13, v13, v{48+16*sg+f}\n"
        s += "v_rcp_f32 v13, v13\ns_nop 0\n"
        for f in range(16): s += f"v_mul_f32 v{48+16*sg+f}, v13, v{48+16*sg+f}\n"
    for p in range(16): s += f"v_cvt_pk_bf16_f32 v{16+p}, v{48+2*p}, v{49+2*p}\n"
    s += "v_lshlrev_b32 v2, 11, v1\ns_lshl_b32 s7, s4, 6\ns_lshl_b32 s28, s6, 22\ns_add_u32 s7, s7, s28\n"
    for p in range(4): s += f"buffer_store_dwordx4 v[{16+4*p}:{19+4*p}], v2, s[16:19], s7 offen offset:{16*p}\n"
    s += "s_waitcnt vmcnt(0)\n"
    kernel(name, 32 * 2 * 8, s)

def kv(name):
    s = srds([("qkv", 8), ("phi", 12), ("kv", 16)])
    s += "s_and_b32 s4, s2, 31\ns_lshr_b32 s5, s2, 5\nv_and_b32 v1, 15, v0\nv_lshrrev_b32 v2, 4, v0\ns_lshl_b32 s5, s5, 4\nv_add_u32 v2, s5, v2\n"
    s += "v_lshlrev_b32 v3, 1, v1\nv_lshlrev_b32 v4, 1, v2\n"
    s += f"s_lshl_b32 s28, s4, 5\ns_add_u32 s28, s28, 2048\ns_lshl_b32 s29, s4, 6\ns_add_u32 s29, s29, {1<<22}\n"
    s += f"v_mov_b32 v5, 0\nv_mov_b32 v6, 0\ns_mov_b32 s30, 0\nL_t_{name}:\n"
    for j in range(16):
        s += f"buffer_load_ushort v{16+j}, v3, s[8:11], s28 offen\nbuffer_load_ushort v{32+j}, v4, s[12:15], s29 offen\ns_add_u32 s28, s28, 3072\ns_add_u32 s29, s29, 2048\n"
    s += "s_waitcnt vmcnt(0)\n"
    for j in range(16):
        s += f"v_lshlrev_b32 v{16+j}, 16, v{16+j}\nv_lshlrev_b32 v{32+j}, 16, v{32+j}\nv_fmac_f32 v5, v{16+j}, v{32+j}\nv_add_f32 v6, v6, v{32+j}\n"
    s += f"s_add_u32 s30, s30, 16\ns_cmp_lt_u32 s30, 2048\ns_cbranch_scc1 L_t_{name}\n"
    s += rne(5, 0) + rne(6, 0)
    s += "v_lshlrev_b32 v7, 7, v2\nv_lshl_add_u32 v7, v1, 2, v7\ns_lshl_b32 s28, s4, 12\n"
    s += "buffer_store_dword v5, v7, s[16:19], s28 offen\nbuffer_store_dword v6, v7, s[16:19], s28 offen offset:64\ns_waitcnt vmcnt(0)\n"
    kernel(name, 64, s)

def oker(name):
    s = srds([("phi", 8), ("kv", 12), ("o", 16)])
    s += "s_and_b32 s4, s2, 31\ns_lshr_b32 s5, s2, 5\ns_lshl_b32 s5, s5, 4\nv_and_b32 v1, 15, v0\nv_lshrrev_b32 v2, 4, v0\nv_add_u32 v2, s5, v2\n"
    s += "v_lshlrev_b32 v3, 11, v2\ns_lshl_b32 s28, s4, 6\nv_lshlrev_b32 v4, 2, v1\ns_lshl_b32 s29, s4, 12\n"
    for p in range(4): s += f"buffer_load_dwordx4 v[{16+4*p}:{19+4*p}], v3, s[8:11], s28 offen offset:{16*p}\n"
    for f in range(32): s += f"buffer_load_dword v{32+f}, v4, s[12:15], s29 offen offset:{128*f}\nbuffer_load_dword v{64+f}, v4, s[12:15], s29 offen offset:{128*f+64}\n"
    s += "v_mov_b32 v5, 0\nv_mov_b32 v6, 0\ns_waitcnt vmcnt(0)\n"
    for f in range(32):
        s += (f"v_lshlrev_b32 v7, 16, v{16+f//2}\n" if f % 2 == 0 else f"v_and_b32 v7, 0xffff0000, v{16+f//2}\n")
        s += f"v_fmac_f32 v5, v7, v{32+f}\nv_fmac_f32 v6, v7, v{64+f}\n"
    s += "v_add_f32 v6, 1e-6, v6\nv_rcp_f32 v6, v6\ns_nop 0\nv_mul_f32 v5, v5, v6\nv_cvt_pk_bf16_f32 v5, v5, v5\n"
    s += "v_lshlrev_b32 v3, 10, v2\nv_lshl_add_u32 v3, v1, 1, v3\ns_lshl_b32 s28, s4, 5\nbuffer_store_short v5, v3, s[16:19], s28 offen\ns_waitcnt vmcnt(0)\n"
    kernel(name, 32 * 128, s)

def build(scale=None, n_empty=0):
    xin = "A_x"
    for l in range(2):
        gemm(f"qkv{l}_kernel", xin, 512, ["wqkv"], 1536, "qkv", True)
        phi(f"phi{l}_kernel"); kv(f"kv{l}_kernel"); oker(f"o{l}_kernel")
        xa = "x1" if l == 0 else "x3"
        gemm(f"wo{l}_kernel", "o", 512, ["wo"], 512, xa, False, res=xin)
        gemm(f"glu{l}_kernel", xa, 512, ["wg", "wu"], 1792, "h", True)
        xo = "x2" if l == 0 else "out"
        gemm(f"down{l}_kernel", "h", 1792, ["wd"], 512, xo, False, res=xa, scale=scale if l else None)
        xin = xo
    if n_empty:
        kernel("empty_kernel", 256, "")
        launches.extend([launches[-1]] * (n_empty - 1))
    return "\n".join(launches) + "\n.amdgcn_target \"amdgcn-amd-amdhsa--gfx950\"\n.text\n" + "".join(code) + "".join(kds)

if __name__ == "__main__":
    out = sys.argv[1]
    scale = float(sys.argv[2]) if len(sys.argv) > 2 and float(sys.argv[2]) != 1.0 else None
    ne = int(sys.argv[3]) if len(sys.argv) > 3 else 0
    open(out, "w").write(build(scale, ne))
```

```python
import slow, sys
def spin(sreg, name):
    return f"L_sp_{name}:\ns_cmp_eq_u32 s{sreg}, 0\ns_cbranch_scc1 L_spe_{name}\ns_sleep 32\ns_sub_u32 s{sreg}, s{sreg}, 1\ns_branch L_sp_{name}\nL_spe_{name}:\n"
def make(kind):
    slow.launches.clear(); slow.code.clear(); slow.kds.clear()
    name = "probe_kernel"
    if kind == "renum":
        s = "s_load_dwordx2 s[8:9], s[0:1], 72\ns_getreg_b32 s4, hwreg(HW_REG_XCC_ID, 0, 4)\ns_waitcnt lgkmcnt(0)\ns_mov_b32 s10, 256\ns_mov_b32 s11, 0x20000\n"
        s += "s_lshr_b32 s5, s2, 3\ns_lshl_b32 s6, 1, s5\ns_lshl_b32 s4, s4, 2\nv_mov_b32 v1, s4\nv_mov_b32 v2, s6\ns_mov_b32 s20, 0\n"
        s += "v_cmp_eq_u32 vcc, 0, v0\ns_and_saveexec_b64 s[12:13], vcc\ns_cbranch_execz L_x\n"
        s += "buffer_atomic_or v2, v1, s[8:11], 0 offen sc0 sc1\ns_waitcnt vmcnt(0)\nv_readfirstlane_b32 s7, v2\ns_and_b32 s7, s7, s6\ns_cselect_b32 s20, 2000, 0\n"
        s += spin(20, "a") + "L_x:\n"
    elif kind in ("A_x", "wqkv", "ws", "two"):
        off = {"A_x": 0, "wqkv": 8, "ws": 80, "two": 0}[kind]
        s = f"s_load_dwordx2 s[8:9], s[0:1], {off}\ns_waitcnt lgkmcnt(0)\ns_mov_b32 s10, 0x100000\ns_mov_b32 s11, 0x20000\n"
        s += "v_lshlrev_b32 v1, 4, v0\ns_lshl_b32 s4, s2, 12\n"
        if kind == "two": s += "buffer_load_dwordx4 v[4:7], v1, s[8:11], s4 offen\ns_waitcnt vmcnt(0)\ns_add_u32 s4, s4, 0x80000\ns_and_b32 s4, s4, 0xfffff\n"
        s += "s_memtime s[14:15]\nbuffer_load_dwordx4 v[4:7], v1, s[8:11], s4 offen\ns_waitcnt vmcnt(0)\ns_memtime s[16:17]\ns_waitcnt lgkmcnt(0)\ns_sub_u32 s20, s16, s14\n"
        s += "s_cmp_lg_u32 s2, 100\ns_cbranch_scc1 L_x\n" + spin(20, "a") + "L_x:\n"
    elif kind == "code":
        s = "s_memtime s[14:15]\n" + "v_add3_u32 v2, v1, v1, v1\n" * 2048 + "s_memtime s[16:17]\ns_waitcnt lgkmcnt(0)\ns_sub_u32 s20, s16, s14\ns_lshr_b32 s20, s20, 2\n"
        s += "s_cmp_lg_u32 s2, 100\ns_cbranch_scc1 L_x\n" + spin(20, "a") + "L_x:\n"
    slow.kernel(name, 256, s)
    return slow.build()
for k in ("renum", "A_x", "wqkv", "ws", "two", "code"):
    open(f"probe_{k}.s", "w").write(make(k))
```

```python
import re

REG_RE = re.compile(r"(?<![\w.])([vas])(?:(\d+)|\[(\d+):(\d+)\])(?![\w])")
TRANS = ("v_exp_f32", "v_log_f32", "v_rcp_f32", "v_rsq_f32", "v_sqrt_f32")


def regs_of(op):
    out = set()
    op = op.strip()
    if op == "vcc":
        return {("s", 106), ("s", 107)}
    if op == "exec":
        return {("s", 126), ("s", 127)}
    if op == "m0":
        return {("s", 124)}
    for m in REG_RE.finditer(op):
        f = m.group(1)
        if m.group(2) is not None:
            out.add((f, int(m.group(2))))
        else:
            out.update((f, i) for i in range(int(m.group(3)), int(m.group(4)) + 1))
    return out


class Ins:
    __slots__ = ("text", "mn", "kind", "rd", "wr", "srcc", "ab", "data", "states", "label", "target")

    def __init__(self, text):
        self.text = text
        self.label = None
        self.target = None
        self.rd, self.wr, self.srcc, self.ab, self.data = set(), set(), set(), set(), set()
        self.states = 1
        t = text.split(";")[0].strip()
        if t.endswith(":"):
            self.kind, self.mn, self.label, self.states = "label", "", t[:-1], 0
            return
        if t.startswith(".") or not t:
            self.kind, self.mn, self.states = "dir", "", 0
            return
        parts = t.split(None, 1)
        mn = parts[0]
        for suf in ("_e32", "_e64", "_dpp", "_sdwa"):
            if mn.endswith(suf):
                mn = mn[: -len(suf)]
        self.mn = mn
        rest = parts[1] if len(parts) > 1 else ""
        ops = [o.strip() for o in re.split(r",(?![^\[]*\])", rest)] if rest else []
        if ops:
            ops[-1] = ops[-1].split()[0] if ops[-1].split() else ops[-1]
        R = [regs_of(o) for o in ops]
        U = lambda l: set().union(*l) if l else set()
        if mn.startswith("v_mfma"):
            self.kind = "mfma"
            self.wr, self.ab, self.srcc = R[0], R[1] | R[2], R[3]
            self.rd = self.ab | self.srcc
        elif mn.startswith("v_"):
            self.kind = "valu"
            if mn.startswith("v_permlane"):
                self.kind = "perm"
                self.rd = self.wr = R[0] | R[1]
            elif mn in ("v_add_co_u32", "v_addc_co_u32", "v_sub_co_u32"):
                self.wr, self.rd = R[0] | R[1], U(R[2:])
            else:
                self.wr, self.rd = R[0], U(R[1:])
                if mn in ("v_fmac_f32", "v_dot2c_f32_bf16", "v_writelane_b32") or "_dpp" in parts[0]:
                    self.rd = self.rd | R[0]
                if mn == "v_cndmask_b32" and len(ops) == 3:
                    self.rd = self.rd | regs_of("vcc")
        elif mn.startswith("buffer_") or mn.startswith("global_"):
            self.kind = "vmem"
            if mn in ("buffer_inv", "buffer_wbl2"):
                pass
            elif "load" in mn and not re.search(r"\blds\b", t) and "_lds_" not in mn:
                self.wr, self.rd = R[0], U(R[1:])
                if "d16" in mn:
                    self.rd = self.rd | R[0]
            elif "load" in mn:
                self.rd = U(R) | regs_of("m0")
            else:
                di = 1 if mn.startswith("global_") else 0
                self.rd = U(R)
                if "x4" in mn or "x3" in mn:
                    self.data = R[di]
                if "atomic" in mn and re.search(r"\bsc0\b", t):
                    self.wr = R[di]
        elif mn.startswith("ds_"):
            self.kind = "ds"
            if "read" in mn:
                self.wr, self.rd = R[0], U(R[1:])
            else:
                self.rd = U(R)
        elif mn.startswith("s_"):
            self.kind = "salu"
            if mn == "s_nop":
                self.states = int(ops[0], 0) + 1
            elif mn.startswith("s_cbranch") or mn == "s_branch":
                self.kind, self.target = "branch", ops[0]
            elif mn.startswith("s_cmp") or mn.startswith("s_bitcmp") or mn in (
                    "s_waitcnt", "s_barrier", "s_endpgm", "s_sleep", "s_setprio"):
                self.rd = U(R) if not mn == "s_waitcnt" else set()
            else:
                self.wr, self.rd = R[0], U(R[1:])
                if "saveexec" in mn:
                    self.wr = self.wr | regs_of("exec")
        else:
            raise ValueError("unknown instruction: " + text)


def is_valu(i):
    return i.kind in ("valu", "perm")


def vec(s):
    return {r for r in s if r[0] != "s"}


def sca(s):
    return {r for r in s if r[0] == "s"}


EXEC = regs_of("exec")
M0 = regs_of("m0")


def need(p, c):
    n = 0
    if is_valu(p):
        wv, ws = vec(p.wr), sca(p.wr)
        if c.kind == "mfma" and wv & c.rd:
            n = max(n, 2)
        if c.kind == "perm" and wv & c.rd:
            n = max(n, 2)
        if is_valu(c) and "_dpp" in c.text.split()[0] and wv & c.rd:
            n = max(n, 2)
        if c.mn in ("v_readfirstlane_b32", "v_readlane_b32") and wv & c.rd:
            n = max(n, 1)
        if p.mn in TRANS and is_valu(c) and wv & (c.rd | c.wr):
            n = max(n, 1)
        if p.mn.startswith("v_dot2") and (is_valu(c) or c.kind == "mfma") and c.mn != p.mn and wv & (c.rd | c.wr):
            n = max(n, 3)
        if p.mn.startswith("v_dot2") and c.kind in ("vmem", "ds") and wv & c.rd:
            n = max(n, 3)
        if ws:
            if is_valu(c) and ws & c.rd:
                n = max(n, 4 if c.mn in ("v_readlane_b32", "v_writelane_b32") else 2)
            if c.kind == "vmem" and ws & c.rd:
                n = max(n, 5)
            if c.kind in ("salu", "branch") and (ws & c.rd or c.mn in ("s_cbranch_vccnz", "s_cbranch_vccz")):
                n = max(n, 1)
            if ws & EXEC and c.kind in ("mfma", "perm"):
                n = max(n, 4)
    if p.kind == "mfma":
        lat = 12 if "32x32" in p.mn else 8
        if c.kind == "mfma":
            if p.wr & c.ab:
                n = max(n, lat)
            if p.wr & c.srcc and p.wr != c.srcc:
                n = max(n, lat - 2)
            if p.wr & c.wr and not (p.wr == c.srcc):
                n = max(n, lat)
        elif is_valu(c):
            if p.wr & (c.rd | c.wr):
                n = max(n, lat)
            if p.srcc & c.wr:
                n = max(n, 7 if lat == 12 else 3)
        elif c.kind in ("vmem", "ds"):
            if p.wr & (c.rd | c.wr):
                n = max(n, lat)
    if p.kind == "vmem" and p.data:
        if is_valu(c) and p.data & c.wr:
            n = max(n, 2)
        elif c.kind in ("mfma", "ds", "vmem") and p.data & c.wr:
            n = max(n, 1)
    if p.kind == "salu" and p.wr & M0 and c.kind == "vmem" and c.rd & M0:
        n = max(n, 1)
    return n


def fix_hazards(lines):
    ins = [Ins(l) for l in lines]
    inserted = 0
    i = 0
    labels = None
    while i < len(ins):
        c = ins[i]
        if c.kind in ("label", "dir"):
            i += 1
            continue
        if labels is None:
            labels = {}
            for j, x in enumerate(ins):
                if x.kind == "branch":
                    labels.setdefault(x.target, []).append(x)
            pos = {id(x): j for j, x in enumerate(ins)}
        short = 0
        stack = [(i - 1, 0)]
        seen = {}
        while stack:
            j, d = stack.pop()
            while j >= 0 and d < 13:
                if seen.get(j, 99) <= d:
                    break
                seen[j] = d
                p = ins[j]
                if p.kind == "label":
                    for b in labels.get(p.label, ()):
                        stack.append((pos[id(b)], d))
                    if j > 0 and ins[j - 1].mn in ("s_branch", "s_endpgm"):
                        break
                elif p.kind != "dir":
                    short = max(short, need(p, c) - d)
                    d += p.states
                j -= 1
        if short > 0:
            ins.insert(i, Ins(f"s_nop {short - 1}"))
            inserted += 1
            labels = None
            i += 1
        i += 1
    return [x.text for x in ins], inserted


class Asm:
    def __init__(self):
        self.lines = []
        self.vm = 0
        self.lg = 0
        self.vm_done = 0
        self.lg_done = 0
        self.uid = 0

    def __call__(self, text):
        for l in text.strip("\n").split("\n"):
            l = l.strip()
            if l:
                self.lines.append(l)

    def label(self, stem):
        self.uid += 1
        return f"L{stem}_{self.uid}"

    def vmop(self, text, counted=True):
        self(text)
        if counted:
            self.vm += 1
        return self.vm

    def ds(self, text, counted=True):
        self(text)
        if counted:
            self.lg += 1
        return self.lg

    def wait(self, vm=None, lg=None):
        parts = []
        if vm is not None and vm > self.vm_done:
            n = self.vm - vm
            if n < 63:
                parts.append(f"vmcnt({n})")
            self.vm_done = vm
        if lg is not None and lg > self.lg_done:
            n = min(self.lg - lg, 15)
            parts.append(f"lgkmcnt({n})")
            self.lg_done = max(lg, self.lg - n)
        if parts:
            self("s_waitcnt " + " ".join(parts))

    def drain(self, vm=True, lg=True):
        parts = []
        if vm:
            parts.append("vmcnt(0)")
            self.vm_done = self.vm
        if lg:
            parts.append("lgkmcnt(0)")
            self.lg_done = self.lg
        self("s_waitcnt " + " ".join(parts))
```

```python
import sys
from asmlib import Asm, fix_hazards

NAME = "interleave_layers__linear_kernel_hedgehog__glu_gated_bilinear__prompt"

WS_FLAG = 0x0
WS_S1F = 0x1000
WS_DIAG = 0x4000
WS_CS3 = 0x20000
WS_ST1 = 0x40000
WS_ST2 = 0x80000
WS_KVP = 0x100000
KVP_SZ = 4352
WS_O = 0x400000
WS_X1 = 0x600000
WS_X2 = 0x800000
WS_H = 0xA00000
WS_W3 = 0x1200000
WS_W4 = 0x1600000
WS_SIZE = 0x1800000

W1KV = 0
PERS = 65536
CS1 = PERS
CS3 = PERS + 512
ZB = PERS + 2048
ZQ = ZB
ZW2 = ZB + 32768
ZS = ZB + 81920
ZAIMG = ZS
XS = ZB
PREP_G = ZB + 65536
PREP_U = PREP_G + 8192
PREP_D = PREP_U + 8192
PHI_IMG = ZB + 90112
CSP = PHI_IMG + 1024
RING = ZB
NSLOT = 11
P2S = ZB + 73728
P4S = ZB
LDS_SIZE = 163840

S_AX, S_WQ, S_WS, S_DBG, S_PHI, S_WO, S_WG, S_WU, S_WD, S_OUT = 28, 32, 36, 40, 44, 48, 52, 56, 60, 64
sW, sCL, sC, sTT, sCT, sTH2, sKH, sTH = 68, 69, 70, 71, 72, 73, 74, 75
sXCC = 76
sA, sB, sD, sE, sF, sG = 77, 78, 79, 80, 81, 82
sLOG2E = 84
sONES = 86
sW3, sW3N = 87, 88
sH0, sH1 = 89, 90
sTO = 91
sTM = 92

vLANE, vL16, vTR0, vTR1, vTRQ, vFLAG, vP, vT = 0, 1, 2, 3, 4, 5, 6, 7
vNMU, vRHO = 8, 9
vCS, vU, vA0, vA1, vROW, vDIAG = 10, 11, 12, 13, 14, 15
X0 = 16
WK = 144
aI, aPHI, aRING = 224, 232, 240


def V(a, n=1):
    return f"v{a}" if n == 1 else f"v[{a}:{a + n - 1}]"


def A(a, n=1):
    return f"a{a}" if n == 1 else f"a[{a}:{a + n - 1}]"


def S(a, n=4):
    return f"s[{a}:{a + n - 1}]"


class Gen:
    def __init__(self, diag=False, force_slow=False, opt=None):
        self.a = Asm()
        self.diag = diag
        self.force_slow = force_slow
        self.nstamp = 0
        self.stamps = []
        self.opt = dict(pre_a=2, pre_b=2, pre_c=3, layers=2)
        self.opt.update(opt or {})

    def stamp(self, name):
        if not self.diag or self.slow:
            return
        a = self.a
        a(f"s_memtime s[{sTM}:{sTM + 1}]")
        a.drain(vm=False)
        a(f"v_writelane_b32 v{vDIAG}, s{sTM}, {self.nstamp}")
        self.stamps.append(name)
        self.nstamp += 1

    def mfma(self, d, x, y, c=None):
        self.a(f"v_mfma_f32_32x32x16_bf16 {d}, {x}, {y}, {c if c is not None else d}")

    def dma(self, srd, voff, soff, imm=0, counted=True):
        o = f" offset:{imm}" if imm else ""
        return self.a.vmop(f"buffer_load_dwordx4 v{voff}, {S(srd)}, {soff} offen{o} lds", counted)

    def load(self, dst, srd, voff, soff, imm=0, sc1=True, counted=True):
        o = f" offset:{imm}" if imm else ""
        return self.a.vmop(f"buffer_load_dwordx4 {dst}, v{voff}, {S(srd)}, {soff} offen{o}{' sc1' if sc1 else ''}", counted)

    def store(self, src, srd, voff, soff, imm=0, sc1=None, width="dwordx4", counted=True):
        if sc1 is None:
            sc1 = self.slow
        o = f" offset:{imm}" if imm else ""
        return self.a.vmop(f"buffer_store_{width} {src}, v{voff}, {S(srd)}, {soff} offen{o}{' sc1' if sc1 else ''}", counted)

    def tr(self, dst, addr, off):
        f, r = dst[0], dst[1]
        R = V if f == "v" else A
        self.a.ds(f"ds_read_b64_tr_b16 {R(r, 2)}, v{addr} offset:{off[0]}")
        return self.a.ds(f"ds_read_b64_tr_b16 {R(r + 2, 2)}, v{addr} offset:{off[1]}")

    def signal(self, value, sc1=None, addr=vFLAG):
        a = self.a
        a(f"v_mov_b32 v{vT}, {value}")
        a.drain(lg=False)
        a("s_mov_b64 exec, 1")
        self.store(V(vT), S_WS, addr, 0, sc1=sc1, width="dword")
        a("s_mov_b64 exec, -1")

    def poll(self, addr, value, first=None):
        a = self.a
        lp, done = a.label("poll"), a.label("go")
        if first is not None:
            a.wait(vm=first)
            a(f"v_cmp_gt_u32 vcc, {value}, v{vP}")
            a(f"s_cbranch_vccz {done}")
        a(f"{lp}:")
        a.vmop(f"buffer_load_dword v{vP}, v{addr}, {S(S_WS)}, 0 offen sc1", counted=first is None)
        if first is None:
            a.drain(lg=False)
        else:
            a("s_waitcnt vmcnt(0)")
        a(f"v_cmp_gt_u32 vcc, {value}, v{vP}")
        self.spin(lp, done)

    def spin(self, lp, done):
        a = self.a
        a(f"s_cbranch_vccz {done}")
        a(f"s_add_u32 s{sTO}, s{sTO}, 1")
        a(f"s_bitcmp0_b32 s{sTO}, 20")
        a(f"s_cbranch_scc1 {lp}")
        a(f"{done}:")

    def half_reduce2(self, x, y, op):
        a = self.a
        a(f"v_permlane32_swap_b32 v{x}, v{y}")
        a(f"{op} v{x}, v{x}, v{y}")
        a(f"v_mov_b32 v{y}, v{x}")
        a(f"v_permlane32_swap_b32 v{x}, v{y}")

    def finish_stats(self, s, q):
        a = self.a
        self.half_reduce2(s, q, "v_add_f32")
        a(f"v_mul_f32 v{vNMU}, {-1.0 / 512}, v{s}")
        a(f"v_mul_f32 v{q}, {1.0 / 512}, v{q}")
        a(f"v_fma_f32 v{q}, -v{vNMU}, v{vNMU}, v{q}")
        a(f"v_max_f32 v{q}, 0, v{q}")
        a(f"v_add_f32 v{q}, 0x3727c5ac, v{q}")
        a(f"v_rsq_f32 v{vRHO}, v{q}")

    def load_stats(self, base, dst):
        a = self.a
        a(f"s_lshl_b32 s{sA}, s{sTT}, 12")
        a(f"s_add_u32 s{sA}, s{sA}, {base}")
        a(f"v_and_b32 v{vT}, 31, v{vLANE}")
        a(f"v_lshlrev_b32 v{vT}, 4, v{vT}")
        a(f"v_lshrrev_b32 v{vU}, 5, v{vLANE}")
        a(f"v_lshl_add_u32 v{vU}, v{vU}, 11, v{vT}")
        for i in range(4):
            t = self.load(V(dst + 4 * i, 4), S_WS, vU, f"s{sA}", 512 * i)
        return t

    def sum_stats(self, src):
        a = self.a
        for w in (8, 4, 2):
            for i in range(0, w, 2):
                a(f"v_pk_add_f32 {V(src + i, 2)}, {V(src + i, 2)}, {V(src + w + i, 2)}")
        self.finish_stats(src, src + 1)

    def normalize(self, acc, cs, dst):
        a = self.a
        for i in range(0, 16, 2):
            a(f"v_pk_fma_f32 {V(acc + i, 2)}, {V(cs + i, 2)}, {V(vNMU, 2)}, {V(acc + i, 2)} op_sel_hi:[1,0,1]")
        for i in range(0, 16, 2):
            a(f"v_pk_mul_f32 {V(acc + i, 2)}, {V(acc + i, 2)}, {V(vNMU, 2)} op_sel:[0,1] op_sel_hi:[1,1]")
        self.cvt16(acc, dst)

    def cvt16(self, src, dst):
        for i in range(8):
            self.a(f"v_cvt_pk_bf16_f32 v{dst + i}, v{src + 2 * i}, v{src + 2 * i + 1}")

    def read_cs(self, tile, dst):
        for j, o in enumerate((0, 16, 64, 80)):
            t = self.a.ds(f"ds_read_b128 {V(dst + 4 * j, 4)}, v{vCS} offset:{tile * 128 + o}")
        return t

    def softmax_pair(self, p, tmp, dst):
        a = self.a
        m0, m1 = tmp, tmp + 2
        for g, m in ((p, m0), (p + 8, m1)):
            a(f"v_max3_f32 v{m}, v{g}, v{g + 1}, v{g + 2}")
            a(f"v_max3_f32 v{m + 1}, v{g + 3}, v{g + 4}, v{g + 5}")
            a(f"v_max3_f32 v{m}, v{g + 6}, v{g + 7}, v{m}")
            a(f"v_max_f32 v{m}, v{m}, v{m + 1}")
        self.half_reduce2(m0, m1, "v_max_f32")
        for m in (m0, m1):
            a(f"v_mul_f32 v{m}, 0xbfb8aa3b, v{m}")
        for g, m in ((p, m0), (p + 8, m1)):
            for i in range(0, 8, 2):
                a(f"v_pk_fma_f32 {V(g + i, 2)}, {V(g + i, 2)}, {S(sLOG2E, 2)}, {V(m, 2)} op_sel_hi:[1,1,0]")
        for i in range(16):
            a(f"v_exp_f32 v{p + i}, v{p + i}")
        for g, m in ((p, m0), (p + 8, m1)):
            a(f"v_pk_add_f32 {V(m, 2)}, {V(g, 2)}, {V(g + 2, 2)}")
            a(f"v_pk_add_f32 {V(tmp + 4, 2)}, {V(g + 4, 2)}, {V(g + 6, 2)}")
            a(f"v_pk_add_f32 {V(m, 2)}, {V(m, 2)}, {V(tmp + 4, 2)}")
            a(f"v_add_f32 v{m}, v{m}, v{m + 1}")
        self.half_reduce2(m0, m1, "v_add_f32")
        a(f"v_rcp_f32 v{m0}, v{m0}")
        a(f"v_rcp_f32 v{m1}, v{m1}")
        for g, m in ((p, m0), (p + 8, m1)):
            for i in range(0, 8, 2):
                a(f"v_pk_mul_f32 {V(g + i, 2)}, {V(g + i, 2)}, {V(m, 2)} op_sel_hi:[1,0]")
        self.cvt16(p, dst)

    def colsum_own(self, tiles, tmp):
        a = self.a
        for tile, addr, step, second in tiles:
            acc = tmp + 16
            a(f"v_mov_b32 v{acc}, 0")
            a(f"v_mov_b32 v{acc + 1}, 0")
            for h in range(2):
                for j in range(4):
                    t = self.tr(("v", tmp + 4 * j), addr, ((4 * h + j) * step, (4 * h + j) * step + second))
                a.wait(lg=t)
                for j in range(16):
                    a(f"v_dot2c_f32_bf16 v{acc + (j & 1)}, s{sONES}, v{tmp + j}")
            a(f"v_add_f32 v{acc}, v{acc}, v{acc + 1}")
            a(f"v_mov_b32 v{acc + 1}, v{acc}")
            a(f"v_permlane32_swap_b32 v{acc}, v{acc + 1}")
            a(f"v_add_f32 v{acc}, v{acc}, v{acc + 1}")
            a.ds(f"ds_write_b32 v{vROW}, v{acc} offset:{tile * 128}")

    def colsum_final(self, lanes_tile0, tmp):
        a = self.a
        a(f"v_lshlrev_b32 v{vT}, 2, v{vLANE}")
        if lanes_tile0 == 2:
            a(f"v_and_b32 v{vT}, 127, v{vT}")
        a(f"v_add_u32 v{vU}, {CSP + lanes_tile0 * 128}, v{vT}")
        for w in range(4):
            t = a.ds(f"ds_read_b32 v{tmp + w}, v{vU} offset:{384 * w}")
        a(f"v_add_u32 v{vU}, {CS1 + lanes_tile0 * 128}, v{vT}")
        a.wait(lg=t)
        a(f"v_add_f32 v{tmp}, v{tmp}, v{tmp + 1}")
        a(f"v_add_f32 v{tmp + 2}, v{tmp + 2}, v{tmp + 3}")
        a(f"v_add_f32 v{tmp}, v{tmp}, v{tmp + 2}")
        return a.ds(f"ds_write_b32 v{vU}, v{tmp}")

    def prologue(self):
        a = self.a
        a("s_cmp_ge_u32 s2, 256")
        a("s_cbranch_scc1 L_end")
        a("s_getpc_b64 s[4:5]")
        a(f"v_lshlrev_b32 v{vT}, 7, v0")
        for srd, off in ((S_AX, 0), (S_WQ, 8), (S_WS, 80), (S_DBG, 72), (S_PHI, 16), (S_WO, 24), (S_WG, 40), (S_WU, 48),
                         (S_WD, 56), (S_OUT, 64)):
            a(f"s_load_dwordx2 s[{srd}:{srd + 1}], s[0:1], {off}")
        a.vmop(f"global_load_dword v255, v{vT}, s[4:5]")
        a(f"v_add_u32 v{vT}, 0x8000, v{vT}")
        a.vmop(f"global_load_dword v254, v{vT}, s[4:5]")
        a(f"s_getreg_b32 s{sXCC}, hwreg(HW_REG_XCC_ID, 0, 4)")
        a(f"v_lshrrev_b32 v{vU}, 6, v0")
        a(f"v_and_b32 v{vLANE}, 63, v0")
        a(f"v_readfirstlane_b32 s{sW}, v{vU}")
        a(f"v_lshlrev_b32 v{vL16}, 4, v{vLANE}")
        for srd, size in ((S_AX, 2 << 20), (S_WQ, 512 * 1536 * 2), (S_WS, WS_SIZE), (S_DBG, 256), (S_PHI, 16384),
                          (S_WO, 512 * 512 * 2), (S_WG, 512 * 1792 * 2), (S_WU, 512 * 1792 * 2), (S_WD, 1792 * 512 * 2),
                          (S_OUT, 2 << 20)):
            a(f"s_mov_b32 s{srd + 2}, {size}")
            a(f"s_mov_b32 s{srd + 3}, 0x20000")
        if self.diag:
            a(f"v_mov_b32 v{vDIAG}, 0")
        a(f"s_mov_b32 s{sTO}, 0")
        a(f"s_and_b32 s{sCL}, s{sXCC}, 7")
        a(f"s_lshl_b32 s{sCL}, s{sCL}, 1")
        a(f"s_lshr_b32 s{sA}, s2, 7")
        a(f"s_add_u32 s{sCL}, s{sCL}, s{sA}")
        a(f"s_bfe_u32 s{sC}, s2, 0x40003")
        a("s_waitcnt lgkmcnt(0)")

    def slot_scalars(self):
        a = self.a
        a(f"s_lshl_b32 s{sTT}, s{sCL}, 2")
        a(f"s_add_u32 s{sTT}, s{sTT}, s{sW}")
        a(f"s_and_b32 s{sCT}, s{sC}, 7")
        a(f"s_lshr_b32 s{sTH2}, s{sC}, 3")
        a(f"s_lshr_b32 s{sKH}, s{sW}, 1")
        a(f"s_and_b32 s{sTH}, s{sW}, 1")

    def lane_consts(self):
        a = self.a
        a(f"v_bfe_u32 v{vT}, v{vLANE}, 2, 2")
        a(f"v_lshrrev_b32 v{vU}, 5, v{vLANE}")
        a(f"v_lshl_add_u32 v{vA0}, v{vU}, 3, v{vT}")
        a(f"v_and_b32 v{vA1}, 1, v{vLANE}")
        a(f"v_lshlrev_b32 v{vA1}, 4, v{vA1}")
        a(f"v_bfe_u32 v{vP}, v{vLANE}, 1, 1")
        a(f"v_lshl_add_u32 v{vA1}, v{vP}, 3, v{vA1}")
        a(f"v_bfe_u32 v{vP}, v{vLANE}, 4, 1")
        a(f"v_lshl_add_u32 v{vA1}, v{vP}, 5, v{vA1}")
        a(f"v_lshl_add_u32 v{vTRQ}, v{vA0}, 6, v{vA1}")
        a(f"v_add_u32 v{vTRQ}, {ZQ}, v{vTRQ}")
        a(f"v_lshl_add_u32 v{vTR0}, v{vA0}, 7, v{vA1}")
        a(f"v_lshrrev_b32 v{vT}, 1, v{vT}")
        a(f"v_lshl_add_u32 v{vTR0}, v{vT}, 6, v{vTR0}")
        a(f"v_xor_b32 v{vTR1}, 64, v{vTR0}")
        a(f"v_lshlrev_b32 v{vCS}, 5, v{vU}")
        a(f"v_add_u32 v{vCS}, {PERS}, v{vCS}")
        a(f"s_lshl_b32 s{sA}, s{sCL}, 8")
        a(f"s_lshl_b32 s{sB}, s{sW}, 6")
        a(f"s_add_u32 s{sA}, s{sA}, s{sB}")
        a(f"s_lshl_b32 s{sB}, s{sC}, 2")
        a(f"s_add_u32 s{sA}, s{sA}, s{sB}")
        a(f"v_mov_b32 v{vFLAG}, s{sA}")
        a(f"s_mov_b32 s{sLOG2E}, 0x3fb8aa3b")
        a(f"s_mov_b32 s{sLOG2E + 1}, 0x3fb8aa3b")
        a(f"s_mov_b32 s{sONES}, 0x3f803f80")
        a(f"v_bfe_u32 v{vT}, v{vLANE}, 2, 1")
        a(f"v_cmp_eq_u32 vcc, v{vT}, v{vU}")
        a(f"v_and_b32 v{vT}, 1, v{vLANE}")
        a(f"v_lshlrev_b32 v{vT}, 4, v{vT}")
        a(f"v_mov_b32 v{vA0}, 0x3f80")
        a(f"v_lshlrev_b32 v{vA0}, v{vT}, v{vA0}")
        a(f"v_cndmask_b32 v{vA0}, 0, v{vA0}, vcc")
        a(f"v_bfe_u32 v{vT}, v{vLANE}, 1, 1")
        a(f"v_bfe_u32 v{vA1}, v{vLANE}, 3, 2")
        a(f"v_lshl_add_u32 v{vT}, v{vA1}, 1, v{vT}")
        for r in range(8):
            a(f"v_cmp_eq_u32 vcc, {r}, v{vT}")
            a(f"v_cndmask_b32 v{vA1}, 0, v{vA0}, vcc")
            a(f"v_accvgpr_write_b32 a{aI + r}, v{vA1}")

    def w1q_dma(self):
        a = self.a
        a(f"v_lshrrev_b32 v{vT}, 2, v{vLANE}")
        a(f"v_mul_u32_u24 v{vT}, 3072, v{vT}")
        a(f"v_and_b32 v{vU}, 3, v{vLANE}")
        a(f"v_lshl_add_u32 v{vU}, v{vU}, 4, v{vT}")
        a(f"s_mul_i32 s{sA}, s{sW}, {128 * 3072}")
        a(f"s_lshl_b32 s{sB}, s{sC}, 6")
        a(f"s_add_u32 s{sA}, s{sA}, s{sB}")
        a(f"s_lshl_b32 s{sB}, s{sW}, 13")
        a(f"s_add_u32 m0, s{sB}, {ZQ}")
        for i in range(8):
            if i:
                a("s_add_u32 m0, m0, 1024")
                a(f"s_add_u32 s{sA}, s{sA}, {16 * 3072}")
            t = self.dma(S_WQ, vU, f"s{sA}")
        return t

    def swz_voff(self, dst, stride, lo, hi):
        a = self.a
        a(f"v_lshrrev_b32 v{vT}, 3, v{vLANE}")
        a(f"v_mul_u32_u24 v{vT}, {stride}, v{vT}")
        a(f"v_and_b32 v{dst}, 3, v{vLANE}")
        a(f"v_lshl_add_u32 v{vT}, v{dst}, 4, v{vT}")
        a(f"v_lshrrev_b32 v{dst}, 2, v{vLANE}")
        a(f"v_lshrrev_b32 v{vP}, 4, v{vLANE}")
        a(f"v_xor_b32 v{dst}, v{dst}, v{vP}")
        a(f"v_and_b32 v{dst}, 1, v{dst}")
        a(f"v_mul_u32_u24 v{dst}, {hi - lo}, v{dst}")
        if lo:
            a(f"v_add_u32 v{vT}, {lo}, v{vT}")
        a(f"v_add_u32 v{dst}, v{dst}, v{vT}")

    def w2_dma(self, rnd):
        a = self.a
        self.swz_voff(vU, 1024, 0, 64)
        n, row0, per = (12, 0, 96) if rnd == 0 else (4, 192, 32)
        a(f"s_lshl_b32 s{sA}, s{sKH}, 8")
        a(f"s_mul_i32 s{sB}, s{sTH}, {per}")
        a(f"s_add_u32 s{sA}, s{sA}, s{sB}")
        a(f"s_add_u32 s{sA}, s{sA}, {row0}")
        a(f"s_lshl_b32 s{sA}, s{sA}, 10")
        a(f"s_lshl_b32 s{sB}, s{sCT}, 7")
        a(f"s_add_u32 s{sA}, s{sA}, s{sB}")
        a(f"s_mul_i32 s{sB}, s{sW}, {n * 1024}")
        a(f"s_add_u32 m0, s{sB}, {ZW2 if rnd == 0 else ZQ}")
        for i in range(n):
            if i:
                a("s_add_u32 m0, m0, 1024")
                a(f"s_add_u32 s{sA}, s{sA}, 8192")
            t = self.dma(S_WO, vU, f"s{sA}")
        return t

    def w2_read(self, rnd):
        a = self.a
        base, per, kbs = (ZW2, 24576, range(0, 12)) if rnd == 0 else (ZQ, 8192, range(12, 16))
        a(f"s_mul_i32 s{sA}, s{sKH}, {per}")
        a(f"s_add_u32 s{sA}, s{sA}, {base}")
        a(f"v_add_u32 v{vA0}, s{sA}, v{vTR0}")
        a(f"v_add_u32 v{vA1}, s{sA}, v{vTR1}")
        for kb in kbs:
            o = (kb - kbs[0]) * 2048
            for nt in range(2):
                t = self.tr(("v", X0 + (kb * 2 + nt) * 4), vA0 + nt, (o, o + 512))
        return t

    def ring_fill(self, n):
        a = self.a
        for _ in range(n):
            s = self.ring_next
            if s >= 28:
                return
            a(f"s_add_u32 m0, s{sW3N}, {RING + (s % NSLOT) * 8192}")
            a(f"s_add_u32 s{sG}, s{sW3}, {s * 8192}")
            self.dma(S_WS, vL16, f"s{sG}")
            self.ring_tag[s] = self.dma(S_WS, vL16, f"s{sG}", 1024)
            self.ring_next += 1

    def ring_init(self):
        a = self.a
        self.ring_next, self.ring_tag = 0, {}
        a(f"s_lshl_b32 s{sW3N}, s{sW}, 11")
        a(f"s_mul_i32 s{sW3}, s{sC}, {224 * 1024}")
        a(f"s_add_u32 s{sW3}, s{sW3}, s{sW3N}")
        a(f"s_add_u32 s{sW3}, s{sW3}, {WS_W3}")

    def table_poll(self, bit, first=None):
        a = self.a
        lp, done = a.label("tab"), a.label("tabok")
        a(f"v_lshlrev_b32 v{vT}, 2, v{vLANE}")

        def test():
            if bit == 0x10:
                a(f"v_and_b32 v{vU}, 0x10101010, v{vP}")
                a(f"v_cmp_ne_u32 vcc, 0x10101010, v{vU}")
            else:
                a(f"v_and_b32 v{vU}, 0x0f0f0f0f, v{vP}")
                a(f"v_add_u32 v{vU}, 0x7f7f7f7f, v{vU}")
                a(f"v_and_b32 v{vU}, 0x80808080, v{vU}")
                a(f"v_cmp_ne_u32 vcc, 0x80808080, v{vU}")
        if first is not None:
            a.wait(vm=first)
            test()
            a(f"s_cbranch_vccz {done}")
        a(f"{lp}:")
        a.vmop(f"buffer_load_dword v{vP}, v{vT}, {S(S_DBG)}, 0 offen sc1", counted=first is None)
        if first is None:
            a.drain(lg=False)
        else:
            a("s_waitcnt vmcnt(0)")
        test()
        self.spin(lp, done)

    def publish(self, value_sgpr_or_imm):
        a = self.a
        skip = a.label("pub")
        a(f"s_cmp_lg_u32 s{sW}, 3")
        a(f"s_cbranch_scc1 {skip}")
        a(f"s_and_b32 s{sA}, s2, 3")
        a(f"s_lshl_b32 s{sA}, s{sA}, 3")
        a(f"s_lshl_b32 s{sA}, {value_sgpr_or_imm}, s{sA}")
        a(f"s_and_b32 s{sB}, s2, 0xfc")
        a(f"v_mov_b32 v{vT}, s{sA}")
        a(f"v_mov_b32 v{vU}, s{sB}")
        a("s_mov_b64 exec, 1")
        a.vmop(f"buffer_atomic_or v{vT}, v{vU}, {S(S_DBG)}, 0 offen sc1", counted=False)
        a("s_mov_b64 exec, -1")
        a(f"{skip}:")

    def prep_dma(self):
        a = self.a
        skip = a.label("noprep")
        a("s_cmp_ge_u32 s2, 224")
        a(f"s_cbranch_scc1 {skip}")
        a(f"v_lshrrev_b32 v{vT}, 3, v{vLANE}")
        a(f"v_and_b32 v{vU}, 7, v{vLANE}")
        a(f"v_lshlrev_b32 v{vU}, 4, v{vU}")
        a(f"v_lshl_add_u32 v{vA1}, v{vT}, 10, v{vU}")
        a(f"v_mul_u32_u24 v{vT}, 3584, v{vT}")
        a(f"v_add_u32 v{vA0}, v{vT}, v{vU}")
        a(f"s_and_b32 s{sA}, s2, 7")
        a(f"s_lshl_b32 s{sA}, s{sA}, 2")
        a(f"s_add_u32 s{sA}, s{sA}, s{sW}")
        a(f"s_mul_i32 s{sA}, s{sA}, {16 * 3584}")
        a(f"s_lshr_b32 s{sB}, s2, 3")
        a(f"s_lshl_b32 s{sB}, s{sB}, 7")
        a(f"s_add_u32 s{sA}, s{sA}, s{sB}")
        a(f"s_add_u32 s{sB}, s{sA}, {8 * 3584}")
        a(f"s_lshl_b32 s{sD}, s{sW}, 11")
        for srd, img in ((S_WG, PREP_G), (S_WU, PREP_U)):
            a(f"s_add_u32 m0, s{sD}, {img}")
            self.dma(srd, vA0, f"s{sA}", counted=False)
            a(f"s_add_u32 m0, s{sD}, {img + 1024}")
            self.dma(srd, vA0, f"s{sB}", counted=False)
        a(f"s_lshl_b32 s{sA}, s2, 2")
        a(f"s_add_u32 s{sA}, s{sA}, s{sW}")
        a(f"s_and_b32 s{sB}, s{sA}, 7")
        a(f"s_lshl_b32 s{sB}, s{sB}, 7")
        a(f"s_lshr_b32 s{sA}, s{sA}, 3")
        a(f"s_lshl_b32 s{sA}, s{sA}, 14")
        a(f"s_add_u32 s{sA}, s{sA}, s{sB}")
        a(f"s_add_u32 m0, s{sD}, {PREP_D}")
        a(f"s_add_u32 s{sB}, s{sA}, 8192")
        self.dma(S_WD, vA1, f"s{sA}", counted=False)
        a(f"s_add_u32 m0, s{sD}, {PREP_D + 1024}")
        self.dma(S_WD, vA1, f"s{sB}", counted=False)
        a(f"{skip}:")

    def prep_write(self, tmp):
        a = self.a
        skip = a.label("noprepw")
        a("s_cmp_ge_u32 s2, 224")
        a(f"s_cbranch_scc1 {skip}")
        a(f"v_and_b32 v{vA0}, 0xffffffbf, v{vTR0}")
        a(f"s_lshl_b32 s{sA}, s{sW}, 11")
        a(f"s_add_u32 s{sA}, s{sA}, {PREP_D}")
        a(f"v_add_u32 v{vA1}, s{sA}, v{vA0}")
        a(f"v_and_b32 v{vT}, 32, v{vA0}")
        a(f"v_and_b32 v{vA0}, 0xffffffdf, v{vA0}")
        a(f"v_lshl_add_u32 v{vA0}, v{vT}, 8, v{vA0}")
        a(f"s_lshl_b32 s{sA}, s{sW}, 5")
        a(f"s_add_u32 s{sA}, s{sA}, {PREP_G}")
        a(f"v_add_u32 v{vA0}, s{sA}, v{vA0}")
        for j in range(4):
            a(f"ds_read_b64_tr_b16 {V(tmp + 4 * j, 2)}, v{vA0} offset:{j * 2048}")
            a(f"ds_read_b64_tr_b16 {V(tmp + 4 * j + 2, 2)}, v{vA0} offset:{j * 2048 + 512}")
        for j in range(2):
            a(f"ds_read_b64_tr_b16 {V(tmp + 16 + 4 * j, 2)}, v{vA1} offset:{j * 64}")
            a(f"ds_read_b64_tr_b16 {V(tmp + 18 + 4 * j, 2)}, v{vA1} offset:{j * 64 + 512}")
        a(f"s_lshr_b32 s{sA}, s2, 3")
        a(f"s_lshl_b32 s{sA}, s{sA}, 2")
        a(f"s_add_u32 s{sA}, s{sA}, s{sW}")
        a(f"s_mul_i32 s{sB}, s{sA}, 9363")
        a(f"s_lshr_b32 s{sB}, s{sB}, 16")
        a(f"s_mul_i32 s{sD}, s{sB}, 7")
        a(f"s_sub_u32 s{sD}, s{sA}, s{sD}")
        a(f"s_mul_i32 s{sB}, s{sB}, {224 * 1024}")
        a(f"s_add_u32 s{sB}, s{sB}, {WS_W3}")
        a(f"s_and_b32 s{sE}, s2, 7")
        a(f"s_mov_b32 s{sF}, 4096")
        a(f"s_cmp_ge_u32 s{sD}, 4")
        a(f"s_cselect_b32 s{sF}, 2048, s{sF}")
        a(f"s_cselect_b32 s{sG}, {124 * 1024}, 0")
        a(f"s_cmp_ge_u32 s{sD}, 6")
        a(f"s_cselect_b32 s{sF}, 1024, s{sF}")
        a(f"s_cselect_b32 s{sG}, {186 * 1024}, s{sG}")
        a(f"s_lshl_b32 s{sD}, s{sD}, 10")
        a(f"s_add_u32 s{sB}, s{sB}, s{sD}")
        a(f"s_add_u32 s{sB}, s{sB}, s{sG}")
        a(f"s_mul_i32 s{sD}, s{sE}, s{sF}")
        a(f"s_lshl_b32 s{sD}, s{sD}, 2")
        a(f"s_add_u32 s{sB}, s{sB}, s{sD}")
        a("s_waitcnt lgkmcnt(0)")
        for j in range(4):
            self.store(V(tmp + 4 * j, 4), S_WS, vL16, f"s{sB}", sc1=True, counted=False)
            if j < 3:
                a(f"s_add_u32 s{sB}, s{sB}, s{sF}")
        acc = tmp + 24
        a(f"v_mov_b32 v{acc}, 0")
        a(f"v_mov_b32 v{acc + 1}, 0")
        for j in range(16):
            a(f"v_dot2c_f32_bf16 v{acc + (j & 1)}, s{sONES}, v{tmp + j}")
        a(f"s_mul_i32 s{sE}, s{sE}, 112")
        a(f"s_add_u32 s{sE}, s{sE}, s{sA}")
        a(f"s_lshl_b32 s{sE}, s{sE}, 7")
        a(f"s_add_u32 s{sE}, s{sE}, {WS_CS3}")
        a(f"v_add_f32 v{acc}, v{acc}, v{acc + 1}")
        a(f"v_mov_b32 v{acc + 1}, v{acc}")
        a(f"v_permlane32_swap_b32 v{acc}, v{acc + 1}")
        a(f"v_add_f32 v{acc}, v{acc}, v{acc + 1}")
        a(f"s_mul_i32 s{sD}, s{sW}, 384")
        a(f"s_add_u32 s{sD}, s{sD}, {CSP}")
        a(f"v_subrev_u32 v{vT}, s{sD}, v{vROW}")
        self.store(V(acc), S_WS, vT, f"s{sE}", sc1=True, width="dword", counted=False)
        a(f"s_lshl_b32 s{sA}, s2, 2")
        a(f"s_add_u32 s{sA}, s{sA}, s{sW}")
        a(f"s_and_b32 s{sB}, s{sA}, 7")
        a(f"s_mul_i32 s{sB}, s{sB}, {224 * 1024}")
        a(f"s_lshr_b32 s{sA}, s{sA}, 3")
        a(f"s_lshl_b32 s{sA}, s{sA}, 11")
        a(f"s_add_u32 s{sA}, s{sA}, s{sB}")
        a(f"s_add_u32 s{sA}, s{sA}, {WS_W4}")
        for j in range(2):
            self.store(V(tmp + 16 + 4 * j, 4), S_WS, vL16, f"s{sA}", 1024 * j, sc1=True, counted=False)
        a(f"{skip}:")
        a.lg_done = a.lg

    def w4_load(self, lo, hi):
        a = self.a
        a(f"s_mul_i32 s{sA}, s{sCT}, {224 * 1024}")
        a(f"s_mul_i32 s{sB}, s{sW}, {56 * 1024}")
        a(f"s_add_u32 s{sA}, s{sA}, s{sB}")
        a(f"s_add_u32 s{sA}, s{sA}, {WS_W4 + (lo & ~3) * 1024}")
        for f in range(lo, hi):
            if f % 4 == 0 and f != lo:
                a(f"s_add_u32 s{sA}, s{sA}, 4096")
            self.load(A(4 * f, 4), S_WS, vL16, f"s{sA}", (f % 4) * 1024, sc1=False)

    def p1_start_l0(self):
        a = self.a
        if not self.slow:
            skip = a.label("clr")
            a(f"s_cmp_lg_u32 s{sW}, 3")
            a(f"s_cbranch_scc1 {skip}")
            a(f"s_lshr_b32 s{sA}, s2, 4")
            a(f"s_and_b32 s{sB}, s2, 15")
            a(f"s_lshl_b32 s{sD}, s{sA}, 8")
            a(f"s_lshl_b32 s{sE}, s{sB}, 2")
            a(f"s_add_u32 s{sD}, s{sD}, s{sE}")
            a(f"v_and_b32 v{vT}, 3, v{vLANE}")
            a(f"v_lshlrev_b32 v{vT}, 6, v{vT}")
            a(f"v_lshrrev_b32 v{vU}, 2, v{vLANE}")
            a(f"v_lshl_add_u32 v{vT}, v{vU}, 12, v{vT}")
            a(f"v_add_u32 v{vT}, s{sD}, v{vT}")
            a(f"v_mov_b32 v{vU}, 0")
            a("s_mov_b64 exec, 0xfff")
            self.store(V(vU), S_WS, vT, 0, sc1=True, width="dword", counted=False)
            a("s_mov_b64 exec, -1")
            a(f"{skip}:")
        t_clear = a.vm
        self.slot_scalars()
        xa = WK
        a(f"v_lshrrev_b32 v{vT}, 3, v{vLANE}")
        a(f"v_lshrrev_b32 v{vU}, 4, v{vLANE}")
        a(f"v_xor_b32 v{vU}, v{vU}, v{vLANE}")
        a(f"v_and_b32 v{vU}, 7, v{vU}")
        a(f"v_lshlrev_b32 v{vU}, 4, v{vU}")
        a(f"v_lshl_add_u32 v{xa}, v{vT}, 10, v{vU}")
        a(f"v_xor_b32 v{xa + 1}, 64, v{xa}")
        a(f"s_lshl_b32 s{sH0}, s{sTT}, 15")
        a(f"s_lshl_b32 s{sH1}, s{sW}, 14")
        a(f"s_add_u32 s{sH1}, s{sH1}, {XS}")

        def xstage(s):
            for i in range(4):
                a(f"s_add_u32 m0, s{sH1}, {(s % 4) * 4096 + i * 1024}")
                a(f"s_add_u32 s{sA}, s{sH0}, {i * 8192 + s * 128}")
                t = self.dma(S_AX, xa + (i & 1), f"s{sA}")
            return t
        xt = {s: xstage(s) for s in range(4)}
        self.swz_voff(vU, 3072, 1024, 2048)
        a(f"s_mul_i32 s{sA}, s{sW}, {128 * 3072}")
        a(f"s_lshl_b32 s{sB}, s{sC}, 6")
        a(f"s_add_u32 s{sA}, s{sA}, s{sB}")
        a(f"s_lshl_b32 m0, s{sW}, 14")
        for i in range(16):
            if i:
                a("s_add_u32 m0, m0, 1024")
                a(f"s_add_u32 s{sA}, s{sA}, {8 * 3072}")
            t_w1 = self.dma(S_WQ, vU, f"s{sA}")
        a(f"s_mov_b32 m0, {PHI_IMG}")
        a(f"s_lshl_b32 s{sA}, s{sC}, 10")
        t_w1 = self.dma(S_PHI, vL16, f"s{sA}")
        self.lane_consts()
        ra = WK + 2
        a(f"v_and_b32 v{vT}, 31, v{vLANE}")
        a(f"v_bfe_u32 v{vU}, v{vLANE}, 1, 3")
        a(f"v_lshrrev_b32 v{vP}, 5, v{vLANE}")
        a(f"v_xor_b32 v{vU}, v{vU}, v{vP}")
        a(f"v_lshlrev_b32 v{vU}, 4, v{vU}")
        a(f"v_lshl_add_u32 v{vU}, v{vT}, 7, v{vU}")
        for j in range(4):
            a(f"v_xor_b32 v{ra + j}, {32 * j}, v{vU}")
            a(f"v_add_u32 v{ra + j}, s{sH1}, v{ra + j}")
        a(f"v_and_b32 v{vT}, 19, v{vLANE}")
        a(f"v_bfe_u32 v{vU}, v{vLANE}, 2, 1")
        a(f"v_lshl_add_u32 v{vT}, v{vU}, 3, v{vT}")
        a(f"v_bfe_u32 v{vU}, v{vLANE}, 3, 1")
        a(f"v_lshl_add_u32 v{vT}, v{vU}, 2, v{vT}")
        a(f"s_mul_i32 s{sA}, s{sW}, 384")
        a(f"s_add_u32 s{sA}, s{sA}, {CSP}")
        a(f"v_lshl_add_u32 v{vROW}, v{vT}, 2, s{sA}")
        ss, sq = WK + 6, WK + 8
        for r in (ss, ss + 1, sq, sq + 1):
            a(f"v_mov_b32 v{r}, 0")

        def xread(s):
            a.wait(vm=xt[s])
            for j in range(4):
                t = a.ds(f"ds_read_b128 {V(X0 + (4 * s + j) * 4, 4)}, v{ra + j} offset:{(s % 4) * 4096}")
            a.wait(lg=t)

        def xstats(s):
            for r in range(16):
                x = X0 + 16 * s + r
                a(f"v_dot2c_f32_bf16 v{ss + (r & 1)}, s{sONES}, v{x}")
                a(f"v_dot2c_f32_bf16 v{sq + (r & 1)}, v{x}, v{x}")
        self.stamp("issued")
        for s in range(4):
            xread(s)
            if s == 0 and not self.slow:
                a(f"s_min_u32 s{sD}, s{sXCC}, 14")
                a(f"s_add_u32 s{sD}, s{sD}, 1")
                self.publish(f"s{sD}")
            xt[s + 4] = xstage(s + 4)
            xstats(s)
        self.prep_dma()
        self.stamp("x0-3")
        a.wait(vm=t_w1)
        a(f"s_lshl_b32 s{sA}, s{sW}, 14")
        a(f"v_add_u32 v{vA0}, s{sA}, v{vTR0}")
        a(f"v_add_u32 v{vA1}, s{sA}, v{vTR1}")
        self.colsum_own(((0, vA0, 2048, 512), (1, vA1, 2048, 512)), WK + 64)
        a.drain(vm=False)
        a("s_barrier")
        self.stamp("w1kv")
        self.colsum_final(0, WK + 64)
        a(f"v_bfe_u32 v{vT}, v{vLANE}, 2, 2")
        a(f"v_lshrrev_b32 v{vU}, 5, v{vLANE}")
        a(f"v_lshl_add_u32 v{vT}, v{vU}, 3, v{vT}")
        a(f"v_and_b32 v{vU}, 3, v{vLANE}")
        a(f"v_lshlrev_b32 v{vU}, 3, v{vU}")
        a(f"v_lshl_add_u32 v{vT}, v{vT}, 5, v{vU}")
        a(f"v_add_u32 v{vT}, {PHI_IMG}, v{vT}")
        for h in range(2):
            t = self.tr(("v", WK + 72 + 4 * h), vT, (512 * h, 512 * h + 128))
        a(f"v_bfe_u32 v{vU}, v{vLANE}, 4, 1")
        a(f"v_mul_u32_u24 v{vU}, 0x8000, v{vU}")
        a(f"v_lshl_or_b32 v{vU}, v{vU}, 16, v{vU}")
        a.wait(lg=t)
        for r in range(8):
            a(f"v_xor_b32 v{WK + 72 + r}, v{vU}, v{WK + 72 + r}")
            a(f"v_accvgpr_write_b32 a{aPHI + r}, v{WK + 72 + r}")

        def before(kb):
            if kb >= 16 and kb % 4 == 0:
                xread(kb // 4)
                xstats(kb // 4)
        self.gemm_kv(before, WK + 16, WK + 32, WK + 48)
        a(f"v_add_f32 v{ss}, v{ss}, v{ss + 1}")
        a(f"v_add_f32 v{sq}, v{sq}, v{sq + 1}")
        self.finish_stats(ss, sq)
        self.stamp("kvgemm")
        a.drain()
        a("s_barrier")
        self.prep_write(WK + 48)
        a("s_barrier")
        return WK + 16, WK + 32

    def p1_start_l1(self):
        a = self.a
        self.rows_poll_addr()
        self.poll(vU, 5)
        self.stamp("S5")
        xt = self.x_loads(WS_X2, range(32))
        st = self.load_stats(WS_ST2, WK + 80)
        self.t_w1q = self.w1q_dma()
        self.t_w2 = self.w2_dma(0)

        def before(kb):
            a.wait(vm=xt[kb])
        self.gemm_kv(before, WK + 16, WK + 32, WK + 48)
        a.wait(vm=st)
        self.sum_stats(WK + 80)
        self.stamp("kvgemm")
        return WK + 16, WK + 32

    def rows_poll_addr(self):
        a = self.a
        a(f"s_lshl_b32 s{sA}, s{sCL}, 8")
        a(f"s_lshl_b32 s{sB}, s{sTH}, 6")
        a(f"s_add_u32 s{sA}, s{sA}, s{sB}")
        a(f"s_lshl_b32 s{sB}, s{sKH}, 5")
        a(f"s_add_u32 s{sA}, s{sA}, s{sB}")
        a(f"v_and_b32 v{vT}, 7, v{vLANE}")
        a(f"v_bfe_u32 v{vU}, v{vLANE}, 3, 1")
        a(f"v_lshlrev_b32 v{vU}, 7, v{vU}")
        a(f"v_lshl_add_u32 v{vU}, v{vT}, 2, v{vU}")
        a(f"v_add_u32 v{vU}, s{sA}, v{vU}")

    def x_loads(self, base, kbs, tags=None):
        a = self.a
        tags = {} if tags is None else tags
        for kb in kbs:
            if kb == 0:
                a(f"s_lshl_b32 s{sH0}, s{sTT}, 15")
                a(f"s_add_u32 s{sH0}, s{sH0}, {base}")
            elif kb % 4 == 0:
                a(f"s_add_u32 s{sH0}, s{sH0}, 4096")
            tags[kb] = self.load(V(X0 + 4 * kb, 4), S_WS, vL16, f"s{sH0}", (kb % 4) * 1024)
        return tags

    def gemm_kv(self, before, accK, accV, ring):
        a = self.a
        tg = {}

        def rd(kb):
            r = ring + (kb % 3) * 8
            self.tr(("v", r), vTR0, (kb * 2048, kb * 2048 + 512))
            tg[kb] = self.tr(("v", r + 4), vTR1, (kb * 2048, kb * 2048 + 512))
        rd(0)
        rd(1)
        for kb in range(32):
            before(kb)
            if kb + 2 < 32:
                rd(kb + 2)
            a.wait(lg=tg[kb])
            r = ring + (kb % 3) * 8
            x = V(X0 + 4 * kb, 4)
            self.mfma(V(accK, 16), V(r, 4), x, "0" if kb == 0 else None)
            self.mfma(V(accV, 16), V(r + 4, 4), x, "0" if kb == 0 else None)

    def e1_kv(self, layer, accK, accV):
        a = self.a
        if layer == 0:
            self.t_w1q = self.w1q_dma()
            self.t_w2 = self.w2_dma(0)
        t_tab = None
        if layer == 0 and not self.slow:
            a(f"v_lshlrev_b32 v{vT}, 2, v{vLANE}")
            t_tab = a.vmop(f"buffer_load_dword v{vP}, v{vT}, {S(S_DBG)}, 0 offen sc1")
        cs, Kb, Vb, PB, VB, tmp = WK + 48, WK + 80, WK + 88, WK + 96, WK, WK + 48
        tk = self.read_cs(0, cs)
        tv = self.read_cs(1, cs + 16)
        a.wait(lg=tk)
        self.normalize(accK, cs, Kb)
        PA = accK
        self.mfma(V(PA, 16), A(aPHI, 4), V(Kb, 4), "0")
        self.mfma(V(PB, 16), A(aPHI + 4, 4), V(Kb + 4, 4), "0")
        a.wait(lg=tv)
        self.normalize(accV, cs + 16, Vb)
        VA = accV
        self.mfma(V(VA, 16), V(Vb, 4), A(aI, 4), "0")
        self.mfma(V(VB, 16), V(Vb + 4, 4), A(aI + 4, 4), "0")
        phA, phB = tmp + 8, tmp + 16
        self.softmax_pair(PA, tmp, phA)
        VAb, VBb = Kb, Vb
        self.cvt16(VA, VAb)
        TA = VA
        self.mfma(V(TA, 16), V(phA, 4), A(aI, 4), "0")
        self.mfma(V(TA, 16), V(phA + 4, 4), A(aI + 4, 4))
        self.cvt16(VB, VBb)
        self.softmax_pair(PB, tmp, phB)
        TB = VB
        self.mfma(V(TB, 16), V(phB, 4), A(aI, 4), "0")
        self.mfma(V(TB, 16), V(phB + 4, 4), A(aI + 4, 4))
        KV = PA

        def zsum(T):
            for w in (8, 4, 2):
                for i in range(0, w, 2):
                    a(f"v_pk_add_f32 {V(T + i, 2)}, {V(T + i, 2)}, {V(T + w + i, 2)}")
            a(f"v_add_f32 v{T}, v{T}, v{T + 1}")
        self.cvt16(TA, phA)
        self.mfma(V(KV, 16), V(phA, 4), V(VAb, 4), "0")
        self.mfma(V(KV, 16), V(phA + 4, 4), V(VAb + 4, 4))
        zsum(TA)
        self.cvt16(TB, phB)
        self.mfma(V(KV, 16), V(phB, 4), V(VBb, 4))
        self.mfma(V(KV, 16), V(phB + 4, 4), V(VBb + 4, 4))
        zsum(TB)
        a(f"v_permlane32_swap_b32 v{TA}, v{TB}")
        a(f"v_add_f32 v{TA}, v{TA}, v{TB}")
        a(f"s_lshl_b32 s{sA}, s{sW}, 8")
        a(f"s_add_u32 s{sA}, s{sA}, {ZS + 12288}")
        a(f"v_lshl_add_u32 v{vU}, v{vLANE}, 2, s{sA}")
        a.ds(f"ds_write_b32 v{vU}, v{TA}")
        own = tmp
        for q in range(4):
            skip, done = a.label("own"), a.label("ownd")
            a(f"s_sub_u32 s{sA}, s{sW}, {q + 1}")
            a(f"s_and_b32 s{sA}, s{sA}, 3")
            a(f"s_cmp_eq_u32 s{sA}, 3")
            a(f"s_cbranch_scc1 {skip}")
            a(f"s_lshl_b32 s{sA}, s{sA}, 10")
            a(f"s_add_u32 s{sA}, s{sA}, {ZS + q * 3072}")
            a(f"v_add_u32 v{vU}, s{sA}, v{vL16}")
            a(f"ds_write_b128 v{vU}, {V(KV + 4 * q, 4)}")
            a(f"s_branch {done}")
            a(f"{skip}:")
            a(f"v_pk_add_f32 {V(own, 2)}, {V(KV + 4 * q, 2)}, 0")
            a(f"v_pk_add_f32 {V(own + 2, 2)}, {V(KV + 4 * q + 2, 2)}, 0")
            a(f"{done}:")
        if t_tab is not None:
            self.table_poll(0x0F, first=t_tab)
            self.bijection_check()
        a(f"s_mul_i32 s{sA}, s{sW}, 3072")
        a(f"s_add_u32 s{sA}, s{sA}, {ZS}")
        a(f"v_add_u32 v{vU}, s{sA}, v{vL16}")
        a(f"v_lshlrev_b32 v{vT}, 2, v{vLANE}")
        a(f"v_add_u32 v{vA0}, {ZS + 12288}, v{vT}")
        a.drain(vm=False)
        a("s_barrier")
        for j in range(3):
            t = a.ds(f"ds_read_b128 {V(own + 4 + 4 * j, 4)}, v{vU} offset:{1024 * j}")
        for j in range(4):
            tz = a.ds(f"ds_read_b32 v{own + 16 + j}, v{vA0} offset:{256 * j}")
        a(f"s_lshl_b32 s{sA}, s{sC}, 4")
        a(f"s_add_u32 s{sA}, s{sA}, s{sCL}")
        a(f"s_mul_i32 s{sA}, s{sA}, {KVP_SZ}")
        a(f"s_add_u32 s{sA}, s{sA}, {WS_KVP + layer * 256 * KVP_SZ}")
        a(f"s_lshl_b32 s{sB}, s{sW}, 10")
        a(f"s_add_u32 s{sB}, s{sB}, s{sA}")
        a.wait(lg=t)
        for i in (0, 2):
            a(f"v_pk_add_f32 {V(own + i, 2)}, {V(own + i, 2)}, {V(own + 4 + i, 2)}")
            a(f"v_pk_add_f32 {V(own + 8 + i, 2)}, {V(own + 8 + i, 2)}, {V(own + 12 + i, 2)}")
        for i in (0, 2):
            a(f"v_pk_add_f32 {V(own + i, 2)}, {V(own + i, 2)}, {V(own + 8 + i, 2)}")
        self.store(V(own, 4), S_WS, vL16, f"s{sB}", sc1=True)
        a.wait(lg=tz)
        skip = a.label("noz")
        a(f"s_cmp_lg_u32 s{sW}, 0")
        a(f"s_cbranch_scc1 {skip}")
        a(f"v_pk_add_f32 {V(own + 16, 2)}, {V(own + 16, 2)}, {V(own + 18, 2)}")
        a(f"v_add_f32 v{own + 16}, v{own + 16}, v{own + 17}")
        a(f"s_add_u32 s{sA}, s{sA}, 4096")
        self.store(V(own + 16), S_WS, vT, f"s{sA}", sc1=True, width="dword", counted=False)
        a(f"{skip}:")
        a(f"s_lshl_b32 s{sA}, s{sC}, 8")
        a(f"s_lshl_b32 s{sB}, s{sW}, 6")
        a(f"s_add_u32 s{sD}, s{sA}, s{sB}")
        a(f"s_add_u32 s{sD}, s{sD}, {WS_S1F + layer * 4096}")
        a(f"s_lshl_b32 s{sB}, s{sCL}, 2")
        a(f"s_add_u32 s{sA}, s{sD}, s{sB}")
        a(f"v_mov_b32 v{vA0}, s{sA}")
        self.stamp("e1")
        self.signal(1, sc1=True, addr=vA0)
        self.stamp("kvdrain")
        if layer == 0:
            a("s_barrier")
            self.publish("16")

    def bijection_check(self):
        a = self.a
        a(f"v_mov_b32 v{vU}, 0")
        for b in range(4):
            a(f"v_bfe_u32 v{vT}, v{vP}, {8 * b}, 4")
            a(f"v_lshlrev_b32 v{vT}, v{vT}, 1")
            a(f"v_or_b32 v{vU}, v{vU}, v{vT}")
        a(f"v_or_b32_dpp v{vU}, v{vU}, v{vU} quad_perm:[1,0,3,2] row_mask:0xf bank_mask:0xf")
        a(f"v_cmp_ne_u32 vcc, 0x1fe, v{vU}")
        if self.force_slow:
            a("s_branch L_slow")
        else:
            a("s_cbranch_vccnz L_slow")

    def s1_window(self, layer):
        a = self.a
        acc, ring = WK, WK + 16
        if layer == 1:
            a("s_barrier")
        if layer == 0:
            a(f"s_lshl_b32 s{sA}, s{sW}, 13")
            a(f"v_add_u32 v{vA0}, s{sA}, v{vTRQ}")
            self.colsum_own(((2, vA0, 1024, 256),), WK + 64)
        tg = {}

        def rd(kb):
            tg[kb] = self.tr(("v", ring + (kb % 4) * 4), vTRQ, (kb * 1024, kb * 1024 + 256))
        for kb in range(3):
            rd(kb)
        for kb in range(32):
            if kb + 3 < 32:
                rd(kb + 3)
            a.wait(lg=tg[kb])
            self.mfma(V(acc, 16), V(ring + (kb % 4) * 4, 4), V(X0 + 4 * kb, 4), "0" if kb == 0 else None)
        a.drain(vm=False)
        a("s_barrier")
        self.w2_dma(1)
        if layer == 0:
            self.colsum_final(2, WK + 64)
        cs, Qb, PB, tmp = WK + 16, WK + 32, WK + 48, WK + 64
        t = self.read_cs(2, cs)
        self.w2_read(0)
        a.wait(lg=t)
        self.normalize(acc, cs, Qb)
        self.mfma(V(acc, 16), A(aPHI, 4), V(Qb, 4), "0")
        self.mfma(V(PB, 16), A(aPHI + 4, 4), V(Qb + 4, 4), "0")
        self.phq = WK + 16
        self.softmax_pair(acc, tmp, self.phq)
        self.softmax_pair(PB, tmp, self.phq + 8)
        self.stamp("qdone")
        a(f"v_and_b32 v{vU}, 15, v{vLANE}")
        a(f"s_lshl_b32 s{sA}, s{sC}, 8")
        a(f"s_lshl_b32 s{sB}, s{sW}, 6")
        a(f"s_add_u32 s{sA}, s{sA}, s{sB}")
        a(f"s_add_u32 s{sA}, s{sA}, {WS_S1F + layer * 4096}")
        a(f"v_lshl_add_u32 v{vU}, v{vU}, 2, s{sA}")
        self.poll(vU, 1)
        self.stamp("S1")
        kvr, zr = WK + 32, WK + 96
        a(f"s_mul_i32 s{sA}, s{sC}, {16 * KVP_SZ}")
        a(f"s_add_u32 s{sA}, s{sA}, {WS_KVP + layer * 256 * KVP_SZ}")
        skip = a.label("zld")
        a(f"s_cmp_lg_u32 s{sW}, 0")
        a(f"s_cbranch_scc1 {skip}")
        a(f"v_lshrrev_b32 v{vT}, 4, v{vLANE}")
        a(f"v_mul_u32_u24 v{vT}, {KVP_SZ}, v{vT}")
        a(f"v_and_b32 v{vU}, 15, v{vLANE}")
        a(f"v_lshl_add_u32 v{vU}, v{vU}, 4, v{vT}")
        a(f"s_add_u32 s{sB}, s{sA}, 4096")
        for i in range(4):
            self.load(V(zr + 4 * i, 4), S_WS, vU, f"s{sB}", counted=False)
            a(f"s_add_u32 s{sB}, s{sB}, {4 * KVP_SZ}")
        a(f"{skip}:")
        a(f"s_lshl_b32 s{sB}, s{sW}, 10")
        a(f"s_add_u32 s{sA}, s{sA}, s{sB}")
        kt = []
        for p in range(16):
            kt.append(self.load(V(kvr + 4 * p, 4), S_WS, vL16, f"s{sA}"))
            if p < 15:
                a(f"s_add_u32 s{sA}, s{sA}, {KVP_SZ}")
        self.ring_init()
        if layer == 1:
            self.ring_after_kv()
        skip = a.label("zsum")
        a(f"s_cmp_lg_u32 s{sW}, 0")
        a(f"s_cbranch_scc1 {skip}")
        a(f"s_waitcnt vmcnt({min(a.vm - kt[0] + 1, 63)})")
        for i in (0, 2):
            a(f"v_pk_add_f32 {V(zr + i, 2)}, {V(zr + i, 2)}, {V(zr + 4 + i, 2)}")
            a(f"v_pk_add_f32 {V(zr + 8 + i, 2)}, {V(zr + 8 + i, 2)}, {V(zr + 12 + i, 2)}")
        for i in (0, 2):
            a(f"v_pk_add_f32 {V(zr + i, 2)}, {V(zr + i, 2)}, {V(zr + 8 + i, 2)}")
        for sw in ("v_permlane16_swap_b32", "v_permlane32_swap_b32"):
            for i in range(4):
                a(f"v_mov_b32 v{zr + 4 + i}, v{zr + i}")
            for i in range(4):
                a(f"{sw} v{zr + i}, v{zr + 4 + i}")
            for i in range(4):
                a(f"v_add_f32 v{zr + i}, v{zr + i}, v{zr + 4 + i}")
        a(f"v_cvt_pk_bf16_f32 v{zr}, v{zr}, v{zr + 1}")
        a(f"v_cvt_pk_bf16_f32 v{zr + 1}, v{zr + 2}, v{zr + 3}")
        a(f"v_bfe_u32 v{vT}, v{vLANE}, 2, 2")
        a(f"v_lshlrev_b32 v{vT}, 10, v{vT}")
        a(f"v_and_b32 v{vU}, 1, v{vLANE}")
        a(f"v_lshl_add_u32 v{vT}, v{vU}, 9, v{vT}")
        a(f"v_bfe_u32 v{vU}, v{vLANE}, 1, 1")
        a(f"v_lshl_add_u32 v{vT}, v{vU}, 3, v{vT}")
        a(f"v_add_u32 v{vT}, {ZAIMG + 256}, v{vT}")
        a(f"ds_write_b64 v{vT}, {V(zr, 2)}")
        a(f"{skip}:")
        a(f"v_bfe_u32 v{vT}, v{vLANE}, 4, 1")
        a(f"v_lshlrev_b32 v{vT}, 11, v{vT}")
        a(f"v_and_b32 v{vU}, 47, v{vLANE}")
        a(f"v_lshl_add_u32 v{vT}, v{vU}, 4, v{vT}")
        a(f"s_lshl_b32 s{sA}, s{sKH}, 10")
        a(f"s_lshl_b32 s{sB}, s{sTH}, 3")
        a(f"s_add_u32 s{sA}, s{sA}, s{sB}")
        a(f"s_add_u32 s{sA}, s{sA}, {ZAIMG}")
        a(f"v_add_u32 v{vA0}, s{sA}, v{vT}")
        a(f"v_and_b32 v{vT}, 31, v{vLANE}")
        a(f"v_min_u32 v{vT}, 16, v{vT}")
        a(f"v_and_b32 v{vU}, 32, v{vLANE}")
        a(f"v_add_u32 v{vT}, v{vT}, v{vU}")
        a(f"v_lshlrev_b32 v{vT}, 4, v{vT}")
        a(f"v_add_u32 v{vA1}, {ZAIMG}, v{vT}")
        for p in range(1, 16):
            a.wait(vm=kt[p])
            for i in (0, 2):
                a(f"v_pk_add_f32 {V(kvr + i, 2)}, {V(kvr + i, 2)}, {V(kvr + 4 * p + i, 2)}")
        a(f"v_cvt_pk_bf16_f32 v{kvr}, v{kvr}, v{kvr + 1}")
        a(f"v_cvt_pk_bf16_f32 v{kvr + 1}, v{kvr + 2}, v{kvr + 3}")
        a.ds(f"ds_write_b64 v{vA0}, {V(kvr, 2)}")
        a.drain(vm=False)
        a("s_barrier")
        self.stamp("kvsum")
        op, O = WK + 32, WK + 48
        for j in range(4):
            t = a.ds(f"ds_read_b128 {V(op + 4 * j, 4)}, v{vA1} offset:{1024 * j}")
        a(f"s_lshl_b32 s{sA}, s{sTT}, 15")
        a(f"s_lshl_b32 s{sB}, s{sC}, 11")
        a(f"s_add_u32 s{sA}, s{sA}, s{sB}")
        a(f"s_add_u32 s{sA}, s{sA}, {WS_O}")
        a.wait(lg=t)
        for h in range(2):
            self.mfma(V(O + 16 * h, 16), V(op + 8 * h, 4), V(self.phq + 8 * h, 4), "0")
            self.mfma(V(O + 16 * h, 16), V(op + 8 * h + 4, 4), V(self.phq + 8 * h + 4, 4))
        for h in range(2):
            o = O + 16 * h
            a(f"v_add_f32 v{o + 8}, 0x358637bd, v{o + 8}")
            a(f"v_rcp_f32 v{o + 8}, v{o + 8}")
            for i in range(0, 8, 2):
                a(f"v_pk_mul_f32 {V(o + i, 2)}, {V(o + i, 2)}, {V(o + 8, 2)} op_sel_hi:[1,0]")
            for i in range(4):
                a(f"v_cvt_pk_bf16_f32 v{o + 12 + i}, v{o + 2 * i}, v{o + 2 * i + 1}")
            self.store(V(o + 12, 4), S_WS, vL16, f"s{sA}", 1024 * h)
        self.signal(1 + 5 * layer)
        self.stamp("o")
        self.w2_read(1)

    def ring_after_kv(self):
        self.ring_fill(0)

    def res_addr(self, xbase):
        a = self.a
        a(f"s_lshl_b32 s{sE}, s{sCL}, 2")
        a(f"s_lshl_b32 s{sA}, s{sTH2}, 1")
        a(f"s_add_u32 s{sE}, s{sE}, s{sA}")
        a(f"s_add_u32 s{sE}, s{sE}, s{sTH}")
        a(f"s_lshl_b32 s{sF}, s{sE}, 12")
        a(f"s_lshl_b32 s{sA}, s{sCT}, 9")
        a(f"s_add_u32 s{sF}, s{sF}, s{sA}")
        a(f"s_lshl_b32 s{sA}, s{sKH}, 3")
        a(f"s_add_u32 s{sF}, s{sF}, s{sA}")
        a(f"s_lshl_b32 s{sE}, s{sE}, 15")
        a(f"s_lshl_b32 s{sA}, s{sCT}, 7")
        a(f"s_lshl_b32 s{sB}, s{sKH}, 6")
        a(f"s_add_u32 s{sA}, s{sA}, s{sB}")
        a(f"s_add_u32 s{sD}, s{sE}, s{sA}")
        a(f"s_lshl_b32 s{sA}, s{sA}, 5")
        a(f"s_add_u32 s{sE}, s{sE}, s{sA}")
        a(f"v_and_b32 v{vT}, 31, v{vLANE}")
        a(f"v_lshrrev_b32 v{vU}, 5, v{vLANE}")
        a(f"v_lshlrev_b32 v{vROW}, 10, v{vT}")
        a(f"v_lshl_add_u32 v{vROW}, v{vU}, 4, v{vROW}")

    def res_load(self, dst, src):
        a = self.a
        if src is None:
            for j in range(2):
                t = self.load(V(dst + 4 * j, 4), S_AX, vROW, f"s{sD}", 32 * j, sc1=False)
        else:
            a(f"s_add_u32 s{sA}, s{sE}, {src}")
            for j in range(2):
                t = self.load(V(dst + 4 * j, 4), S_WS, vL16, f"s{sA}", 1024 * j)
        return t

    def res_finish(self, acc, res, dst, stats, flag):
        a = self.a
        for i in range(8):
            a(f"v_lshlrev_b32 v{vA0}, 16, v{res + i}")
            a(f"v_and_b32 v{vA1}, 0xffff0000, v{res + i}")
            a(f"v_pk_add_f32 {V(acc + 2 * i, 2)}, {V(acc + 2 * i, 2)}, {V(vA0, 2)}")
        self.cvt16(acc, res)
        if dst is None:
            for j in range(2):
                self.store(V(res + 4 * j, 4), S_OUT, vROW, f"s{sD}", 32 * j, sc1=False)
            return
        a(f"s_add_u32 s{sA}, s{sE}, {dst}")
        for j in range(2):
            self.store(V(res + 4 * j, 4), S_WS, vL16, f"s{sA}", 1024 * j)
        a(f"v_mov_b32 v{acc}, 0")
        a(f"v_mov_b32 v{acc + 1}, 0")
        for i in range(8):
            a(f"v_dot2c_f32_bf16 v{acc}, s{sONES}, v{res + i}")
            a(f"v_dot2c_f32_bf16 v{acc + 1}, v{res + i}, v{res + i}")
        a(f"v_and_b32 v{vT}, 31, v{vLANE}")
        a(f"v_lshrrev_b32 v{vU}, 5, v{vLANE}")
        a(f"v_lshlrev_b32 v{vT}, 4, v{vT}")
        a(f"v_lshl_add_u32 v{vU}, v{vU}, 2, v{vT}")
        a(f"s_add_u32 s{sA}, s{sF}, {stats}")
        a(f"v_permlane32_swap_b32 v{acc}, v{acc + 1}")
        a(f"v_add_f32 v{acc}, v{acc}, v{acc + 1}")
        self.store(V(acc), S_WS, vU, f"s{sA}", width="dword")
        self.signal(flag)

    def p2(self, layer):
        a = self.a
        of, acc, res = WK, WK + 64, WK + 96
        self.res_addr(None)
        tr = self.res_load(res, None if layer == 0 else WS_X2)
        if layer == 0:
            self.table_poll(0x10)
        a(f"s_lshl_b32 s{sA}, s{sTH2}, 1")
        a(f"s_add_u32 s{sA}, s{sA}, s{sTH}")
        a(f"s_lshl_b32 s{sG}, s{sCL}, 2")
        a(f"s_add_u32 s{sG}, s{sG}, s{sA}")
        a(f"s_lshl_b32 s{sA}, s{sG}, 6")
        a(f"s_lshl_b32 s{sB}, s{sKH}, 5")
        a(f"s_add_u32 s{sA}, s{sA}, s{sB}")
        a(f"v_and_b32 v{vU}, 7, v{vLANE}")
        a(f"v_lshl_add_u32 v{vU}, v{vU}, 2, s{sA}")
        a(f"s_lshl_b32 s{sG}, s{sG}, 15")
        a(f"s_lshl_b32 s{sB}, s{sKH}, 14")
        a(f"s_add_u32 s{sG}, s{sG}, s{sB}")
        a(f"s_add_u32 s{sH0}, s{sG}, {WS_O}")
        self.poll(vU, 1 + 5 * layer)
        self.stamp("S2")
        ot = []
        for kb in range(16):
            if kb and kb % 4 == 0:
                a(f"s_add_u32 s{sH0}, s{sH0}, 4096")
            ot.append(self.load(V(of + 4 * kb, 4), S_WS, vL16, f"s{sH0}", (kb % 4) * 1024))
        a.drain(vm=False)
        a("s_barrier")
        self.ring_fill(self.opt["pre_c"])
        for kb in range(16):
            a.wait(vm=ot[kb])
            for nt in range(2):
                self.mfma(V(acc + 16 * nt, 16), V(X0 + (kb * 2 + nt) * 4, 4), V(of + 4 * kb, 4), "0" if kb == 0 else None)
        self.stamp("p2gemm")
        a(f"s_xor_b32 s{sA}, s{sW}, 2")
        a(f"s_lshl_b32 s{sA}, s{sA}, 12")
        a(f"s_add_u32 s{sA}, s{sA}, {P2S}")
        a(f"v_add_u32 v{vA0}, s{sA}, v{vL16}")
        a(f"s_lshl_b32 s{sA}, s{sW}, 12")
        a(f"s_add_u32 s{sA}, s{sA}, {P2S}")
        a(f"v_add_u32 v{vA1}, s{sA}, v{vL16}")
        hi, done = a.label("khi"), a.label("kd")
        a(f"s_cmp_lg_u32 s{sKH}, 0")
        a(f"s_cbranch_scc1 {hi}")
        for q in range(4):
            a(f"ds_write_b128 v{vA0}, {V(acc + 16 + 4 * q, 4)} offset:{1024 * q}")
        a(f"s_branch {done}")
        a(f"{hi}:")
        for q in range(4):
            a(f"ds_write_b128 v{vA0}, {V(acc + 4 * q, 4)} offset:{1024 * q}")
        for i in range(0, 16, 2):
            a(f"v_pk_add_f32 {V(acc + i, 2)}, {V(acc + 16 + i, 2)}, 0")
        a(f"{done}:")
        a.drain(vm=False)
        a("s_barrier")
        for q in range(4):
            t = a.ds(f"ds_read_b128 {V(acc + 16 + 4 * q, 4)}, v{vA1} offset:{1024 * q}")
        a.wait(vm=tr, lg=t)
        for i in range(0, 16, 2):
            a(f"v_pk_add_f32 {V(acc + i, 2)}, {V(acc + i, 2)}, {V(acc + 16 + i, 2)}")
        self.res_finish(acc, res, WS_X1, WS_ST1, 2 + 5 * layer)
        self.stamp("x1")

    def p3(self, layer):
        a = self.a
        if layer == 0:
            skip = a.label("cs3")
            a(f"s_cmp_lg_u32 s{sW}, 0")
            a(f"s_cbranch_scc1 {skip}")
            a(f"s_mul_i32 s{sA}, s{sC}, 896")
            a(f"s_add_u32 s{sA}, s{sA}, {WS_CS3}")
            for k in range(8):
                self.load(V(WK + 4 * k, 4), S_WS, vL16, f"s{sA}", counted=False)
                a(f"s_add_u32 s{sA}, s{sA}, {112 * 128}")
            a("s_waitcnt vmcnt(0)")
            for w in (16, 8, 4):
                for i in range(0, w, 2):
                    a(f"v_pk_add_f32 {V(WK + i, 2)}, {V(WK + i, 2)}, {V(WK + w + i, 2)}")
            a(f"v_add_u32 v{vT}, {CS3}, v{vL16}")
            a("s_mov_b32 exec_hi, 0x00ffffff")
            a(f"ds_write_b128 v{vT}, {V(WK, 4)}")
            a("s_mov_b64 exec, -1")
            a("s_waitcnt lgkmcnt(0)")
            a(f"{skip}:")
        self.rows_poll_addr()
        self.poll(vU, 2 + 5 * layer)
        self.stamp("S3")
        xt = self.x_loads(WS_X1, range(8))
        a("s_barrier")
        a(f"v_add_u32 v{vA0}, {RING}, v{vL16}")
        a(f"v_add_u32 v{vA1}, {RING + 65536}, v{vL16}")
        a(f"s_mul_i32 s{sH1}, s{sTT}, {112 * 1024}")
        a(f"s_mul_i32 s{sA}, s{sC}, {7 * 1024}")
        a(f"s_add_u32 s{sH1}, s{sH1}, s{sA}")
        a(f"s_add_u32 s{sH1}, s{sH1}, {WS_H}")
        accs = [WK, WK + 16, WK + 32, WK + 48, WK + 64, WK + 80, WK]
        tmp = WK + 96
        seq = [(g, kb) for kb in range(32) for g in range(4)] + [(g, kb) for kb in range(32) for g in (4, 5)] + \
              [(6, kb) for kb in range(32)]
        rt = {}

        def rd(f):
            s = f // 8
            if f % 8 == 0:
                while self.ring_next <= s:
                    self.ring_fill(1)
                a.wait(vm=self.ring_tag[s])
                a("s_barrier")
                self.free_upto = s - 2
            off = (s % NSLOT) * 8192 + (f % 8) * 1024
            addr, off = (vA0, off) if off < 65536 else (vA1, off - 65536)
            rt[f] = a.ds(f"ds_read_b128 {A(aRING + (f % 4) * 4, 4)}, v{addr} offset:{off}")

        def epi(g):
            acc, l = accs[g], []
            for hh in range(2):
                c = tmp + 8 * hh
                l.append(("ds", f"ds_read_b128 {V(c, 4)}, v{vCS} offset:{512 + g * 128 + 16 * hh}"))
                l.append(("ds", f"ds_read_b128 {V(c + 4, 4)}, v{vCS} offset:{512 + g * 128 + 64 + 16 * hh}"))
            l.append(("wait", None))
            for hh in range(2):
                c = tmp + 8 * hh
                for i in range(4):
                    l.append(("v", f"v_fmac_f32 v{acc + 4 * hh + i}, v{vNMU}, v{c + i}"))
                    l.append(("v", f"v_fmac_f32 v{acc + 8 + 4 * hh + i}, v{vNMU}, v{c + 4 + i}"))
            for i in range(8):
                l.append(("v", f"v_mul_f32 v{acc + 8 + i}, v{vRHO}, v{acc + 8 + i}"))
            for i in range(8):
                l.append(("v", f"v_mul_f32 v{acc + i}, v{acc + i}, v{acc + 8 + i}"))
            for i in range(4):
                l.append(("v", f"v_cvt_pk_bf16_f32 v{acc + 8 + i}, v{acc + 2 * i}, v{acc + 2 * i + 1}"))
            l.append(("st", g))
            return l

        self.last_ds = None
        self.h_tag = {}

        def run(item):
            k, x = item
            if k == "ds":
                self.last_ds = a.ds(x)
            elif k == "wait":
                a.wait(lg=self.last_ds)
            elif k == "v":
                a(x)
            elif k == "st":
                if x == 4:
                    a(f"s_add_u32 s{sH1}, s{sH1}, 4096")
                self.h_tag[x] = self.store(V(accs[x] + 8, 4), S_WS, vL16, f"s{sH1}", (x % 4) * 1024)
            elif k == "sigA":
                a.wait(vm=self.h_tag[3])
                a(f"v_mov_b32 v{vT}, {3 + 5 * layer}")
                a("s_mov_b64 exec, 1")
                self.store(V(vT), S_WS, vFLAG, 0, width="dword")
                a("s_mov_b64 exec, -1")
        self.free_upto = -1
        for f in range(4):
            rd(f)
        pend = []
        nx = 8
        st = None
        w4 = 0
        for f, (g, kb) in enumerate(seq):
            if f == 128:
                pend = sum((epi(q) for q in range(4)), [])
            if f == 192:
                assert not pend
                pend = sum((epi(q) for q in (4, 5)), [])
                pend.insert(24, ("sigA", None))
            if g == 0:
                a.wait(vm=xt[kb])
            a.wait(lg=rt[f])
            self.mfma(V(accs[g], 16), A(aRING + (f % 4) * 4, 4), V(X0 + 4 * kb, 4), "0" if kb == 0 else None)
            if f + 4 < 224:
                rd(f + 4)
            if nx < 32 and f % 2 == 1:
                self.x_loads(WS_X1, [nx], xt)
                nx += 1
            elif nx == 32 and st is None and f % 2 == 1:
                st = self.load_stats(WS_ST1, tmp)
            elif f == 100:
                a.wait(vm=st)
                self.sum_stats(tmp)
                a(f"v_mul_f32 v{vRHO}, v{vRHO}, v{vRHO}")
            elif f % 2 == 0 and self.ring_next < 28 and self.ring_next - NSLOT <= self.free_upto and \
                    (nx == 32 or f % 8 == 6):
                self.ring_fill(1)
            if layer == 0 and f >= 64 and f % 2 == 1 and f < 64 + 2 * 56 and st is not None:
                self.w4_load(w4, w4 + 1)
                w4 += 1
            if 130 <= f < 192 or f >= 194:
                for _ in range(3):
                    if pend:
                        run(pend.pop(0))
        assert not pend, len(pend)
        if layer == 0 and w4 < 56:
            self.w4_load(w4, 56)
        self.stamp("p3gemm")
        a("s_barrier")
        for it in epi(6):
            run(it)
        self.signal(4 + 5 * layer)
        self.stamp("h")

    def p4(self, layer):
        a = self.a
        acc, hr, NH = X0, X0 + 64, 20
        res = X0 + 64 + 8 * NH
        self.res_addr(None)
        a(f"s_lshl_b32 s{sA}, s{sCL}, 8")
        a(f"s_lshl_b32 s{sB}, s{sTH2}, 7")
        a(f"s_add_u32 s{sA}, s{sA}, s{sB}")
        a(f"s_lshl_b32 s{sB}, s{sW}, 4")
        a(f"s_add_u32 s{sA}, s{sA}, s{sB}")
        a(f"v_and_b32 v{vT}, 3, v{vLANE}")
        a(f"v_bfe_u32 v{vU}, v{vLANE}, 2, 1")
        a(f"v_lshlrev_b32 v{vU}, 6, v{vU}")
        a(f"v_lshl_add_u32 v{vU}, v{vT}, 2, v{vU}")
        a(f"v_add_u32 v{vU}, s{sA}, v{vU}")
        a(f"s_lshl_b32 s{sA}, s{sCL}, 2")
        a(f"s_lshl_b32 s{sB}, s{sTH2}, 1")
        a(f"s_add_u32 s{sA}, s{sA}, s{sB}")
        a(f"s_mul_i32 s{sH0}, s{sA}, {112 * 1024}")
        a(f"s_mul_i32 s{sB}, s{sW}, {28 * 1024}")
        a(f"s_add_u32 s{sH0}, s{sH0}, s{sB}")
        a(f"s_add_u32 s{sH0}, s{sH0}, {WS_H}")
        a(f"s_add_u32 s{sH1}, s{sH0}, {112 * 1024}")
        self.poll(vU, 3 + 5 * layer)
        self.stamp("S4a")
        order = [7 * p + g for g in range(4) for p in range(4)] + [7 * p + g for g in (4, 5, 6) for p in range(4)]
        ht = {}

        def ld(i):
            kbl = order[i]
            for th in range(2):
                a(f"s_add_u32 s{sA}, s{sH0 + th}, {kbl * 1024}")
                ht[i] = self.load(V(hr + (i % NH) * 8 + 4 * th, 4), S_WS, vL16, f"s{sA}")
        for i in range(8):
            ld(i)
        nl, tp, tr = 8, None, None
        for i in range(28):
            a.wait(vm=ht[i])
            kbl = order[i]
            for th in range(2):
                for nt in range(2):
                    self.mfma(V(acc + 16 * (2 * nt + th), 16), A((kbl * 2 + nt) * 4, 4), V(hr + (i % NH) * 8 + 4 * th, 4),
                              "0" if i == 0 else None)
                if th == 0:
                    if nl == 12 and tp is None:
                        tp = a.vmop(f"buffer_load_dword v{vP}, v{vU}, {S(S_WS)}, 0 offen sc1")
                    if nl == 16 and tp is not None and tp > 0:
                        self.poll(vU, 4 + 5 * layer, first=tp)
                        tp = -1
                    if nl < 28:
                        ld(nl)
                        nl += 1
                    elif tr is None:
                        tr = self.res_load(res, WS_X1)
        self.stamp("p4gemm")
        own = hr
        for q in range(4):
            skip, done = a.label("own"), a.label("ownd")
            a(f"s_sub_u32 s{sA}, s{sW}, {q + 1}")
            a(f"s_and_b32 s{sA}, s{sA}, 3")
            a(f"s_cmp_eq_u32 s{sA}, 3")
            a(f"s_cbranch_scc1 {skip}")
            a(f"s_lshl_b32 s{sA}, s{sA}, 12")
            a(f"s_add_u32 s{sA}, s{sA}, {P4S + q * 12288}")
            a(f"v_add_u32 v{vA0}, s{sA}, v{vL16}")
            for j in range(4):
                a(f"ds_write_b128 v{vA0}, {V(acc + 16 * q + 4 * j, 4)} offset:{1024 * j}")
            a(f"s_branch {done}")
            a(f"{skip}:")
            for i in range(0, 16, 2):
                a(f"v_pk_add_f32 {V(own + i, 2)}, {V(acc + 16 * q + i, 2)}, 0")
            a(f"{done}:")
        a(f"s_mul_i32 s{sA}, s{sW}, 12288")
        a(f"s_add_u32 s{sA}, s{sA}, {P4S}")
        a(f"v_add_u32 v{vA0}, s{sA}, v{vL16}")
        a.drain(vm=False)
        a("s_barrier")
        ts = []
        for j in range(12):
            ts.append(a.ds(f"ds_read_b128 {V(acc + 4 * j, 4)}, v{vA0} offset:{1024 * j}"))
        for s in range(3):
            a.wait(lg=ts[4 * s + 3])
            for i in range(0, 16, 2):
                a(f"v_pk_add_f32 {V(own + i, 2)}, {V(own + i, 2)}, {V(acc + 16 * s + i, 2)}")
        a.wait(vm=tr)
        if layer == 0:
            self.res_finish(own, res, WS_X2, WS_ST2, 5)
            a("s_barrier")
        else:
            self.res_finish(own, res, None, None, None)
        self.stamp("x2")

    def body(self):
        for layer in range(self.opt["layers"]):
            acc = self.p1_start_l0() if layer == 0 else self.p1_start_l1()
            self.e1_kv(layer, *acc)
            self.s1_window(layer)
            self.p2(layer)
            self.p3(layer)
            self.p4(layer)

    def build(self):
        a = self.a
        self.slow = False
        self.prologue()
        self.stamp("start")
        self.body()
        if self.diag:
            a(f"s_lshl_b32 s{sA}, s{sCL}, 4")
            a(f"s_add_u32 s{sA}, s{sA}, s{sC}")
            a(f"s_lshl_b32 s{sA}, s{sA}, 2")
            a(f"s_add_u32 s{sA}, s{sA}, s{sW}")
            a(f"s_lshl_b32 s{sA}, s{sA}, 8")
            a(f"s_add_u32 s{sA}, s{sA}, {WS_SIZE - 0x40000}")
            a(f"v_writelane_b32 v{vDIAG}, s{sTO}, 63")
            a(f"v_lshlrev_b32 v{vT}, 2, v{vLANE}")
            self.store(V(vDIAG), S_WS, vT, f"s{sA}", width="dword")
        a("L_end:")
        a("s_endpgm")
        self.slow = True
        a("L_slow:")
        a.drain()
        a("s_barrier")
        a(f"s_lshr_b32 s{sCL}, s2, 4")
        a(f"s_and_b32 s{sC}, s2, 15")
        self.body()
        a("s_endpgm")
        lines, n = fix_hazards(a.lines)
        head = HEADER.format(lds=LDS_SIZE, name=NAME)
        return head + "\n".join(lines) + "\n" + TAIL.format(name=NAME), n


HEADER = """; Two interleaved (Hedgehog linear attention, bilinear GLU) blocks in one persistent launch: 256 workgroups, one per CU.
; Work split: 16 clusters of 16 workgroups, one cluster per 128 token rows.  Phases per layer:
;   P1 k,v,q = LN(x) Wqkv (2 heads per workgroup), feature maps, partial phi_k^T [v 1]  -> exchange over the 16 clusters
; LayerNorm is applied after the product: LN(x) W = rstd * (x W - mean * colsum(W)).
; Hand-offs inside a cluster: when the table in d_debug (every workgroup publishes the XCD it really runs on) shows that each
; cluster sits on one XCD, they stay in that XCD's L2 (plain stores, L1-bypassing loads); under any other placement every
; workgroup jumps to L_slow, a copy that writes all hand-offs through to memory.  Hand-offs between clusters always write through.
; @launch grid=(256,1,1) block=(256,1,1) lds={lds}
.amdgcn_target "amdgcn-amd-amdhsa--gfx950"
.text
.globl {name}_kernel
.p2align 8
.type {name}_kernel,@function
{name}_kernel:
"""
TAIL = """.section .rodata,"a"
.p2align 6
.amdhsa_kernel {name}_kernel
  .amdhsa_next_free_vgpr 512
  .amdhsa_next_free_sgpr 102
  .amdhsa_accum_offset 256
  .amdhsa_group_segment_fixed_size 0
  .amdhsa_kernarg_size 88
  .amdhsa_user_sgpr_count 2
  .amdhsa_user_sgpr_kernarg_segment_ptr 1
  .amdhsa_system_sgpr_workgroup_id_x 1
.end_amdhsa_kernel
"""

if __name__ == "__main__":
    out = sys.argv[1]
    flags = sys.argv[2:]
    opt = {f.split("=")[0]: int(f.split("=")[1]) for f in flags if "=" in f}
    g = Gen(diag="diag" in flags, force_slow="slow" in flags, opt=opt)
    text, n = g.build()
    open(out, "w").write(text)
    if g.diag:
        open(out + ".stamps", "w").write("\n".join(g.stamps))
    print(f"{out}: {len(text)} bytes, {text.count(chr(10))} lines, {n} hazard nops")
```

```python
import sys
from asmlib import Asm, fix_hazards

NAME = "interleave_layers__linear_kernel_hedgehog__glu_gated_bilinear__prompt"

WS_FLAG = 0x0
WS_S1F = 0x1000
WS_ALT = 0x4000
WS_CS3 = 0x20000
WS_ST = 0x40000
WS_KVP = 0x100000
WS_KVP_ALT = 0x240000
KVP_SZ = 2304
WS_A = 0x400000
WS_B = 0x600000
WS_OBUF = (WS_A, WS_B)
WS_XMID = (WS_B, WS_A)
WS_H = 0xA00000
WS_W3 = 0x1200000
WS_W4 = 0x1600000
WS_SIZE = 0x1800000

W1KV = 0
PERS = 65536
CS1 = PERS
CS3 = PERS + 512
ZB = PERS + 2048
ZQ = ZB
ZW2 = ZB + 30720
ZS = ZB + 81920
ZAIMG = ZB + 24576
XS = ZB
PREP_G = ZB + 65536
PREP_U = PREP_G + 8192
PREP_D = PREP_U + 8192
PHI_IMG = ZB + 90112
CSP = PHI_IMG + 1024
CSPQ = PERS + 1408
NSLOT = 11
RING_AT = [ZB + 8192 * i for i in (0, 1, 2, 4, 5, 6, 7, 8, 9, 10, 3)]
P2S = ZB + 73728
P4S = ZB
LDS_SIZE = 163840

sTM = 4
S_AX, S_WQ, S_WS, S_DBG, S_PHI, S_WO, S_WG, S_WU, S_WD, S_OUT = 28, 32, 36, 40, 44, 48, 52, 56, 60, 64
sW, sCL, sC, sTT, sCT, sTH2, sKH, sTH = 68, 69, 70, 71, 72, 73, 74, 75
sXCC = 76
sA, sB, sD, sE, sF, sG = 77, 78, 79, 80, 81, 82
sFLAG = 83
sLOG2E = 84
sONES, sLO, sHI = 86, 87, 88
sH0, sH1, sH2, sH3 = 89, 90, 92, 93
sTO = 91
sBG = 94
sQ0, sQ1, sR0, sR1, sW3, sW3N, sW4 = 95, 96, 97, 98, 99, 100, 101

vLANE, vL16, vTR0, vTR1, vTRQ, vBG, vP, vT = 0, 1, 2, 3, 4, 5, 6, 7
vNMU, vRHO = 8, 9
vCS, vU, vA0, vA1, vROW, vDIAG = 10, 11, 12, 13, 14, 15
X0 = 16
WK = 144
aI, aPHI, aRING = 224, 232, 240


def V(a, n=1):
    return f"v{a}" if n == 1 else f"v[{a}:{a + n - 1}]"


def A(a, n=1):
    return f"a{a}" if n == 1 else f"a[{a}:{a + n - 1}]"


def S(a, n=4):
    return f"s[{a}:{a + n - 1}]"


class PacedAsm(Asm):
    def __init__(self):
        super().__init__()
        self.bg, self.on, self.acc, self.busy = [], False, 0, False

    def __call__(self, text):
        super().__call__(text)
        if self.on and not self.busy and text.startswith("v_"):
            mn = text.split()[0]
            self.acc += 32 if "mfma" in mn else 8 if mn[2:5] in ("exp", "rcp", "rsq", "per") else 4
            if self.bg and self.acc >= self.bg[0][0]:
                self.pop()

    def pop(self, n=1):
        for _ in range(n):
            if self.bg:
                self.busy = True
                self.bg.pop(0)[1]()
                self.busy = False
                self.acc = 0

    def flush(self):
        self.pop(len(self.bg))

    def capture(self, fn):
        n, on = len(self.lines), self.on
        self.on = False
        fn()
        self.on = on
        got = self.lines[n:]
        del self.lines[n:]
        return got


class Gen:
    def __init__(self, diag=False, force_slow=False, opt=None):
        self.a = PacedAsm()
        self.diag, self.force_slow = diag, force_slow
        self.nstamp, self.stamps = 0, []
        self.opt = dict(pre_a=3, pre_b=0, pre_c=3, layers=2, bar=16, lead=10, lead3=8, lead4=8, prepat=0, wt0=1)
        self.opt.update(opt or {})

    def stamp(self, name):
        if not self.diag or self.slow:
            return
        a = self.a
        on, a.on = a.on, False
        a(f"s_memtime s[{sTM}:{sTM + 1}]")
        a.drain(vm=False)
        a(f"v_writelane_b32 v{vDIAG}, s{sTM}, {self.nstamp}")
        a.on = on
        self.stamps.append(name)
        self.nstamp += 1

    def mfma(self, d, x, y, c=None):
        self.a(f"v_mfma_f32_32x32x16_bf16 {d}, {x}, {y}, {c if c is not None else d}")

    def dma(self, srd, voff, soff, imm=0, counted=True):
        o = f" offset:{imm}" if imm else ""
        return self.a.vmop(f"buffer_load_dwordx4 v{voff}, {S(srd)}, {soff} offen{o} lds", counted)

    def load(self, dst, srd, voff, soff, imm=0, sc1=True, counted=True):
        o = f" offset:{imm}" if imm else ""
        return self.a.vmop(f"buffer_load_dwordx4 {dst}, v{voff}, {S(srd)}, {soff} offen{o}{' sc1' if sc1 else ''}", counted)

    def store(self, src, srd, voff, soff, imm=0, sc1=None, width="dwordx4", counted=True):
        if sc1 is None:
            sc1 = self.slow
        if sc1 == "first":
            sc1 = self.slow or bool(self.opt["wt0"])
        o = f" offset:{imm}" if imm else ""
        return self.a.vmop(f"buffer_store_{width} {src}, v{voff}, {S(srd)}, {soff} offen{o}{' sc1' if sc1 else ''}", counted)

    def dma_items(self, n, srd, voff, src, src_step, lds, lds0, gap, tags=None, key=None):
        a = self.a

        def item(i):
            def f():
                a(f"s_add_u32 m0, s{lds}, {lds0 + i * 1024}")
                a(f"s_add_u32 s{sBG}, s{src}, {i * src_step}")
                t = self.dma(srd, voff, f"s{sBG}")
                if tags is not None:
                    tags[key] = t
            return gap, f
        return [item(i) for i in range(n)]

    def tr(self, dst, addr, off):
        self.a.ds(f"ds_read_b64_tr_b16 {V(dst, 2)}, v{addr} offset:{off[0]}")
        return self.a.ds(f"ds_read_b64_tr_b16 {V(dst + 2, 2)}, v{addr} offset:{off[1]}")

    def flag_store(self, value, sreg=sFLAG, sc1=None):
        a = self.a
        a("s_mov_b64 exec, 1")
        self.store(V(vT), S_WS, vA1, 0, sc1=sc1, width="dword")
        a("s_mov_b64 exec, -1")

    def signal(self, value, sreg=sFLAG, sc1=None, after=None):
        a = self.a
        a(f"v_mov_b32 v{vT}, {value}")
        a(f"v_mov_b32 v{vA1}, s{sreg}")
        if after is None:
            a.drain(lg=False)
        else:
            a.wait(vm=after)
        self.flag_store(value, sreg, sc1)

    def spin(self, lp, done):
        a = self.a
        a(f"s_cbranch_vccz {done}")
        a(f"s_add_u32 s{sTO}, s{sTO}, 1")
        a(f"s_bitcmp0_b32 s{sTO}, 20")
        a(f"s_cbranch_scc1 {lp}")
        a(f"{done}:")

    def poll_issue(self, addr, srd=S_WS):
        return self.a.vmop(f"buffer_load_dword v{vP}, v{addr}, {S(srd)}, 0 offen sc1")

    def poll(self, addr, test, first=None, srd=S_WS):
        a = self.a
        on, a.on = a.on, False
        if not callable(test):
            value = test
            test = lambda: a(f"v_cmp_gt_u32 vcc, {value}, v{vP}")
        lp, done = a.label("poll"), a.label("go")
        if first is not None:
            a.wait(vm=first)
            test()
            a(f"s_cbranch_vccz {done}")
        a(f"{lp}:")
        a.vmop(f"buffer_load_dword v{vP}, v{addr}, {S(srd)}, 0 offen sc1", counted=first is None)
        if first is None:
            a.drain(lg=False)
        else:
            a("s_waitcnt vmcnt(0)")
        test()
        self.spin(lp, done)
        a.on = on

    def half_reduce2(self, x, y, op):
        a = self.a
        a(f"v_permlane32_swap_b32 v{x}, v{y}")
        a(f"{op} v{x}, v{x}, v{y}")
        a(f"v_mov_b32 v{y}, v{x}")
        a(f"v_permlane32_swap_b32 v{x}, v{y}")

    def finish_stats(self, s, q):
        a = self.a
        self.half_reduce2(s, q, "v_add_f32")
        a(f"v_mul_f32 v{vNMU}, {-1.0 / 512}, v{s}")
        a(f"v_mul_f32 v{q}, {1.0 / 512}, v{q}")
        a(f"v_fma_f32 v{q}, -v{vNMU}, v{vNMU}, v{q}")
        a(f"v_max_f32 v{q}, 0, v{q}")
        a(f"v_add_f32 v{q}, 0x3727c5ac, v{q}")
        a(f"v_rsq_f32 v{vRHO}, v{q}")

    def stats_items(self, base, dst, tags, voff, gap):
        a = self.a
        a(f"s_lshl_b32 s{sR0}, s{sTT}, 12")
        a(f"s_add_u32 s{sR0}, s{sR0}, {base}")
        a(f"v_and_b32 v{vT}, 31, v{vLANE}")
        a(f"v_lshlrev_b32 v{vT}, 4, v{vT}")
        a(f"v_lshrrev_b32 v{voff}, 5, v{vLANE}")
        a(f"v_lshl_add_u32 v{voff}, v{voff}, 11, v{vT}")

        def item(i):
            def f():
                tags["st"] = self.load(V(dst + 4 * i, 4), S_WS, voff, f"s{sR0}", 512 * i)
            return gap, f
        return [item(i) for i in range(4)]

    def sum_stats(self, src, packed=True):
        a = self.a
        for w in (8, 4, 2):
            for i in range(0, w, 2):
                if packed:
                    a(f"v_pk_add_f32 {V(src + i, 2)}, {V(src + i, 2)}, {V(src + w + i, 2)}")
                else:
                    a(f"v_add_f32 v{src + i}, v{src + i}, v{src + w + i}")
                    a(f"v_add_f32 v{src + i + 1}, v{src + i + 1}, v{src + w + i + 1}")
        self.finish_stats(src, src + 1)

    def normalize(self, acc, cs, dst):
        a = self.a
        for i in range(0, 16, 2):
            a(f"v_pk_fma_f32 {V(acc + i, 2)}, {V(cs + i, 2)}, {V(vNMU, 2)}, {V(acc + i, 2)} op_sel_hi:[1,0,1]")
        for i in range(0, 16, 2):
            a(f"v_pk_mul_f32 {V(acc + i, 2)}, {V(acc + i, 2)}, {V(vNMU, 2)} op_sel:[0,1] op_sel_hi:[1,1]")
        self.cvt16(acc, dst)

    def cvt16(self, src, dst):
        for i in range(8):
            self.a(f"v_cvt_pk_bf16_f32 v{dst + i}, v{src + 2 * i}, v{src + 2 * i + 1}")

    def read_cs(self, tile, dst):
        for j, o in enumerate((0, 16, 64, 80)):
            t = self.a.ds(f"ds_read_b128 {V(dst + 4 * j, 4)}, v{vCS} offset:{tile * 128 + o}")
        return t

    def softmax_pair(self, p, tmp, dst):
        a = self.a
        m0, m1 = tmp, tmp + 2
        for g, m in ((p, m0), (p + 8, m1)):
            a(f"v_max3_f32 v{m}, v{g}, v{g + 1}, v{g + 2}")
            a(f"v_max3_f32 v{m + 1}, v{g + 3}, v{g + 4}, v{g + 5}")
            a(f"v_max3_f32 v{m}, v{g + 6}, v{g + 7}, v{m}")
            a(f"v_max_f32 v{m}, v{m}, v{m + 1}")
        self.half_reduce2(m0, m1, "v_max_f32")
        for m in (m0, m1):
            a(f"v_mul_f32 v{m}, 0xbfb8aa3b, v{m}")
        for g, m in ((p, m0), (p + 8, m1)):
            for i in range(0, 8, 2):
                a(f"v_pk_fma_f32 {V(g + i, 2)}, {V(g + i, 2)}, {S(sLOG2E, 2)}, {V(m, 2)} op_sel_hi:[1,1,0]")
        for i in range(16):
            a(f"v_exp_f32 v{p + i}, v{p + i}")
        for g, m in ((p, m0), (p + 8, m1)):
            a(f"v_pk_add_f32 {V(m, 2)}, {V(g, 2)}, {V(g + 2, 2)}")
            a(f"v_pk_add_f32 {V(tmp + 4, 2)}, {V(g + 4, 2)}, {V(g + 6, 2)}")
            a(f"v_pk_add_f32 {V(m, 2)}, {V(m, 2)}, {V(tmp + 4, 2)}")
            a(f"v_add_f32 v{m}, v{m}, v{m + 1}")
        self.half_reduce2(m0, m1, "v_add_f32")
        a(f"v_rcp_f32 v{m0}, v{m0}")
        a(f"v_rcp_f32 v{m1}, v{m1}")
        for g, m in ((p, m0), (p + 8, m1)):
            for i in range(0, 8, 2):
                a(f"v_pk_mul_f32 {V(g + i, 2)}, {V(g + i, 2)}, {V(m, 2)} op_sel_hi:[1,0]")
        self.cvt16(p, dst)

    def natural_col(self, dst):
        a = self.a
        a(f"v_and_b32 v{vT}, 19, v{vLANE}")
        a(f"v_bfe_u32 v{dst}, v{vLANE}, 2, 1")
        a(f"v_lshl_add_u32 v{vT}, v{dst}, 3, v{vT}")
        a(f"v_bfe_u32 v{dst}, v{vLANE}, 3, 1")
        a(f"v_lshl_add_u32 v{vT}, v{dst}, 2, v{vT}")
        a(f"v_lshlrev_b32 v{dst}, 2, v{vT}")

    def fold_halves(self, acc):
        a = self.a
        a(f"v_add_f32 v{acc}, v{acc}, v{acc + 1}")
        a(f"v_mov_b32 v{acc + 1}, v{acc}")
        a(f"v_permlane32_swap_b32 v{acc}, v{acc + 1}")
        a(f"v_add_f32 v{acc}, v{acc}, v{acc + 1}")

    def colsum_write(self, base, accs):
        a = self.a
        self.natural_col(vU)
        a(f"s_mul_i32 s{sA}, s{sW}, {128 * len(accs)}")
        a(f"s_add_u32 s{sA}, s{sA}, {base}")
        a(f"v_add_u32 v{vU}, s{sA}, v{vU}")
        for tile, acc in enumerate(accs):
            self.fold_halves(acc)
            a.ds(f"ds_write_b32 v{vU}, v{acc} offset:{tile * 128}")

    def colsum_final(self, base, ntile, dst, tmp):
        a = self.a
        a(f"v_lshlrev_b32 v{vT}, 2, v{vLANE}")
        if ntile == 1:
            a(f"v_and_b32 v{vT}, 127, v{vT}")
        a(f"v_add_u32 v{vU}, {base}, v{vT}")
        for w in range(4):
            t = a.ds(f"ds_read_b32 v{tmp + w}, v{vU} offset:{128 * ntile * w}")
        a(f"v_add_u32 v{vU}, {dst}, v{vT}")
        a.wait(lg=t)
        a(f"v_add_f32 v{tmp}, v{tmp}, v{tmp + 1}")
        a(f"v_add_f32 v{tmp + 2}, v{tmp + 2}, v{tmp + 3}")
        a(f"v_add_f32 v{tmp}, v{tmp}, v{tmp + 2}")
        return a.ds(f"ds_write_b32 v{vU}, v{tmp}")

    def prologue(self):
        a = self.a
        a("s_cmp_ge_u32 s2, 256")
        a("s_cbranch_scc1 L_end")
        a("s_getpc_b64 s[4:5]")
        for srd, off in ((S_AX, 0), (S_WQ, 8), (S_WS, 80), (S_WG, 40), (S_WU, 48), (S_WD, 56), (S_DBG, 72), (S_PHI, 16),
                         (S_WO, 24), (S_OUT, 64)):
            a(f"s_load_dwordx2 s[{srd}:{srd + 1}], s[0:1], {off}")
        a(f"v_lshrrev_b32 v{vU}, 6, v0")
        a(f"v_and_b32 v{vT}, 3, v0")
        a(f"v_lshl_add_u32 v{vT}, v{vU}, 2, v{vT}")
        a(f"s_lshr_b32 s{sG}, s2, 3")
        a(f"s_lshl_b32 s{sA}, s{sG}, 11")
        a(f"v_lshl_add_u32 v{vT}, v{vT}, 7, s{sA}")
        a.vmop(f"global_load_dword v255, v{vT}, s[4:5]")
        a(f"v_readfirstlane_b32 s{sW}, v{vU}")
        a(f"s_getreg_b32 s{sXCC}, hwreg(HW_REG_XCC_ID, 0, 4)")
        a(f"v_and_b32 v{vLANE}, 63, v0")
        a(f"v_lshlrev_b32 v{vL16}, 4, v{vLANE}")
        for srd, size in ((S_AX, 2 << 20), (S_WQ, 512 * 1536 * 2), (S_WS, WS_SIZE), (S_WG, 512 * 1792 * 2),
                          (S_WU, 512 * 1792 * 2), (S_WD, 1792 * 512 * 2), (S_DBG, 256), (S_PHI, 16384),
                          (S_WO, 512 * 512 * 2), (S_OUT, 2 << 20)):
            a(f"s_mov_b32 s{srd + 2}, {size}")
            a(f"s_mov_b32 s{srd + 3}, 0x20000")
        if self.diag:
            a(f"v_mov_b32 v{vDIAG}, 0")
        a(f"s_mov_b32 s{sTO}, 0")
        a(f"s_and_b32 s{sD}, s{sXCC}, 7")
        a(f"s_lshl_b32 s{sCL}, s{sD}, 1")
        a(f"s_lshr_b32 s{sA}, s2, 7")
        a(f"s_add_u32 s{sCL}, s{sCL}, s{sA}")
        a(f"s_bfe_u32 s{sC}, s2, 0x40003")
        a(f"s_lshl_b32 s{sE}, s{sG}, 2")
        a(f"s_add_u32 s{sE}, s{sE}, s{sW}")
        a(f"s_lshl_b32 s{sA}, s{sD}, 18")
        a(f"s_lshl_b32 s{sB}, s{sE}, 11")
        a(f"s_add_u32 s{sH2}, s{sA}, s{sB}")
        a(f"s_mul_i32 s{sH3}, s{sE}, 3072")
        a(f"v_and_b32 v{vT}, 1, v{vLANE}")
        a(f"v_bfe_u32 v{vU}, v{vLANE}, 1, 1")
        a(f"v_lshlrev_b32 v{vT}, 7, v{vT}")
        a(f"v_lshl_add_u32 v250, v{vU}, 10, v{vT}")
        a(f"v_and_b32 v{vT}, 15, v{vLANE}")
        a(f"v_lshlrev_b32 v251, 7, v{vT}")
        a("s_waitcnt lgkmcnt(0)")
        for r in range(2):
            for _, f in self.touch_items(r):
                f()

    def touch_items(self, r):
        a = self.a

        def w():
            a(f"s_add_u32 s{sBG}, s{sH3}, {128 * r * 3072 + 1024}")
            a.vmop(f"buffer_load_dword v253, v251, {S(S_WQ)}, s{sBG} offen")
        return [(40, w), (40, lambda: a.vmop(f"buffer_load_dword v254, v250, {S(S_AX)}, s{sH2} offen offset:{256 * r}"))]

    def late_touch_items(self):
        a = self.a
        a(f"s_mul_i32 s{sQ0}, s{sE}, {4 * 3072}")
        a(f"s_lshl_b32 s{sQ1}, s{sE}, 12")
        a(f"v_and_b32 v{vT}, 7, v{vLANE}")
        a(f"v_lshlrev_b32 v{vT}, 7, v{vT}")
        a(f"v_bfe_u32 v{vU}, v{vLANE}, 3, 2")
        a(f"v_lshl_add_u32 v{vROW}, v{vU}, 10, v{vT}")
        a(f"v_mul_u32_u24 v{vU}, 3072, v{vU}")
        a(f"v_add_u32 v{vBG}, v{vU}, v{vT}")
        return [(72, lambda: a.vmop(f"buffer_load_dword v{vP}, v{vBG}, {S(S_WQ)}, s{sQ0} offen")),
                (72, lambda: a.vmop(f"buffer_load_dword v{vP}, v{vROW}, {S(S_WO)}, s{sQ1} offen"))]

    def slot_scalars(self):
        a = self.a
        a(f"s_lshl_b32 s{sTT}, s{sCL}, 2")
        a(f"s_add_u32 s{sTT}, s{sTT}, s{sW}")
        a(f"s_and_b32 s{sCT}, s{sC}, 7")
        a(f"s_lshr_b32 s{sTH2}, s{sC}, 3")
        a(f"s_lshr_b32 s{sKH}, s{sW}, 1")
        a(f"s_and_b32 s{sTH}, s{sW}, 1")

    def lane_consts(self):
        a = self.a
        a(f"v_bfe_u32 v{vT}, v{vLANE}, 2, 2")
        a(f"v_lshrrev_b32 v{vU}, 5, v{vLANE}")
        a(f"v_lshl_add_u32 v{vA0}, v{vU}, 3, v{vT}")
        a(f"v_and_b32 v{vA1}, 1, v{vLANE}")
        a(f"v_lshlrev_b32 v{vA1}, 4, v{vA1}")
        a(f"v_bfe_u32 v{vP}, v{vLANE}, 1, 1")
        a(f"v_lshl_add_u32 v{vA1}, v{vP}, 3, v{vA1}")
        a(f"v_bfe_u32 v{vP}, v{vLANE}, 4, 1")
        a(f"v_lshl_add_u32 v{vA1}, v{vP}, 5, v{vA1}")
        a(f"v_lshl_add_u32 v{vTRQ}, v{vA0}, 6, v{vA1}")
        a(f"v_add_u32 v{vTRQ}, {ZQ}, v{vTRQ}")
        a(f"v_lshl_add_u32 v{vTR0}, v{vA0}, 7, v{vA1}")
        a(f"v_lshrrev_b32 v{vT}, 1, v{vT}")
        a(f"v_lshl_add_u32 v{vTR0}, v{vT}, 6, v{vTR0}")
        a(f"v_xor_b32 v{vTR1}, 64, v{vTR0}")
        a(f"v_lshlrev_b32 v{vCS}, 5, v{vU}")
        a(f"v_add_u32 v{vCS}, {PERS}, v{vCS}")
        a(f"s_lshl_b32 s{sA}, s{sTT}, 6")
        a(f"s_lshl_b32 s{sB}, s{sC}, 2")
        a(f"s_add_u32 s{sFLAG}, s{sA}, s{sB}")
        if self.slow:
            a(f"s_add_u32 s{sFLAG}, s{sFLAG}, {WS_ALT}")
        a(f"s_mov_b32 s{sLOG2E}, 0x3fb8aa3b")
        a(f"s_mov_b32 s{sLOG2E + 1}, 0x3fb8aa3b")
        a(f"s_mov_b32 s{sONES}, 0x3f803f80")
        a(f"s_mov_b32 s{sLO}, 0x3f80")
        a(f"s_mov_b32 s{sHI}, 0x3f800000")
        a(f"v_bfe_u32 v{vT}, v{vLANE}, 2, 1")
        a(f"v_cmp_eq_u32 vcc, v{vT}, v{vU}")
        a(f"v_and_b32 v{vT}, 1, v{vLANE}")
        a(f"v_lshlrev_b32 v{vT}, 4, v{vT}")
        a(f"v_mov_b32 v{vA0}, 0x3f80")
        a(f"v_lshlrev_b32 v{vA0}, v{vT}, v{vA0}")
        a(f"v_cndmask_b32 v{vA0}, 0, v{vA0}, vcc")
        a(f"v_bfe_u32 v{vT}, v{vLANE}, 1, 1")
        a(f"v_bfe_u32 v{vA1}, v{vLANE}, 3, 2")
        a(f"v_lshl_add_u32 v{vT}, v{vA1}, 1, v{vT}")
        for r in range(8):
            a(f"v_cmp_eq_u32 vcc, {r}, v{vT}")
            a(f"v_cndmask_b32 v{vA1}, 0, v{vA0}, vcc")
            a(f"v_accvgpr_write_b32 a{aI + r}, v{vA1}")

    def w1q_items(self):
        a = self.a
        a(f"v_lshrrev_b32 v{vT}, 2, v{vLANE}")
        a(f"v_mul_u32_u24 v{vT}, 3072, v{vT}")
        a(f"v_and_b32 v{vBG}, 3, v{vLANE}")
        a(f"v_lshl_add_u32 v{vBG}, v{vBG}, 4, v{vT}")
        a(f"s_mul_i32 s{sQ0}, s{sW}, {128 * 3072}")
        a(f"s_lshl_b32 s{sB}, s{sC}, 6")
        a(f"s_add_u32 s{sQ0}, s{sQ0}, s{sB}")
        a(f"s_lshl_b32 s{sQ1}, s{sW}, 13")
        return self.dma_items(8, S_WQ, vBG, sQ0, 16 * 3072, sQ1, ZQ, 140)

    def swz_voff(self, dst, stride, lo, hi):
        a = self.a
        a(f"v_lshrrev_b32 v{vT}, 3, v{vLANE}")
        a(f"v_mul_u32_u24 v{vT}, {stride}, v{vT}")
        a(f"v_and_b32 v{dst}, 3, v{vLANE}")
        a(f"v_lshl_add_u32 v{vT}, v{dst}, 4, v{vT}")
        a(f"v_lshrrev_b32 v{dst}, 2, v{vLANE}")
        a(f"v_lshrrev_b32 v{vU}, 4, v{vLANE}")
        a(f"v_xor_b32 v{dst}, v{dst}, v{vU}")
        a(f"v_and_b32 v{dst}, 1, v{dst}")
        a(f"v_mul_u32_u24 v{dst}, {hi - lo}, v{dst}")
        if lo:
            a(f"v_add_u32 v{vT}, {lo}, v{vT}")
        a(f"v_add_u32 v{dst}, v{dst}, v{vT}")

    def w2_items(self):
        a = self.a
        self.swz_voff(vROW, 1024, 0, 64)
        a(f"s_lshl_b32 s{sH3}, s{sW}, 14")
        a(f"s_lshl_b32 s{sA}, s{sW}, 17")
        a(f"s_lshl_b32 s{sB}, s{sCT}, 7")
        a(f"s_add_u32 s{sH2}, s{sA}, s{sB}")
        a(f"s_sub_u32 s{sA}, s{sH2}, 16384")
        a(f"s_and_b32 s{sR0}, s{sA}, 0x7ffff")
        late = self.dma_items(2, S_WO, vROW, sR0, 8192, sH3, ZW2, 72)
        return self.dma_items(14, S_WO, vROW, sH2, 8192, sH3, ZW2 + 2048, 60), late

    def w2_read(self):
        a = self.a
        a(f"s_lshl_b32 s{sA}, s{sKH}, 15")
        a(f"s_add_u32 s{sA}, s{sA}, {ZW2 + 2048}")
        a(f"s_mul_i32 s{sB}, s{sKH}, {-32768 & 0xffffffff}")
        a(f"s_add_u32 s{sB}, s{sB}, {ZW2 + 32768}")
        a(f"v_add_u32 v{vT}, s{sA}, v{vTR0}")
        a(f"v_add_u32 v{vU}, s{sA}, v{vTR1}")
        for kb in range(16):
            if kb == 15:
                a(f"v_add_u32 v{vT}, s{sB}, v{vTR0}")
                a(f"v_add_u32 v{vU}, s{sB}, v{vTR1}")
            o = kb * 2048 if kb < 15 else 0
            for nt in range(2):
                t = self.tr(X0 + (kb * 2 + nt) * 4, (vT, vU)[nt], (o, o + 512))
        return t

    def ring_init(self):
        a = self.a
        self.ring_next, self.ring_tag = 0, {}
        a(f"s_lshl_b32 s{sW3N}, s{sW}, 11")
        a(f"s_mul_i32 s{sW3}, s{sC}, {224 * 1024}")
        a(f"s_add_u32 s{sW3}, s{sW3}, s{sW3N}")
        a(f"s_add_u32 s{sW3}, s{sW3}, {WS_W3}")

    def ring_one(self):
        a = self.a
        s, h = divmod(self.ring_next, 2)
        a(f"s_add_u32 m0, s{sW3N}, {RING_AT[s % NSLOT] + 1024 * h}")
        a(f"s_add_u32 s{sBG}, s{sW3}, {s * 8192 + 1024 * h}")
        self.ring_tag[s] = self.dma(S_WS, vL16, f"s{sBG}")
        self.ring_next += 1

    def ring_items(self, stages, gap=72):
        return [(gap, self.ring_one) for _ in range(2 * stages)]

    def w4_init(self):
        a = self.a
        self.w4_next = 0
        a(f"s_mul_i32 s{sW4}, s{sCT}, {224 * 1024}")
        a(f"s_mul_i32 s{sB}, s{sW}, {56 * 1024}")
        a(f"s_add_u32 s{sW4}, s{sW4}, s{sB}")
        a(f"s_add_u32 s{sW4}, s{sW4}, {WS_W4}")

    def w4_one(self):
        f = self.w4_next
        if f and f % 4 == 0:
            self.a(f"s_add_u32 s{sW4}, s{sW4}, 4096")
        self.load(A(4 * f, 4), S_WS, vL16, f"s{sW4}", (f % 4) * 1024, sc1=False)
        self.w4_next += 1

    def publish(self):
        a = self.a
        skip = a.label("pub")
        a(f"s_cmp_lg_u32 s{sW}, 3")
        a(f"s_cbranch_scc1 {skip}")
        a(f"s_min_u32 s{sD}, s{sXCC}, 14")
        a(f"s_add_u32 s{sD}, s{sD}, 1")
        a(f"s_and_b32 s{sA}, s2, 3")
        a(f"s_lshl_b32 s{sA}, s{sA}, 3")
        a(f"s_lshl_b32 s{sA}, s{sD}, s{sA}")
        a(f"s_and_b32 s{sB}, s2, 0xfc")
        a(f"v_mov_b32 v{vT}, s{sA}")
        a(f"v_mov_b32 v{vU}, s{sB}")
        a("s_mov_b64 exec, 1")
        a.vmop(f"buffer_atomic_or v{vT}, v{vU}, {S(S_DBG)}, 0 offen sc1", counted=False)
        a("s_mov_b64 exec, -1")
        a(f"{skip}:")

    def table_check(self, first):
        a = self.a

        def test():
            a(f"v_add_u32 v{vU}, 0x7f7f7f7f, v{vP}")
            a(f"v_and_b32 v{vU}, 0x80808080, v{vU}")
            a(f"v_cmp_ne_u32 vcc, 0x80808080, v{vU}")
        a(f"v_lshlrev_b32 v{vA0}, 2, v{vLANE}")
        self.poll(vA0, test, first=first, srd=S_DBG)
        a(f"v_mov_b32 v{vU}, 0")
        for b in range(4):
            a(f"v_bfe_u32 v{vT}, v{vP}, {8 * b}, 4")
            a(f"v_lshlrev_b32 v{vT}, v{vT}, 1")
            a(f"v_or_b32 v{vU}, v{vU}, v{vT}")
        a(f"v_or_b32_dpp v{vU}, v{vU}, v{vU} quad_perm:[1,0,3,2] row_mask:0xf bank_mask:0xf")
        a(f"v_cmp_ne_u32 vcc, 0x1fe, v{vU}")
        a("s_branch L_slow" if self.force_slow else "s_cbranch_vccnz L_slow")

    def prep_dma(self):
        a = self.a
        skip = a.label("noprep")
        a("s_cmp_ge_u32 s2, 224")
        a(f"s_cbranch_scc1 {skip}")
        a(f"v_lshrrev_b32 v{vT}, 3, v{vLANE}")
        a(f"v_and_b32 v{vU}, 7, v{vLANE}")
        a(f"v_lshlrev_b32 v{vU}, 4, v{vU}")
        a(f"v_lshl_add_u32 v{vA1}, v{vT}, 10, v{vU}")
        a(f"v_mul_u32_u24 v{vT}, 3584, v{vT}")
        a(f"v_add_u32 v{vA0}, v{vT}, v{vU}")
        a(f"s_and_b32 s{sA}, s2, 7")
        a(f"s_lshl_b32 s{sA}, s{sA}, 2")
        a(f"s_add_u32 s{sA}, s{sA}, s{sW}")
        a(f"s_mul_i32 s{sA}, s{sA}, {16 * 3584}")
        a(f"s_lshr_b32 s{sB}, s2, 3")
        a(f"s_lshl_b32 s{sB}, s{sB}, 7")
        a(f"s_add_u32 s{sA}, s{sA}, s{sB}")
        a(f"s_add_u32 s{sB}, s{sA}, {8 * 3584}")
        a(f"s_lshl_b32 s{sD}, s{sW}, 11")
        for srd, img in ((S_WG, PREP_G), (S_WU, PREP_U)):
            a(f"s_add_u32 m0, s{sD}, {img}")
            self.dma(srd, vA0, f"s{sA}", counted=False)
            a(f"s_add_u32 m0, s{sD}, {img + 1024}")
            self.dma(srd, vA0, f"s{sB}", counted=False)
        a(f"s_lshl_b32 s{sA}, s2, 2")
        a(f"s_add_u32 s{sA}, s{sA}, s{sW}")
        a(f"s_and_b32 s{sB}, s{sA}, 7")
        a(f"s_lshl_b32 s{sB}, s{sB}, 7")
        a(f"s_lshr_b32 s{sA}, s{sA}, 3")
        a(f"s_lshl_b32 s{sA}, s{sA}, 14")
        a(f"s_add_u32 s{sA}, s{sA}, s{sB}")
        a(f"s_add_u32 m0, s{sD}, {PREP_D}")
        a(f"s_add_u32 s{sB}, s{sA}, 8192")
        self.dma(S_WD, vA1, f"s{sA}", counted=False)
        a(f"s_add_u32 m0, s{sD}, {PREP_D + 1024}")
        self.dma(S_WD, vA1, f"s{sB}", counted=False)
        a(f"{skip}:")

    def prep_write(self, tmp):
        a = self.a
        on, a.on = a.on, False
        skip = a.label("noprepw")
        a("s_cmp_ge_u32 s2, 224")
        a(f"s_cbranch_scc1 {skip}")
        a(f"v_and_b32 v{vA0}, 0xffffffbf, v{vTR0}")
        a(f"s_lshl_b32 s{sA}, s{sW}, 11")
        a(f"s_add_u32 s{sA}, s{sA}, {PREP_D}")
        a(f"v_add_u32 v{vA1}, s{sA}, v{vA0}")
        a(f"v_and_b32 v{vT}, 32, v{vA0}")
        a(f"v_and_b32 v{vA0}, 0xffffffdf, v{vA0}")
        a(f"v_lshl_add_u32 v{vA0}, v{vT}, 8, v{vA0}")
        a(f"s_lshl_b32 s{sA}, s{sW}, 5")
        a(f"s_add_u32 s{sA}, s{sA}, {PREP_G}")
        a(f"v_add_u32 v{vA0}, s{sA}, v{vA0}")
        for j in range(4):
            a(f"ds_read_b64_tr_b16 {V(tmp + 4 * j, 2)}, v{vA0} offset:{j * 2048}")
            a(f"ds_read_b64_tr_b16 {V(tmp + 4 * j + 2, 2)}, v{vA0} offset:{j * 2048 + 512}")
        for j in range(2):
            a(f"ds_read_b64_tr_b16 {V(tmp + 16 + 4 * j, 2)}, v{vA1} offset:{j * 64}")
            a(f"ds_read_b64_tr_b16 {V(tmp + 18 + 4 * j, 2)}, v{vA1} offset:{j * 64 + 512}")
        a(f"s_lshr_b32 s{sA}, s2, 3")
        a(f"s_lshl_b32 s{sA}, s{sA}, 2")
        a(f"s_add_u32 s{sA}, s{sA}, s{sW}")
        a(f"s_mul_i32 s{sB}, s{sA}, 9363")
        a(f"s_lshr_b32 s{sB}, s{sB}, 16")
        a(f"s_mul_i32 s{sD}, s{sB}, 7")
        a(f"s_sub_u32 s{sD}, s{sA}, s{sD}")
        a(f"s_mul_i32 s{sB}, s{sB}, {224 * 1024}")
        a(f"s_add_u32 s{sB}, s{sB}, {WS_W3}")
        a(f"s_and_b32 s{sE}, s2, 7")
        a(f"s_mov_b32 s{sF}, 4096")
        a(f"s_cmp_ge_u32 s{sD}, 4")
        a(f"s_cselect_b32 s{sF}, 2048, s{sF}")
        a(f"s_cselect_b32 s{sG}, {124 * 1024}, 0")
        a(f"s_cmp_ge_u32 s{sD}, 6")
        a(f"s_cselect_b32 s{sF}, 1024, s{sF}")
        a(f"s_cselect_b32 s{sG}, {186 * 1024}, s{sG}")
        a(f"s_lshl_b32 s{sD}, s{sD}, 10")
        a(f"s_add_u32 s{sB}, s{sB}, s{sD}")
        a(f"s_add_u32 s{sB}, s{sB}, s{sG}")
        a(f"s_mul_i32 s{sD}, s{sE}, s{sF}")
        a(f"s_lshl_b32 s{sD}, s{sD}, 2")
        a(f"s_add_u32 s{sB}, s{sB}, s{sD}")
        self.natural_col(vU)
        acc = tmp + 24
        a(f"v_mov_b32 v{acc}, 0")
        a(f"v_mov_b32 v{acc + 1}, 0")
        a(f"s_mul_i32 s{sE}, s{sE}, 112")
        a(f"s_add_u32 s{sE}, s{sE}, s{sA}")
        a(f"s_lshl_b32 s{sE}, s{sE}, 7")
        a(f"s_add_u32 s{sE}, s{sE}, {WS_CS3}")
        a(f"s_lshl_b32 s{sA}, s2, 2")
        a(f"s_add_u32 s{sA}, s{sA}, s{sW}")
        a(f"s_and_b32 s{sD}, s{sA}, 7")
        a(f"s_mul_i32 s{sD}, s{sD}, {224 * 1024}")
        a(f"s_lshr_b32 s{sA}, s{sA}, 3")
        a(f"s_lshl_b32 s{sA}, s{sA}, 11")
        a(f"s_add_u32 s{sA}, s{sA}, s{sD}")
        a(f"s_add_u32 s{sA}, s{sA}, {WS_W4}")
        a("s_waitcnt lgkmcnt(0)")
        for j in range(4):
            self.store(V(tmp + 4 * j, 4), S_WS, vL16, f"s{sB}", sc1=True, counted=False)
            if j < 3:
                a(f"s_add_u32 s{sB}, s{sB}, s{sF}")
            for i in range(4):
                a(f"v_dot2c_f32_bf16 v{acc + (i & 1)}, s{sONES}, v{tmp + 4 * j + i}")
        for j in range(2):
            self.store(V(tmp + 16 + 4 * j, 4), S_WS, vL16, f"s{sA}", 1024 * j, sc1=True, counted=False)
        self.fold_halves(acc)
        self.store(V(acc), S_WS, vU, f"s{sE}", sc1=True, width="dword", counted=False)
        a(f"{skip}:")
        a.on = on

    def p1_start_l0(self):
        a = self.a
        first = not self.slow
        self.slot_scalars()
        if first and self.opt["prepat"] == 0:
            self.prep_dma()
        if first:
            skip = a.label("clr")
            a(f"s_cmp_lg_u32 s{sW}, 3")
            a(f"s_cbranch_scc1 {skip}")
            a(f"s_lshl_b32 s{sA}, s{sCL}, 8")
            a(f"s_lshl_b32 s{sB}, s{sC}, 2")
            a(f"s_add_u32 s{sA}, s{sA}, s{sB}")
            a(f"s_lshl_b32 s{sB}, s{sC}, 8")
            a(f"s_lshl_b32 s{sD}, s{sCL}, 2")
            a(f"s_add_u32 s{sB}, s{sB}, s{sD}")
            a(f"s_lshr_b32 s{sD}, s2, 4")
            a(f"s_and_b32 s{sF}, s2, 15")
            a(f"s_lshl_b32 s{sG}, s{sD}, 8")
            a(f"s_lshl_b32 s{sBG}, s{sF}, 2")
            a(f"s_add_u32 s{sG}, s{sG}, s{sBG}")
            a(f"s_lshl_b32 s{sF}, s{sF}, 8")
            a(f"s_lshl_b32 s{sD}, s{sD}, 2")
            a(f"s_add_u32 s{sF}, s{sF}, s{sD}")
            a(f"v_mov_b32 v{vU}, s{sB}")
            a(f"v_writelane_b32 v{vU}, s{sA}, 0")
            a(f"v_writelane_b32 v{vU}, s{sG}, 4")
            a(f"v_writelane_b32 v{vU}, s{sF}, 5")
            a(f"v_writelane_b32 v{vU}, s{sF}, 6")
            a(f"v_lshl_add_u32 v{vU}, v{vLANE}, 12, v{vU}")
            a(f"v_mov_b32 v{vT}, 0")
            a("s_mov_b64 exec, 0x77")
            for w in range(4):
                self.store(V(vT), S_WS, vU, 0, 64 * w, sc1=True, width="dword", counted=False)
            a("s_mov_b64 exec, -1")
            a(f"{skip}:")
        xa, wv = WK, WK + 10
        a(f"v_lshrrev_b32 v{vT}, 3, v{vLANE}")
        a(f"v_lshrrev_b32 v{vU}, 4, v{vLANE}")
        a(f"v_xor_b32 v{vU}, v{vU}, v{vLANE}")
        a(f"v_and_b32 v{vU}, 7, v{vU}")
        a(f"v_lshlrev_b32 v{vU}, 4, v{vU}")
        a(f"v_lshl_add_u32 v{xa}, v{vT}, 10, v{vU}")
        a(f"v_xor_b32 v{xa + 1}, 64, v{xa}")
        a(f"s_lshl_b32 s{sH0}, s{sTT}, 15")
        a(f"s_lshl_b32 s{sH1}, s{sW}, 14")
        a(f"s_add_u32 s{sH1}, s{sH1}, {XS}")
        self.swz_voff(wv, 3072, 1024, 2048)
        a(f"s_mul_i32 s{sR0}, s{sW}, {32 * 3072}")
        a(f"s_lshl_b32 s{sB}, s{sC}, 6")
        a(f"s_add_u32 s{sR0}, s{sR0}, s{sB}")
        a(f"s_lshl_b32 s{sR1}, s{sW}, 12")
        tg = {}

        def range_items(r):
            def xi(s, i):
                def f():
                    a(f"s_add_u32 m0, s{sH1}, {(s % 4) * 4096 + i * 1024}")
                    a(f"s_add_u32 s{sBG}, s{sH0}, {i * 8192 + s * 128}")
                    tg["x", s] = self.dma(S_AX, xa + (i & 1), f"s{sBG}")
                return 60, f

            def wi(i):
                def f():
                    a(f"s_add_u32 m0, s{sR1}, {r * 16384 + i * 1024}")
                    a(f"s_add_u32 s{sBG}, s{sR0}, {(128 * r + 8 * i) * 3072}")
                    tg["w", r] = self.dma(S_WQ, wv, f"s{sBG}")
                return 60, f
            return [xi(2 * r, i) for i in range(4)] + [xi(2 * r + 1, i) for i in range(4)] + [wi(i) for i in range(4)]
        a(f"s_mov_b32 m0, {PHI_IMG}")
        a(f"s_lshl_b32 s{sA}, s{sC}, 10")
        self.dma(S_PHI, vL16, f"s{sA}")
        tch = self.touch_items if first else (lambda r: [])
        a.bg = range_items(0) + tch(2) + range_items(1) + tch(3)
        a.pop(6)
        late = self.late_touch_items() if first else []
        a.on = True
        self.lane_consts()
        ra = WK + 2
        a(f"v_and_b32 v{vT}, 31, v{vLANE}")
        a(f"v_bfe_u32 v{vU}, v{vLANE}, 1, 3")
        a(f"v_lshrrev_b32 v{vP}, 5, v{vLANE}")
        a(f"v_xor_b32 v{vU}, v{vU}, v{vP}")
        a(f"v_lshlrev_b32 v{vU}, 4, v{vU}")
        a(f"v_lshl_add_u32 v{vU}, v{vT}, 7, v{vU}")
        for j in range(4):
            a(f"v_xor_b32 v{ra + j}, {32 * j}, v{vU}")
            a(f"v_add_u32 v{ra + j}, s{sH1}, v{ra + j}")
        ss, sq, ck, cv, ca = WK + 6, WK + 8, WK + 12, WK + 14, WK + 76
        for r in (ss, ss + 1, sq, sq + 1, ck, ck + 1, cv, cv + 1):
            a(f"v_mov_b32 v{r}, 0")
        a(f"v_add_u32 v{ca}, s{sR1}, v{vTR0}")
        a(f"v_add_u32 v{ca + 1}, s{sR1}, v{vTR1}")
        a.flush()
        if first and self.opt["prepat"] == 1:
            a.on = False
            self.prep_dma()
            a.on = True
        self.stamp("issued")
        accK, accV, ring, tmp = WK + 16, WK + 32, WK + 48, WK + 80
        for r in range(4):
            a.wait(vm=tg["x", 2 * r + 1])
            for s in (2 * r, 2 * r + 1):
                for j in range(4):
                    t = a.ds(f"ds_read_b128 {V(X0 + (4 * s + j) * 4, 4)}, v{ra + j} offset:{(s % 4) * 4096}")
            a.wait(lg=t)
            if r < 2:
                a.bg += range_items(r + 2)
            if r == 1:
                a.bg += late
            for x in range(X0 + 32 * r, X0 + 32 * r + 32):
                a(f"v_dot2c_f32_bf16 v{ss + (x & 1)}, s{sONES}, v{x}")
                a(f"v_dot2c_f32_bf16 v{sq + (x & 1)}, v{x}, v{x}")
            a.wait(vm=tg["w", r])
            for j in range(2):
                self.tr(tmp + 8 * j, ca, (r * 16384 + j * 2048, r * 16384 + j * 2048 + 512))
                t = self.tr(tmp + 8 * j + 4, ca + 1, (r * 16384 + j * 2048, r * 16384 + j * 2048 + 512))
            a.wait(lg=t)
            for j in range(16):
                a(f"v_dot2c_f32_bf16 v{(cv if j & 4 else ck) + (j & 1)}, s{sONES}, v{tmp + j}")
            a("s_barrier")
            if r == 3 and first and self.opt["prepat"] == 0:
                a.on = False
                self.publish()
                a.on = True
            self.stamp(f"range{r}")
            self.gemm_kv(range(8 * r, 8 * r + 8), None, accK, accV, ring)
            if r == 0:
                self.phi_operands(tmp)
            if first and r == 2 * self.opt["prepat"]:
                self.prep_write(tmp)
            if r == 1:
                a.flush()
        a.flush()
        a.on = False
        self.colsum_write(CSP, (ck, cv))
        a(f"v_add_f32 v{ss}, v{ss}, v{ss + 1}")
        a(f"v_add_f32 v{sq}, v{sq}, v{sq + 1}")
        self.finish_stats(ss, sq)
        a.drain(vm=first and self.opt["prepat"] == 1)
        a("s_barrier")
        if first and self.opt["prepat"] == 1:
            self.publish()
        self.colsum_final(CSP, 2, CS1, tmp)
        a.bg = self.w1q_items()
        self.stamp("kvgemm")
        return accK, accV

    def phi_operands(self, tmp):
        a = self.a
        a(f"v_bfe_u32 v{vT}, v{vLANE}, 2, 2")
        a(f"v_lshrrev_b32 v{vU}, 5, v{vLANE}")
        a(f"v_lshl_add_u32 v{vT}, v{vU}, 3, v{vT}")
        a(f"v_and_b32 v{vU}, 3, v{vLANE}")
        a(f"v_lshlrev_b32 v{vU}, 3, v{vU}")
        a(f"v_lshl_add_u32 v{vT}, v{vT}, 5, v{vU}")
        a(f"v_add_u32 v{vT}, {PHI_IMG}, v{vT}")
        for h in range(2):
            t = self.tr(tmp + 4 * h, vT, (512 * h, 512 * h + 128))
        a(f"v_bfe_u32 v{vU}, v{vLANE}, 4, 1")
        a(f"v_mul_u32_u24 v{vU}, 0x8000, v{vU}")
        a(f"v_lshl_or_b32 v{vU}, v{vU}, 16, v{vU}")
        a.wait(lg=t)
        for r in range(8):
            a(f"v_xor_b32 v{tmp + r}, v{vU}, v{tmp + r}")
            a(f"v_accvgpr_write_b32 a{aPHI + r}, v{tmp + r}")

    def p1_start_l1(self):
        a = self.a
        xt = {}
        later = self.stats_items(WS_ST, WK + 80, xt, vA0, 60) + self.w1q_items()
        self.rows_poll_addr()
        self.poll(vU, 5)
        self.stamp("S5")
        a.bg = self.x_items(WS_A, xt, 60) + later
        a.pop(self.opt["lead"])
        a.on = True
        self.gemm_kv(range(32), xt, WK + 16, WK + 32, WK + 48)
        while "st" not in xt or len(a.bg) > 8:
            a.pop()
        a.wait(vm=xt["st"])
        self.sum_stats(WK + 80)
        self.stamp("kvgemm")
        return WK + 16, WK + 32

    def rows_poll_addr(self):
        a = self.a
        a(f"s_lshl_b32 s{sA}, s{sCL}, 8")
        a(f"s_lshl_b32 s{sB}, s{sTH}, 6")
        a(f"s_add_u32 s{sA}, s{sA}, s{sB}")
        a(f"s_lshl_b32 s{sB}, s{sKH}, 5")
        a(f"s_add_u32 s{sA}, s{sA}, s{sB}")
        if self.slow:
            a(f"s_add_u32 s{sA}, s{sA}, {WS_ALT}")
        a(f"v_and_b32 v{vT}, 7, v{vLANE}")
        a(f"v_bfe_u32 v{vU}, v{vLANE}, 3, 1")
        a(f"v_lshlrev_b32 v{vU}, 7, v{vU}")
        a(f"v_lshl_add_u32 v{vU}, v{vT}, 2, v{vU}")
        a(f"v_add_u32 v{vU}, s{sA}, v{vU}")

    def x_items(self, base, tags, gap):
        a = self.a
        a(f"s_lshl_b32 s{sH0}, s{sTT}, 15")
        a(f"s_add_u32 s{sH0}, s{sH0}, {base}")

        def item(kb):
            def f():
                if kb and kb % 4 == 0:
                    a(f"s_add_u32 s{sH0}, s{sH0}, 4096")
                tags[kb] = self.load(V(X0 + 4 * kb, 4), S_WS, vL16, f"s{sH0}", (kb % 4) * 1024)
            return gap, f
        return [item(kb) for kb in range(32)]

    def gemm_kv(self, kbs, xt, accK, accV, ring):
        a = self.a
        tg = {}

        def rd(kb):
            r = ring + (kb % 3) * 8
            self.tr(r, vTR0, (kb * 2048, kb * 2048 + 512))
            tg[kb] = self.tr(r + 4, vTR1, (kb * 2048, kb * 2048 + 512))
        rd(kbs[0])
        rd(kbs[0] + 1)
        for kb in kbs:
            if kb + 2 <= kbs[-1]:
                rd(kb + 2)
            a.wait(vm=xt[kb] if xt is not None else None, lg=tg[kb])
            r = ring + (kb % 3) * 8
            x = V(X0 + 4 * kb, 4)
            self.mfma(V(accK, 16), V(r, 4), x, "0" if kb == 0 else None)
            self.mfma(V(accV, 16), V(r + 4, 4), x, "0" if kb == 0 else None)

    def e1_kv(self, layer, accK, accV):
        a = self.a
        a.on = True
        cs, Kb, Vb, PB, VB, tmp = WK + 48, WK + 80, WK + 88, WK + 96, WK, WK + 48
        tk = self.read_cs(0, cs)
        tv = self.read_cs(1, cs + 16)
        a.wait(lg=tk)
        self.normalize(accK, cs, Kb)
        PA = accK
        self.mfma(V(PA, 16), A(aPHI, 4), V(Kb, 4), "0")
        self.mfma(V(PB, 16), A(aPHI + 4, 4), V(Kb + 4, 4), "0")
        a.wait(lg=tv)
        self.normalize(accV, cs + 16, Vb)
        VA = accV
        self.mfma(V(VA, 16), V(Vb, 4), A(aI, 4), "0")
        self.mfma(V(VB, 16), V(Vb + 4, 4), A(aI + 4, 4), "0")
        phA, phB = tmp + 8, tmp + 16
        self.softmax_pair(PA, tmp, phA)
        VAb, VBb = Kb, Vb
        self.cvt16(VA, VAb)
        TA = VA
        self.mfma(V(TA, 16), V(phA, 4), A(aI, 4), "0")
        self.mfma(V(TA, 16), V(phA + 4, 4), A(aI + 4, 4))
        self.cvt16(VB, VBb)
        self.softmax_pair(PB, tmp, phB)
        TB = VB
        self.mfma(V(TB, 16), V(phB, 4), A(aI, 4), "0")
        self.mfma(V(TB, 16), V(phB + 4, 4), A(aI + 4, 4))
        KV = PA

        def zsum(T):
            for w in (8, 4, 2):
                for i in range(0, w, 2):
                    a(f"v_pk_add_f32 {V(T + i, 2)}, {V(T + i, 2)}, {V(T + w + i, 2)}")
            a(f"v_add_f32 v{T}, v{T}, v{T + 1}")
        self.cvt16(TA, phA)
        self.mfma(V(KV, 16), V(phA, 4), V(VAb, 4), "0")
        self.mfma(V(KV, 16), V(phA + 4, 4), V(VAb + 4, 4))
        zsum(TA)
        self.cvt16(TB, phB)
        self.mfma(V(KV, 16), V(phB, 4), V(VBb, 4))
        self.mfma(V(KV, 16), V(phB + 4, 4), V(VBb + 4, 4))
        zsum(TB)
        a.flush()
        a.on = False
        a(f"v_permlane32_swap_b32 v{TA}, v{TB}")
        a(f"v_add_f32 v{TA}, v{TA}, v{TB}")
        a(f"s_lshl_b32 s{sA}, s{sW}, 8")
        a(f"s_add_u32 s{sA}, s{sA}, {ZS + 12288}")
        a(f"v_lshl_add_u32 v{vU}, v{vLANE}, 2, s{sA}")
        a.ds(f"ds_write_b32 v{vU}, v{TA}")
        own = tmp
        self.scatter(KV, 4, own, ZS, 1024)
        a(f"s_mul_i32 s{sA}, s{sW}, 3072")
        a(f"s_add_u32 s{sA}, s{sA}, {ZS}")
        a(f"v_add_u32 v{vU}, s{sA}, v{vL16}")
        a(f"v_lshlrev_b32 v{vT}, 2, v{vLANE}")
        a(f"v_add_u32 v{vA0}, {ZS + 12288}, v{vT}")
        kvp = (WS_KVP_ALT if self.slow else WS_KVP) + layer * 256 * KVP_SZ
        a(f"s_lshl_b32 s{sA}, s{sC}, 4")
        a(f"s_add_u32 s{sA}, s{sA}, s{sCL}")
        a(f"s_mul_i32 s{sA}, s{sA}, {KVP_SZ}")
        a(f"s_add_u32 s{sA}, s{sA}, {kvp}")
        a(f"s_lshl_b32 s{sB}, s{sW}, 9")
        a(f"s_add_u32 s{sB}, s{sB}, s{sA}")
        a(f"s_lshl_b32 s{sD}, s{sC}, 8")
        a(f"s_lshl_b32 s{sE}, s{sW}, 6")
        a(f"s_add_u32 s{sD}, s{sD}, s{sE}")
        a(f"s_add_u32 s{sR1}, s{sD}, {WS_S1F + layer * 4096 + (WS_ALT if self.slow else 0)}")
        a(f"s_lshl_b32 s{sE}, s{sCL}, 2")
        a(f"s_add_u32 s{sD}, s{sR1}, s{sE}")
        a.drain(vm=False)
        a("s_barrier")
        for j in range(3):
            t = a.ds(f"ds_read_b128 {V(own + 4 + 4 * j, 4)}, v{vU} offset:{1024 * j}")
        for j in range(4):
            tz = a.ds(f"ds_read_b32 v{own + 16 + j}, v{vA0} offset:{256 * j}")
        a(f"v_lshlrev_b32 v{vU}, 3, v{vLANE}")
        a.wait(lg=t)
        for i in (0, 2):
            a(f"v_pk_add_f32 {V(own + i, 2)}, {V(own + i, 2)}, {V(own + 4 + i, 2)}")
            a(f"v_pk_add_f32 {V(own + 8 + i, 2)}, {V(own + 8 + i, 2)}, {V(own + 12 + i, 2)}")
        for i in (0, 2):
            a(f"v_pk_add_f32 {V(own + i, 2)}, {V(own + i, 2)}, {V(own + 8 + i, 2)}")
        a(f"v_cvt_pk_bf16_f32 v{own}, v{own}, v{own + 1}")
        a(f"v_cvt_pk_bf16_f32 v{own + 1}, v{own + 2}, v{own + 3}")
        self.store(V(own, 2), S_WS, vU, f"s{sB}", sc1=True, width="dwordx2")
        a.wait(lg=tz)
        skip = a.label("noz")
        a(f"s_cmp_lg_u32 s{sW}, 0")
        a(f"s_cbranch_scc1 {skip}")
        a(f"v_pk_add_f32 {V(own + 16, 2)}, {V(own + 16, 2)}, {V(own + 18, 2)}")
        a(f"v_add_f32 v{own + 16}, v{own + 16}, v{own + 17}")
        self.store(V(own + 16), S_WS, vT, f"s{sA}", 2048, sc1=True, width="dword", counted=False)
        a(f"{skip}:")
        self.stamp("e1")
        self.signal(1, sreg=sD, sc1=True)
        self.stamp("kvdrain")

    def scatter(self, src, n, own, base, piece):
        a = self.a
        for q in range(4):
            skip, done = a.label("own"), a.label("ownd")
            a(f"s_sub_u32 s{sA}, s{sW}, {q + 1}")
            a(f"s_and_b32 s{sA}, s{sA}, 3")
            a(f"s_cmp_eq_u32 s{sA}, 3")
            a(f"s_cbranch_scc1 {skip}")
            a(f"s_mul_i32 s{sA}, s{sA}, {piece}")
            a(f"s_add_u32 s{sA}, s{sA}, {base + q * 3 * piece}")
            a(f"v_add_u32 v{vU}, s{sA}, v{vL16}")
            for j in range(n // 4):
                a(f"ds_write_b128 v{vU}, {V(src + n * q + 4 * j, 4)} offset:{1024 * j}")
            a(f"s_branch {done}")
            a(f"{skip}:")
            for i in range(0, n, 2):
                a(f"v_pk_add_f32 {V(own + i, 2)}, {V(src + n * q + i, 2)}, 0")
            a(f"{done}:")

    def s1_window(self, layer):
        a = self.a
        acc, ring = WK, WK + 16
        check = layer == 0 and not self.slow
        if check:
            a(f"v_lshlrev_b32 v{vA0}, 2, v{vLANE}")
            t_tab = self.poll_issue(vA0, S_DBG)
        a.bg, w2_late = self.w2_items()
        a("s_barrier")
        a.pop(2)
        a.on = True
        if layer == 0:
            cq, tmp = WK + 96, WK + 64
            a(f"s_lshl_b32 s{sA}, s{sW}, 13")
            a(f"v_add_u32 v{vA0}, s{sA}, v{vTRQ}")
            a(f"v_mov_b32 v{cq}, 0")
            a(f"v_mov_b32 v{cq + 1}, 0")
            for j in range(8):
                t = self.tr(tmp + 4 * j, vA0, (j * 1024, j * 1024 + 256))
            a.wait(lg=t)
            for j in range(32):
                a(f"v_dot2c_f32_bf16 v{cq + (j & 1)}, s{sONES}, v{tmp + j}")
            self.colsum_write(CSPQ, (cq,))
        tg = {}

        def rd(kb):
            tg[kb] = self.tr(ring + (kb % 4) * 4, vTRQ, (kb * 1024, kb * 1024 + 256))
        for kb in range(3):
            rd(kb)
        for kb in range(32):
            if kb + 3 < 32:
                rd(kb + 3)
            a.wait(lg=tg[kb])
            self.mfma(V(acc, 16), V(ring + (kb % 4) * 4, 4), V(X0 + 4 * kb, 4), "0" if kb == 0 else None)
        a.flush()
        a.on = False
        self.ring_init()
        if layer == 0:
            self.w4_init()
        if check:
            self.table_check(t_tab)
        a.drain(vm=False)
        a("s_barrier")
        self.stamp("qgemm")
        a.bg = w2_late + self.ring_items(self.opt["pre_a"])
        if layer == 0:
            self.colsum_final(CSPQ, 1, CS1 + 256, WK + 64)
        a.on = True
        cs, Qb, PB, tmp = WK + 16, WK + 32, WK + 48, WK + 64
        t = self.read_cs(2, cs)
        a.pop(2)
        a.wait(lg=t)
        self.normalize(acc, cs, Qb)
        self.mfma(V(acc, 16), A(aPHI, 4), V(Qb, 4), "0")
        self.mfma(V(PB, 16), A(aPHI + 4, 4), V(Qb + 4, 4), "0")
        self.phq = WK + 16
        kvr, zr, ks = WK + 32, WK + 96, WK + 72
        a(f"v_and_b32 v{vU}, 15, v{vLANE}")
        a(f"v_lshl_add_u32 v{vBG}, v{vU}, 2, s{sR1}")
        a(f"v_lshrrev_b32 v{vT}, 5, v{vLANE}")
        a(f"v_mul_u32_u24 v{vT}, {KVP_SZ}, v{vT}")
        a(f"v_and_b32 v{vA0}, 31, v{vLANE}")
        a(f"v_lshl_add_u32 v{vA0}, v{vA0}, 4, v{vT}")
        a(f"v_lshrrev_b32 v{vT}, 4, v{vLANE}")
        a(f"v_mul_u32_u24 v{vT}, {KVP_SZ}, v{vT}")
        a(f"v_lshl_add_u32 v{vA1}, v{vU}, 4, v{vT}")
        kvp = (WS_KVP_ALT if self.slow else WS_KVP) + layer * 256 * KVP_SZ
        a(f"s_mul_i32 s{sD}, s{sC}, {16 * KVP_SZ}")
        a(f"s_add_u32 s{sD}, s{sD}, {kvp}")
        a(f"s_lshl_b32 s{sE}, s{sW}, 9")
        a(f"s_add_u32 s{sE}, s{sE}, s{sD}")
        self.softmax_pair(acc, tmp, self.phq)
        self.softmax_pair(PB, tmp, self.phq + 8)
        for i in range(8):
            a(f"v_mov_b32 v{ks + i}, 0")
        a.flush()
        a.on = False
        self.stamp("qdone")
        self.poll(vBG, 1)
        self.stamp("S1")
        skip = a.label("zld")
        a(f"s_cmp_lg_u32 s{sW}, 0")
        a(f"s_cbranch_scc1 {skip}")
        for i in range(4):
            self.load(V(zr + 4 * i, 4), S_WS, vA1, f"s{sD}", 2048, counted=False)
            if i < 3:
                a(f"s_add_u32 s{sD}, s{sD}, {4 * KVP_SZ}")
        a(f"{skip}:")
        kt = []
        for p in range(8):
            kt.append(self.load(V(kvr + 4 * p, 4), S_WS, vA0, f"s{sE}"))
            if p < 7:
                a(f"s_add_u32 s{sE}, s{sE}, {2 * KVP_SZ}")
        a("s_barrier")
        self.w2_read()
        skip = a.label("zsum")
        a(f"s_cmp_lg_u32 s{sW}, 0")
        a(f"s_cbranch_scc1 {skip}")
        a(f"v_bfe_u32 v{vT}, v{vLANE}, 2, 2")
        a(f"v_lshlrev_b32 v{vT}, 10, v{vT}")
        a(f"v_and_b32 v{vU}, 1, v{vLANE}")
        a(f"v_lshl_add_u32 v{vT}, v{vU}, 9, v{vT}")
        a(f"v_bfe_u32 v{vU}, v{vLANE}, 1, 1")
        a(f"v_lshl_add_u32 v{vT}, v{vU}, 3, v{vT}")
        a(f"v_add_u32 v{vT}, {ZAIMG + 256}, v{vT}")
        a(f"s_waitcnt vmcnt({a.vm - kt[0] + 1})")
        for i in (0, 2):
            a(f"v_pk_add_f32 {V(zr + i, 2)}, {V(zr + i, 2)}, {V(zr + 4 + i, 2)}")
            a(f"v_pk_add_f32 {V(zr + 8 + i, 2)}, {V(zr + 8 + i, 2)}, {V(zr + 12 + i, 2)}")
        for i in (0, 2):
            a(f"v_pk_add_f32 {V(zr + i, 2)}, {V(zr + i, 2)}, {V(zr + 8 + i, 2)}")
        for sw in ("v_permlane16_swap_b32", "v_permlane32_swap_b32"):
            for i in range(4):
                a(f"v_mov_b32 v{zr + 4 + i}, v{zr + i}")
            for i in range(4):
                a(f"{sw} v{zr + i}, v{zr + 4 + i}")
            for i in range(4):
                a(f"v_add_f32 v{zr + i}, v{zr + i}, v{zr + 4 + i}")
        a(f"v_cvt_pk_bf16_f32 v{zr}, v{zr}, v{zr + 1}")
        a(f"v_cvt_pk_bf16_f32 v{zr + 1}, v{zr + 2}, v{zr + 3}")
        a(f"ds_write_b64 v{vT}, {V(zr, 2)}")
        a(f"{skip}:")
        a(f"v_lshlrev_b32 v{vU}, 1, v{vLANE}")
        a(f"v_lshrrev_b32 v{vT}, 5, v{vLANE}")
        a(f"v_and_or_b32 v{vU}, v{vU}, 62, v{vT}")
        a(f"v_bfe_u32 v{vT}, v{vU}, 4, 1")
        a(f"v_lshlrev_b32 v{vT}, 11, v{vT}")
        a(f"v_and_b32 v{vU}, 47, v{vU}")
        a(f"v_lshl_add_u32 v{vT}, v{vU}, 4, v{vT}")
        a(f"s_lshl_b32 s{sA}, s{sKH}, 10")
        a(f"s_lshl_b32 s{sB}, s{sTH}, 3")
        a(f"s_add_u32 s{sA}, s{sA}, s{sB}")
        a(f"s_add_u32 s{sA}, s{sA}, {ZAIMG}")
        a(f"v_add_u32 v{vA0}, s{sA}, v{vT}")
        a(f"v_and_b32 v{vT}, 31, v{vLANE}")
        a(f"v_min_u32 v{vT}, 16, v{vT}")
        a(f"v_and_b32 v{vU}, 32, v{vLANE}")
        a(f"v_add_u32 v{vT}, v{vT}, v{vU}")
        a(f"v_lshlrev_b32 v{vT}, 4, v{vT}")
        a(f"v_add_u32 v{vA1}, {ZAIMG}, v{vT}")
        a(f"s_lshl_b32 s{sA}, s{sTT}, 15")
        a(f"s_lshl_b32 s{sB}, s{sC}, 11")
        a(f"s_add_u32 s{sA}, s{sA}, s{sB}")
        a(f"s_add_u32 s{sG}, s{sA}, {WS_OBUF[layer]}")
        for p in range(8):
            a.wait(vm=kt[p])
            for i in range(4):
                a(f"v_dot2c_f32_bf16 v{ks + 2 * i}, s{sLO}, v{kvr + 4 * p + i}")
                a(f"v_dot2c_f32_bf16 v{ks + 2 * i + 1}, s{sHI}, v{kvr + 4 * p + i}")
        for i in range(4):
            a(f"v_permlane32_swap_b32 v{ks + i}, v{ks + 4 + i}")
        for i in (0, 2):
            a(f"v_pk_add_f32 {V(ks + i, 2)}, {V(ks + i, 2)}, {V(ks + 4 + i, 2)}")
        a(f"v_cvt_pk_bf16_f32 v{ks}, v{ks}, v{ks + 1}")
        a(f"v_cvt_pk_bf16_f32 v{ks + 1}, v{ks + 2}, v{ks + 3}")
        a.ds(f"ds_write_b64 v{vA0}, {V(ks, 2)}")
        a.drain(vm=False)
        a("s_barrier")
        self.stamp("kvsum")
        op, O = WK + 32, WK + 48
        for j in range(4):
            t = a.ds(f"ds_read_b128 {V(op + 4 * j, 4)}, v{vA1} offset:{1024 * j}")
        a.wait(lg=t)
        for h in range(2):
            self.mfma(V(O + 16 * h, 16), V(op + 8 * h, 4), V(self.phq + 8 * h, 4), "0")
            self.mfma(V(O + 16 * h, 16), V(op + 8 * h + 4, 4), V(self.phq + 8 * h + 4, 4))
        for h in range(2):
            o = O + 16 * h
            a(f"v_add_f32 v{o + 8}, 0x358637bd, v{o + 8}")
            a(f"v_rcp_f32 v{o + 8}, v{o + 8}")
            for i in range(0, 8, 2):
                a(f"v_pk_mul_f32 {V(o + i, 2)}, {V(o + i, 2)}, {V(o + 8, 2)} op_sel_hi:[1,0]")
            for i in range(4):
                a(f"v_cvt_pk_bf16_f32 v{o + 12 + i}, v{o + 2 * i}, v{o + 2 * i + 1}")
            self.store(V(o + 12, 4), S_WS, vL16, f"s{sG}", 1024 * h, sc1="first" if layer == 0 else None)
        self.signal(1 + 5 * layer)
        for _ in range(2 * self.opt["pre_b"]):
            self.ring_one()
        self.stamp("o")

    def res_addr(self):
        a = self.a
        a(f"s_lshl_b32 s{sE}, s{sCL}, 2")
        a(f"s_lshl_b32 s{sA}, s{sTH2}, 1")
        a(f"s_add_u32 s{sE}, s{sE}, s{sA}")
        a(f"s_add_u32 s{sE}, s{sE}, s{sTH}")
        a(f"s_lshl_b32 s{sF}, s{sE}, 12")
        a(f"s_lshl_b32 s{sA}, s{sCT}, 9")
        a(f"s_add_u32 s{sF}, s{sF}, s{sA}")
        a(f"s_lshl_b32 s{sA}, s{sKH}, 3")
        a(f"s_add_u32 s{sF}, s{sF}, s{sA}")
        a(f"s_lshl_b32 s{sE}, s{sE}, 15")
        a(f"s_lshl_b32 s{sA}, s{sCT}, 7")
        a(f"s_lshl_b32 s{sB}, s{sKH}, 6")
        a(f"s_add_u32 s{sA}, s{sA}, s{sB}")
        a(f"s_add_u32 s{sD}, s{sE}, s{sA}")
        a(f"s_lshl_b32 s{sA}, s{sA}, 5")
        a(f"s_add_u32 s{sE}, s{sE}, s{sA}")
        a(f"v_and_b32 v{vT}, 31, v{vLANE}")
        a(f"v_lshrrev_b32 v{vU}, 5, v{vLANE}")
        a(f"v_lshlrev_b32 v{vROW}, 10, v{vT}")
        a(f"v_lshl_add_u32 v{vROW}, v{vU}, 4, v{vROW}")
        a(f"v_lshlrev_b32 v{vT}, 4, v{vT}")
        a(f"v_lshl_add_u32 v{vBG}, v{vU}, 2, v{vT}")

    def res_load(self, dst, src):
        a = self.a
        if src is None:
            for j in range(2):
                t = self.load(V(dst + 4 * j, 4), S_AX, vROW, f"s{sD}", 32 * j, sc1=False)
        else:
            a(f"s_add_u32 s{sBG}, s{sE}, {src}")
            for j in range(2):
                t = self.load(V(dst + 4 * j, 4), S_WS, vL16, f"s{sBG}", 1024 * j)
        return t

    def res_finish(self, acc, res, dst, flag, sc1=None):
        a = self.a
        for i in range(8):
            a(f"v_dot2c_f32_bf16 v{acc + 2 * i}, s{sLO}, v{res + i}")
            a(f"v_dot2c_f32_bf16 v{acc + 2 * i + 1}, s{sHI}, v{res + i}")
        self.cvt16(acc, res)
        if dst is None:
            for j in range(2):
                self.store(V(res + 4 * j, 4), S_OUT, vROW, f"s{sD}", 32 * j, sc1=False)
            return
        a(f"s_add_u32 s{sA}, s{sE}, {dst}")
        for j in range(2):
            self.store(V(res + 4 * j, 4), S_WS, vL16, f"s{sA}", 1024 * j, sc1=sc1)
        a(f"v_mov_b32 v{acc}, 0")
        a(f"v_mov_b32 v{acc + 1}, 0")
        for i in range(8):
            a(f"v_dot2c_f32_bf16 v{acc}, s{sONES}, v{res + i}")
            a(f"v_dot2c_f32_bf16 v{acc + 1}, v{res + i}, v{res + i}")
        a(f"s_add_u32 s{sA}, s{sF}, {WS_ST}")
        a(f"v_permlane32_swap_b32 v{acc}, v{acc + 1}")
        a(f"v_add_f32 v{acc}, v{acc}, v{acc + 1}")
        self.store(V(acc), S_WS, vBG, f"s{sA}", width="dword", sc1=sc1)
        self.signal(flag)

    def p2(self, layer):
        a = self.a
        of, acc, res = WK, WK + 64, WK + 96
        self.res_addr()
        tr = self.res_load(res, None if layer == 0 else WS_A)
        a(f"s_lshl_b32 s{sA}, s{sTH2}, 1")
        a(f"s_add_u32 s{sA}, s{sA}, s{sTH}")
        a(f"s_lshl_b32 s{sG}, s{sCL}, 2")
        a(f"s_add_u32 s{sG}, s{sG}, s{sA}")
        a(f"s_lshl_b32 s{sA}, s{sG}, 6")
        a(f"s_lshl_b32 s{sB}, s{sKH}, 5")
        a(f"s_add_u32 s{sA}, s{sA}, s{sB}")
        if self.slow:
            a(f"s_add_u32 s{sA}, s{sA}, {WS_ALT}")
        a(f"v_and_b32 v{vU}, 7, v{vLANE}")
        a(f"v_lshl_add_u32 v{vU}, v{vU}, 2, s{sA}")
        a(f"s_lshl_b32 s{sG}, s{sG}, 15")
        a(f"s_lshl_b32 s{sB}, s{sKH}, 14")
        a(f"s_add_u32 s{sG}, s{sG}, s{sB}")
        a(f"s_add_u32 s{sH0}, s{sG}, {WS_OBUF[layer]}")
        a(f"s_xor_b32 s{sA}, s{sW}, 2")
        a(f"s_lshl_b32 s{sA}, s{sA}, 12")
        a(f"s_add_u32 s{sA}, s{sA}, {P2S}")
        a(f"v_add_u32 v{vA0}, s{sA}, v{vL16}")
        a(f"s_lshl_b32 s{sA}, s{sW}, 12")
        a(f"s_add_u32 s{sA}, s{sA}, {P2S}")
        a(f"v_add_u32 v{vA1}, s{sA}, v{vL16}")
        self.poll(vU, 1 + 5 * layer)
        self.stamp("S2")
        ot = {}

        def item(kb):
            def f():
                if kb and kb % 4 == 0:
                    a(f"s_add_u32 s{sH0}, s{sH0}, 4096")
                ot[kb] = self.load(V(of + 4 * kb, 4), S_WS, vL16, f"s{sH0}", (kb % 4) * 1024)
            return 60, f
        a.bg = [item(kb) for kb in range(16)] + self.ring_items(self.opt["pre_c"], 60)
        a.pop(self.opt["lead"])
        a.on = True
        for kb in range(16):
            a.wait(vm=ot[kb])
            for nt in range(2):
                self.mfma(V(acc + 16 * nt, 16), V(X0 + (kb * 2 + nt) * 4, 4), V(of + 4 * kb, 4), "0" if kb == 0 else None)
        a.flush()
        a.on = False
        self.stamp("p2gemm")
        hi, done = a.label("khi"), a.label("kd")
        a(f"s_cmp_lg_u32 s{sKH}, 0")
        a(f"s_cbranch_scc1 {hi}")
        for q in range(4):
            a(f"ds_write_b128 v{vA0}, {V(acc + 16 + 4 * q, 4)} offset:{1024 * q}")
        a(f"s_branch {done}")
        a(f"{hi}:")
        for q in range(4):
            a(f"ds_write_b128 v{vA0}, {V(acc + 4 * q, 4)} offset:{1024 * q}")
        for i in range(0, 16, 2):
            a(f"v_pk_add_f32 {V(acc + i, 2)}, {V(acc + 16 + i, 2)}, 0")
        a(f"{done}:")
        a.drain(vm=False)
        a("s_barrier")
        for q in range(4):
            t = a.ds(f"ds_read_b128 {V(acc + 16 + 4 * q, 4)}, v{vA1} offset:{1024 * q}")
        a.wait(vm=tr, lg=t)
        for i in range(0, 16, 2):
            a(f"v_pk_add_f32 {V(acc + i, 2)}, {V(acc + i, 2)}, {V(acc + 16 + i, 2)}")
        self.res_finish(acc, res, WS_XMID[layer], 2 + 5 * layer, sc1="first" if layer == 0 else None)
        self.stamp("x1")

    def p3(self, layer):
        a = self.a
        BAR = self.opt["bar"]
        if layer == 0:
            skip = a.label("cs3")
            a(f"s_cmp_lg_u32 s{sW}, 0")
            a(f"s_cbranch_scc1 {skip}")
            a(f"s_mul_i32 s{sA}, s{sC}, 896")
            a(f"s_add_u32 s{sA}, s{sA}, {WS_CS3}")
            for k in range(8):
                self.load(V(WK + 4 * k, 4), S_WS, vL16, f"s{sA}", counted=False)
                a(f"s_add_u32 s{sA}, s{sA}, {112 * 128}")
            a("s_waitcnt vmcnt(0)")
            for w in (16, 8, 4):
                for i in range(0, w, 2):
                    a(f"v_pk_add_f32 {V(WK + i, 2)}, {V(WK + i, 2)}, {V(WK + w + i, 2)}")
            a(f"v_add_u32 v{vT}, {CS3}, v{vL16}")
            a("s_mov_b32 exec_hi, 0x00ffffff")
            a(f"ds_write_b128 v{vT}, {V(WK, 4)}")
            a("s_mov_b64 exec, -1")
            a("s_waitcnt lgkmcnt(0)")
            a(f"{skip}:")
        accs = [WK, WK + 16, WK + 32, WK + 48, WK + 64, WK + 80, WK]
        tmp = WK + 96
        xt = {}
        st_items = self.stats_items(WS_ST, tmp, xt, vBG, 0)
        x_items = self.x_items(WS_XMID[layer], xt, 0)
        a(f"v_add_u32 v{vA0}, {ZB}, v{vL16}")
        a(f"v_add_u32 v{vA1}, {ZB + 65536}, v{vL16}")
        a(f"s_mul_i32 s{sH1}, s{sTT}, {112 * 1024}")
        a(f"s_mul_i32 s{sA}, s{sC}, {7 * 1024}")
        a(f"s_add_u32 s{sH1}, s{sH1}, s{sA}")
        a(f"s_add_u32 s{sH1}, s{sH1}, {WS_H}")
        self.rows_poll_addr()
        seq = [(g, kb) for kb in range(32) for g in range(4)] + [(g, kb) for kb in range(32) for g in (4, 5)] + \
              [(6, kb) for kb in range(32)]
        rt = {}
        self.free_upto = -1

        def rd(f):
            s = f // 8
            if f % BAR == 0:
                last = s + BAR // 8 - 1
                while self.ring_next < 2 * last + 2:
                    self.ring_one()
                a.wait(vm=self.ring_tag[last])
                a("s_barrier")
                self.free_upto = s - 2
            off = RING_AT[s % NSLOT] - ZB + (f % 8) * 1024
            addr, off = (vA0, off) if off < 65536 else (vA1, off - 65536)
            rt[f] = a.ds(f"ds_read_b128 {A(aRING + (f % 4) * 4, 4)}, v{addr} offset:{off}")
        for f in range(4):
            rd(f)
        self.poll(vU, 2 + 5 * layer)
        self.stamp("S3")
        for _ in range(self.opt["lead3"]):
            x_items.pop(0)[1]()
        x_items += st_items

        def cs_reads(g, hh):
            c = tmp + 8 * hh
            return [("ds", f"ds_read_b128 {V(c, 4)}, v{vCS} offset:{512 + g * 128 + 16 * hh}", (g, hh)),
                    ("ds", f"ds_read_b128 {V(c + 4, 4)}, v{vCS} offset:{512 + g * 128 + 64 + 16 * hh}", (g, hh))]

        def epi(gs, nxt):
            l = []
            halves = [(g, hh) for g in gs for hh in range(2)]
            for n, (g, hh) in enumerate(halves):
                acc, c = accs[g], tmp + 8 * hh
                l.append(("wait", None, (g, hh)))
                for i in range(4):
                    l.append(("v", f"v_fmac_f32 v{acc + 4 * hh + i}, v{vNMU}, v{c + i}", None))
                    l.append(("v", f"v_fmac_f32 v{acc + 8 + 4 * hh + i}, v{vNMU}, v{c + 4 + i}", None))
                follow = halves[n + 2] if n + 2 < len(halves) else (nxt, hh) if nxt is not None else None
                if follow:
                    l += cs_reads(*follow)
                for i in range(4):
                    l.append(("v", f"v_mul_f32 v{acc + 8 + 4 * hh + i}, v{vRHO}, v{acc + 8 + 4 * hh + i}", None))
                for i in range(4):
                    l.append(("v", f"v_mul_f32 v{acc + 4 * hh + i}, v{acc + 4 * hh + i}, v{acc + 8 + 4 * hh + i}", None))
                if hh == 1:
                    for i in range(4):
                        l.append(("v", f"v_cvt_pk_bf16_f32 v{acc + 8 + i}, v{acc + 2 * i}, v{acc + 2 * i + 1}", None))
                    l.append(("st", g, None))
            return l
        cs_tag, h_tag = {}, {}

        def run(item):
            k, x, key = item
            if k == "ds":
                cs_tag[key] = a.ds(x)
            elif k == "wait":
                a.wait(lg=cs_tag[key])
            elif k == "v":
                a(x)
            elif k == "st":
                if x == 4:
                    a(f"s_add_u32 s{sH1}, s{sH1}, 4096")
                h_tag[x] = self.store(V(accs[x] + 8, 4), S_WS, vL16, f"s{sH1}", (x % 4) * 1024,
                                      sc1="first" if layer == 0 else None)
            elif k == "call":
                x()
        tp = {}

        def sig_a():
            a(f"v_mov_b32 v{vT}, {3 + 5 * layer}")
            a(f"v_mov_b32 v{vROW}, s{sFLAG}")
            a.wait(vm=h_tag[3])
            a("s_mov_b64 exec, 1")
            self.store(V(vT), S_WS, vROW, 0, width="dword")
            a("s_mov_b64 exec, -1")
        pend = []
        for f, (g, kb) in enumerate(seq):
            if f == 108:
                pend += [("v", l, None) for l in a.capture(self.p4_setup)]
            if f == 124:
                pend += cs_reads(0, 0) + cs_reads(0, 1)
            if f == 130:
                assert not pend
                pend = epi((0, 1, 2, 3), 4)
            if f == 194:
                assert not pend
                pend = epi((4, 5), 6)
                pend.insert(12, ("call", sig_a, None))
            if f in (16, 48, 96, 128, 192):
                self.stamp(f"p3f{f}")
            a.wait(vm=xt[kb] if g == 0 else None, lg=rt[f])
            self.mfma(V(accs[g], 16), A(aRING + (f % 4) * 4, 4), V(X0 + 4 * kb, 4), "0" if kb == 0 else None)
            if f + 4 < 224:
                rd(f + 4)
            ring_ok = self.ring_next < 56 and self.ring_next // 2 - NSLOT <= self.free_upto
            ring_due = self.ring_next // 2 * 8 - f < 40
            if f % 2 == 0:
                if x_items and not (ring_ok and ring_due and f < 72 and (36 - len(x_items)) * 4 - f > 24):
                    x_items.pop(0)[1]()
                elif ring_ok:
                    self.ring_one()
                elif layer == 0 and self.w4_next < 56:
                    self.w4_one()
            if f == 96:
                assert not x_items
                a.wait(vm=xt["st"])
                pend = [("v", l, None) for l in a.capture(lambda: self.sum_stats(tmp, packed=False))]
                pend.append(("v", f"v_mul_f32 v{vRHO}, v{vRHO}, v{vRHO}", None))
            if f == 216:
                tp["a"] = self.poll_issue(vU)
            for _ in range(3):
                if pend:
                    run(pend.pop(0))
        assert not pend, len(pend)
        while layer == 0 and self.w4_next < 56:
            self.w4_one()
        self.stamp("p3gemm")
        a("s_barrier")
        for it in epi((6,), None):
            run(it)
        self.p4(layer, tp["a"], h_tag[6])

    def p4_setup(self):
        a = self.a
        self.res_addr()
        a(f"s_lshl_b32 s{sA}, s{sCL}, 8")
        a(f"s_lshl_b32 s{sB}, s{sTH2}, 7")
        a(f"s_add_u32 s{sA}, s{sA}, s{sB}")
        a(f"s_lshl_b32 s{sB}, s{sW}, 4")
        a(f"s_add_u32 s{sA}, s{sA}, s{sB}")
        if self.slow:
            a(f"s_add_u32 s{sA}, s{sA}, {WS_ALT}")
        a(f"v_and_b32 v{vT}, 3, v{vLANE}")
        a(f"v_bfe_u32 v{vU}, v{vLANE}, 2, 1")
        a(f"v_lshlrev_b32 v{vU}, 6, v{vU}")
        a(f"v_lshl_add_u32 v{vU}, v{vT}, 2, v{vU}")
        a(f"v_add_u32 v{vU}, s{sA}, v{vU}")
        a(f"s_lshl_b32 s{sA}, s{sCL}, 2")
        a(f"s_lshl_b32 s{sB}, s{sTH2}, 1")
        a(f"s_add_u32 s{sA}, s{sA}, s{sB}")
        a(f"s_mul_i32 s{sH2}, s{sA}, {112 * 1024}")
        a(f"s_mul_i32 s{sB}, s{sW}, {28 * 1024}")
        a(f"s_add_u32 s{sH2}, s{sH2}, s{sB}")
        a(f"s_add_u32 s{sH2}, s{sH2}, {WS_H}")
        a(f"s_add_u32 s{sH3}, s{sH2}, {112 * 1024}")

    def p4(self, layer, t_poll_a, t_last_h):
        a = self.a
        acc, res = X0, WK + 96
        slots = [X0 + 64 + 8 * i for i in range(8)] + [WK + 16 + 8 * i for i in range(10)]
        NH = len(slots)
        order = [7 * p + g for g in range(4) for p in range(4)] + [7 * p + g for g in (4, 5, 6) for p in range(4)]
        ht = {}

        def ld(n):
            i, th = divmod(n, 2)
            a(f"s_add_u32 s{sA}, s{sH2 + th}, {order[i] * 1024}")
            ht[n] = self.load(V(slots[i % NH] + 4 * th, 4), S_WS, vL16, f"s{sA}")
        self.poll(vU, 3 + 5 * layer, first=t_poll_a)
        for n in range(4):
            ld(n)
        self.signal(4 + 5 * layer, after=t_last_h)
        self.stamp("h")
        lead = 2 * self.opt["lead4"]
        for n in range(4, lead):
            ld(n)
        nl, tp, tr = lead, None, None
        for i in range(28):
            for th in range(2):
                a.wait(vm=ht[2 * i + th])
                for nt in range(2):
                    self.mfma(V(acc + 16 * (2 * nt + th), 16), A((order[i] * 2 + nt) * 4, 4),
                              V(slots[i % NH] + 4 * th, 4), "0" if i == 0 else None)
                    if nt == 0:
                        if nl == 24:
                            tp = self.poll_issue(vU)
                        if nl == 32:
                            self.poll(vU, 4 + 5 * layer, first=tp)
                        if nl < 56:
                            ld(nl)
                            nl += 1
                        elif tr is None:
                            tr = self.res_load(res, WS_XMID[layer])
        self.stamp("p4gemm")
        if layer == 1:
            a(f"v_and_b32 v{vT}, 31, v{vLANE}")
            a(f"v_lshrrev_b32 v{vU}, 5, v{vLANE}")
            a(f"v_lshlrev_b32 v{vROW}, 10, v{vT}")
            a(f"v_lshl_add_u32 v{vROW}, v{vU}, 4, v{vROW}")
        own = WK
        self.scatter(acc, 16, own, P4S, 4096)
        a(f"s_mul_i32 s{sA}, s{sW}, 12288")
        a(f"s_add_u32 s{sA}, s{sA}, {P4S}")
        a(f"v_add_u32 v{vA0}, s{sA}, v{vL16}")
        a.drain(vm=False)
        a("s_barrier")
        ts = []
        for j in range(12):
            ts.append(a.ds(f"ds_read_b128 {V(acc + 4 * j, 4)}, v{vA0} offset:{1024 * j}"))
        for s in range(3):
            a.wait(lg=ts[4 * s + 3])
            for i in range(0, 16, 2):
                a(f"v_pk_add_f32 {V(own + i, 2)}, {V(own + i, 2)}, {V(acc + 16 * s + i, 2)}")
        a.wait(vm=tr)
        if layer == 0:
            self.res_finish(own, res, WS_A, 5)
            a("s_barrier")
        else:
            self.res_finish(own, res, None, None)
        self.stamp("x2")

    def body(self):
        for layer in range(self.opt["layers"]):
            acc = self.p1_start_l0() if layer == 0 else self.p1_start_l1()
            self.e1_kv(layer, *acc)
            self.s1_window(layer)
            self.p2(layer)
            self.p3(layer)

    def build(self):
        a = self.a
        self.slow = False
        self.prologue()
        self.stamp("start")
        if self.diag:
            a("s_memrealtime s[6:7]")
        self.body()
        if self.diag:
            a("s_memrealtime s[8:9]")
            a.drain(vm=False)
            a(f"v_writelane_b32 v{vDIAG}, s6, 61")
            a(f"v_writelane_b32 v{vDIAG}, s8, 62")
            a(f"v_writelane_b32 v{vDIAG}, s{sTO}, 63")
            a(f"s_lshl_b32 s{sA}, s{sCL}, 4")
            a(f"s_add_u32 s{sA}, s{sA}, s{sC}")
            a(f"s_lshl_b32 s{sA}, s{sA}, 2")
            a(f"s_add_u32 s{sA}, s{sA}, s{sW}")
            a(f"s_lshl_b32 s{sA}, s{sA}, 8")
            a(f"s_add_u32 s{sA}, s{sA}, {WS_SIZE - 0x40000}")
            a(f"v_lshlrev_b32 v{vT}, 2, v{vLANE}")
            self.store(V(vDIAG), S_WS, vT, f"s{sA}", width="dword")
        a("L_end:")
        a("s_endpgm")
        self.slow = True
        a("L_slow:")
        a.drain()
        a("s_barrier")
        a(f"s_lshr_b32 s{sCL}, s2, 4")
        a(f"s_and_b32 s{sC}, s2, 15")
        self.body()
        a("s_endpgm")
        lines, n = fix_hazards(a.lines)
        head = HEADER.format(lds=LDS_SIZE, name=NAME)
        return head + "\n".join(lines) + "\n" + TAIL.format(name=NAME), n

HEADER = """; Two interleaved (Hedgehog linear attention, bilinear GLU) blocks in one persistent launch: 256 workgroups, one per CU.
; Work split: 16 clusters of 16 workgroups, one cluster per 128 token rows.  Phases per layer:
;   P1 k,v,q = LN(x) Wqkv (2 heads per workgroup), feature maps, partial phi_k^T [v 1]  -> exchange over the 16 clusters
; LayerNorm is applied after the product: LN(x) W = rstd * (x W - mean * colsum(W)).
; Hand-offs inside a cluster: when the table in d_debug (every workgroup publishes the XCD it really runs on) shows that each
; cluster sits on one XCD, they stay in that XCD's L2 (plain stores, L1-bypassing loads); under any other placement every
; workgroup jumps to L_slow, a copy that writes all hand-offs through to memory.  Hand-offs between clusters always write through.
; @launch grid=(256,1,1) block=(256,1,1) lds={lds}
.amdgcn_target "amdgcn-amd-amdhsa--gfx950"
.text
.globl {name}_kernel
.p2align 8
.type {name}_kernel,@function
{name}_kernel:
"""
TAIL = """.section .rodata,"a"
.p2align 6
.amdhsa_kernel {name}_kernel
  .amdhsa_next_free_vgpr 512
  .amdhsa_next_free_sgpr 102
  .amdhsa_accum_offset 256
  .amdhsa_group_segment_fixed_size 0
  .amdhsa_kernarg_size 88
  .amdhsa_user_sgpr_count 2
  .amdhsa_user_sgpr_kernarg_segment_ptr 1
  .amdhsa_system_sgpr_workgroup_id_x 1
.end_amdhsa_kernel
"""

if __name__ == "__main__":
    out = sys.argv[1]
    flags = sys.argv[2:]
    opt = {f.split("=")[0]: int(f.split("=")[1]) for f in flags if "=" in f}
    g = Gen(diag="diag" in flags, force_slow="slow" in flags, opt=opt)
    text, n = g.build()
    open(out, "w").write(text)
    if g.diag:
        open(out + ".stamps", "w").write("\n".join(g.stamps))
    print(f"{out}: {len(text)} bytes, {text.count(chr(10))} lines, {n} hazard nops")
```

```python
import sys
from asmlib import Asm, fix_hazards

NAME = "interleave_layers__linear_kernel_hedgehog__glu_gated_bilinear__prompt"

WS_FLAG = 0x0
WS_S1F = 0x1000
WS_ALT = 0x4000
WS_CS3 = 0x20000
WS_ST = 0x40000
WS_KVP = 0x100000
WS_KVP_ALT = 0x240000
KVP_SZ = 2304
WS_A = 0x400000
WS_B = 0x600000
WS_OBUF = (WS_A, WS_B)
WS_XMID = (WS_B, WS_A)
WS_H = 0xA00000
WS_W3 = 0x1200000
WS_W4 = 0x1600000
WS_SIZE = 0x1800000

W1KV = 0
PERS = 65536
CS1 = PERS
CS3 = PERS + 512
ZB = PERS + 2048
ZQ = ZB
ZW2 = ZB + 30720
ZS = ZB + 32768
ZAIMG = ZB + 24576
XS = ZB
PREP_G = ZB + 65536
PREP_U = PREP_G + 8192
PREP_D = PREP_U + 8192
PHI_IMG = ZB + 90112
CSP = PHI_IMG + 1024
CSPQ = PERS + 1408
NSLOT = 11
RING_AT = [ZB + 8192 * i for i in (0, 1, 2, 4, 5, 6, 7, 8, 9, 10, 3)]
P2S = ZB + 73728
P4S = ZB
LDS_SIZE = 163840

sTM = 4
S_AX, S_WQ, S_WS, S_DBG, S_PHI, S_WO, S_WG, S_WU, S_WD, S_OUT = 28, 32, 36, 40, 44, 48, 52, 56, 60, 64
sW, sCL, sC, sTT, sCT, sTH2, sKH, sTH = 68, 69, 70, 71, 72, 73, 74, 75
sXCC = 76
sA, sB, sD, sE, sF, sG = 77, 78, 79, 80, 81, 82
sFLAG = 83
sLOG2E = 84
sONES, sLO, sHI = 86, 87, 88
sH0, sH1, sH2, sH3 = 89, 90, 92, 93
sTO = 91
sBG = 94
sQ0, sQ1, sR0, sR1, sW3, sW3N, sW4 = 95, 96, 97, 98, 99, 100, 101

vLANE, vL16, vTR0, vTR1, vTRQ, vBG, vP, vT = 0, 1, 2, 3, 4, 5, 6, 7
vNMU, vRHO = 8, 9
vCS, vU, vA0, vA1, vROW, vDIAG = 10, 11, 12, 13, 14, 15
X0 = 16
WK = 144
aI, aPHI, aRING = 224, 232, 240


def V(a, n=1):
    return f"v{a}" if n == 1 else f"v[{a}:{a + n - 1}]"


def A(a, n=1):
    return f"a{a}" if n == 1 else f"a[{a}:{a + n - 1}]"


def S(a, n=4):
    return f"s[{a}:{a + n - 1}]"


class PacedAsm(Asm):
    def __init__(self):
        super().__init__()
        self.bg, self.on, self.acc, self.busy = [], False, 0, False

    def __call__(self, text):
        super().__call__(text)
        if self.on and not self.busy and text.startswith("v_"):
            mn = text.split()[0]
            self.acc += 32 if "mfma" in mn else 8 if mn[2:5] in ("exp", "rcp", "rsq", "per") else 4
            if self.bg and self.acc >= self.bg[0][0]:
                self.pop()

    def pop(self, n=1):
        for _ in range(n):
            if self.bg:
                self.busy = True
                self.bg.pop(0)[1]()
                self.busy = False
                self.acc = 0

    def flush(self):
        self.pop(len(self.bg))

    def capture(self, fn):
        n, on = len(self.lines), self.on
        self.on = False
        fn()
        self.on = on
        got = self.lines[n:]
        del self.lines[n:]
        return got


class Gen:
    def __init__(self, diag=False, force_slow=False, opt=None):
        self.a = PacedAsm()
        self.diag, self.force_slow = diag, force_slow
        self.nstamp, self.stamps = 0, []
        self.opt = dict(pre_a=3, pre_c0=5, prepw=3, pre_c=3, layers=2, bar=16, lead=10, lead3=8, lead4=8, prepat=0, wt0=1, amp=0, amp2=0, ampc=0, stf=0)
        self.opt.update(opt or {})

    def stamp(self, name):
        if not self.diag or self.slow:
            return
        a = self.a
        on, a.on = a.on, False
        a(f"s_memtime s[{sTM}:{sTM + 1}]")
        a.drain(vm=False)
        a(f"v_writelane_b32 v{vDIAG}, s{sTM}, {self.nstamp}")
        a.on = on
        self.stamps.append(name)
        self.nstamp += 1

    def mfma(self, d, x, y, c=None):
        self.a(f"v_mfma_f32_32x32x16_bf16 {d}, {x}, {y}, {c if c is not None else d}")

    def dma(self, srd, voff, soff, imm=0, counted=True):
        o = f" offset:{imm}" if imm else ""
        return self.a.vmop(f"buffer_load_dwordx4 v{voff}, {S(srd)}, {soff} offen{o} lds", counted)

    def load(self, dst, srd, voff, soff, imm=0, sc1=True, counted=True):
        o = f" offset:{imm}" if imm else ""
        return self.a.vmop(f"buffer_load_dwordx4 {dst}, v{voff}, {S(srd)}, {soff} offen{o}{' sc1' if sc1 else ''}", counted)

    def store(self, src, srd, voff, soff, imm=0, sc1=None, width="dwordx4", counted=True):
        if sc1 is None:
            sc1 = self.slow
        if sc1 == "first":
            sc1 = self.slow or bool(self.opt["wt0"])
        o = f" offset:{imm}" if imm else ""
        fl = " sc1" if sc1 else ""
        if not sc1 and width == "dwordx4":
            fl = ("", " nt", " sc1", " sc0")[self.opt["stf"]]
        return self.a.vmop(f"buffer_store_{width} {src}, v{voff}, {S(srd)}, {soff} offen{o}{fl}", counted)

    def dma_items(self, n, srd, voff, src, src_step, lds, lds0, gap, tags=None, key=None):
        a = self.a

        def item(i):
            def f():
                a(f"s_add_u32 m0, s{lds}, {lds0 + i * 1024}")
                a(f"s_add_u32 s{sBG}, s{src}, {i * src_step}")
                t = self.dma(srd, voff, f"s{sBG}")
                if tags is not None:
                    tags[key] = t
            return gap, f
        return [item(i) for i in range(n)]

    def tr(self, dst, addr, off):
        self.a.ds(f"ds_read_b64_tr_b16 {V(dst, 2)}, v{addr} offset:{off[0]}")
        return self.a.ds(f"ds_read_b64_tr_b16 {V(dst + 2, 2)}, v{addr} offset:{off[1]}")

    def flag_store(self, value, sreg=sFLAG, sc1=None):
        a = self.a
        a("s_mov_b64 exec, 1")
        self.store(V(vT), S_WS, vA1, 0, sc1=sc1, width="dword")
        a("s_mov_b64 exec, -1")

    def signal(self, value, sreg=sFLAG, sc1=None, after=None):
        a = self.a
        a(f"v_mov_b32 v{vT}, {value}")
        a(f"v_mov_b32 v{vA1}, s{sreg}")
        if after is None:
            a.drain(lg=False)
        else:
            a.wait(vm=after)
        self.flag_store(value, sreg, sc1)

    def spin(self, lp, done):
        a = self.a
        a(f"s_cbranch_vccz {done}")
        a(f"s_add_u32 s{sTO}, s{sTO}, 1")
        a(f"s_bitcmp0_b32 s{sTO}, 20")
        a(f"s_cbranch_scc1 {lp}")
        a(f"{done}:")

    def poll_issue(self, addr, srd=S_WS):
        return self.a.vmop(f"buffer_load_dword v{vP}, v{addr}, {S(srd)}, 0 offen sc1")

    def poll(self, addr, test, first=None, srd=S_WS):
        a = self.a
        on, a.on = a.on, False
        if not callable(test):
            value = test
            test = lambda: a(f"v_cmp_gt_u32 vcc, {value}, v{vP}")
        lp, done = a.label("poll"), a.label("go")
        if first is not None:
            a.wait(vm=first)
            test()
            a(f"s_cbranch_vccz {done}")
        a(f"{lp}:")
        a.vmop(f"buffer_load_dword v{vP}, v{addr}, {S(srd)}, 0 offen sc1", counted=first is None)
        if first is None:
            a.drain(lg=False)
        else:
            a("s_waitcnt vmcnt(0)")
        test()
        self.spin(lp, done)
        a.on = on

    def half_reduce2(self, x, y, op):
        a = self.a
        a(f"v_permlane32_swap_b32 v{x}, v{y}")
        a(f"{op} v{x}, v{x}, v{y}")
        a(f"v_mov_b32 v{y}, v{x}")
        a(f"v_permlane32_swap_b32 v{x}, v{y}")

    def finish_stats(self, s, q):
        a = self.a
        self.half_reduce2(s, q, "v_add_f32")
        a(f"v_mul_f32 v{vNMU}, {-1.0 / 512}, v{s}")
        a(f"v_mul_f32 v{q}, {1.0 / 512}, v{q}")
        a(f"v_fma_f32 v{q}, -v{vNMU}, v{vNMU}, v{q}")
        a(f"v_max_f32 v{q}, 0, v{q}")
        a(f"v_add_f32 v{q}, 0x3727c5ac, v{q}")
        a(f"v_rsq_f32 v{vRHO}, v{q}")

    def stats_items(self, base, dst, tags, voff, gap):
        a = self.a
        a(f"s_lshl_b32 s{sR0}, s{sTT}, 12")
        a(f"s_add_u32 s{sR0}, s{sR0}, {base}")
        a(f"v_and_b32 v{vT}, 31, v{vLANE}")
        a(f"v_lshlrev_b32 v{vT}, 4, v{vT}")
        a(f"v_lshrrev_b32 v{voff}, 5, v{vLANE}")
        a(f"v_lshl_add_u32 v{voff}, v{voff}, 11, v{vT}")

        def item(i):
            def f():
                tags["st"] = self.load(V(dst + 4 * i, 4), S_WS, voff, f"s{sR0}", 512 * i)
            return gap, f
        return [item(i) for i in range(4)]

    def sum_stats(self, src, packed=True):
        a = self.a
        for w in (8, 4, 2):
            for i in range(0, w, 2):
                if packed:
                    a(f"v_pk_add_f32 {V(src + i, 2)}, {V(src + i, 2)}, {V(src + w + i, 2)}")
                else:
                    a(f"v_add_f32 v{src + i}, v{src + i}, v{src + w + i}")
                    a(f"v_add_f32 v{src + i + 1}, v{src + i + 1}, v{src + w + i + 1}")
        self.finish_stats(src, src + 1)

    def normalize(self, acc, cs, dst):
        a = self.a
        for i in range(0, 16, 2):
            a(f"v_pk_fma_f32 {V(acc + i, 2)}, {V(cs + i, 2)}, {V(vNMU, 2)}, {V(acc + i, 2)} op_sel_hi:[1,0,1]")
        for i in range(0, 16, 2):
            a(f"v_pk_mul_f32 {V(acc + i, 2)}, {V(acc + i, 2)}, {V(vNMU, 2)} op_sel:[0,1] op_sel_hi:[1,1]")
        self.cvt16(acc, dst)

    def cvt16(self, src, dst):
        for i in range(8):
            self.a(f"v_cvt_pk_bf16_f32 v{dst + i}, v{src + 2 * i}, v{src + 2 * i + 1}")

    def read_cs(self, tile, dst):
        for j, o in enumerate((0, 16, 64, 80)):
            t = self.a.ds(f"ds_read_b128 {V(dst + 4 * j, 4)}, v{vCS} offset:{tile * 128 + o}")
        return t

    def softmax_pair(self, p, tmp, dst):
        a = self.a
        m0, m1 = tmp, tmp + 2
        for g, m in ((p, m0), (p + 8, m1)):
            a(f"v_max3_f32 v{m}, v{g}, v{g + 1}, v{g + 2}")
            a(f"v_max3_f32 v{m + 1}, v{g + 3}, v{g + 4}, v{g + 5}")
            a(f"v_max3_f32 v{m}, v{g + 6}, v{g + 7}, v{m}")
            a(f"v_max_f32 v{m}, v{m}, v{m + 1}")
        self.half_reduce2(m0, m1, "v_max_f32")
        for m in (m0, m1):
            a(f"v_mul_f32 v{m}, 0xbfb8aa3b, v{m}")
        for g, m in ((p, m0), (p + 8, m1)):
            for i in range(0, 8, 2):
                a(f"v_pk_fma_f32 {V(g + i, 2)}, {V(g + i, 2)}, {S(sLOG2E, 2)}, {V(m, 2)} op_sel_hi:[1,1,0]")
        for i in range(16):
            a(f"v_exp_f32 v{p + i}, v{p + i}")
        for g, m in ((p, m0), (p + 8, m1)):
            a(f"v_pk_add_f32 {V(m, 2)}, {V(g, 2)}, {V(g + 2, 2)}")
            a(f"v_pk_add_f32 {V(tmp + 4, 2)}, {V(g + 4, 2)}, {V(g + 6, 2)}")
            a(f"v_pk_add_f32 {V(m, 2)}, {V(m, 2)}, {V(tmp + 4, 2)}")
            a(f"v_add_f32 v{m}, v{m}, v{m + 1}")
        self.half_reduce2(m0, m1, "v_add_f32")
        a(f"v_rcp_f32 v{m0}, v{m0}")
        a(f"v_rcp_f32 v{m1}, v{m1}")
        for g, m in ((p, m0), (p + 8, m1)):
            for i in range(0, 8, 2):
                a(f"v_pk_mul_f32 {V(g + i, 2)}, {V(g + i, 2)}, {V(m, 2)} op_sel_hi:[1,0]")
        self.cvt16(p, dst)

    def natural_col(self, dst):
        a = self.a
        a(f"v_and_b32 v{vT}, 19, v{vLANE}")
        a(f"v_bfe_u32 v{dst}, v{vLANE}, 2, 1")
        a(f"v_lshl_add_u32 v{vT}, v{dst}, 3, v{vT}")
        a(f"v_bfe_u32 v{dst}, v{vLANE}, 3, 1")
        a(f"v_lshl_add_u32 v{vT}, v{dst}, 2, v{vT}")
        a(f"v_lshlrev_b32 v{dst}, 2, v{vT}")

    def fold_halves(self, acc):
        a = self.a
        a(f"v_add_f32 v{acc}, v{acc}, v{acc + 1}")
        a(f"v_mov_b32 v{acc + 1}, v{acc}")
        a(f"v_permlane32_swap_b32 v{acc}, v{acc + 1}")
        a(f"v_add_f32 v{acc}, v{acc}, v{acc + 1}")

    def colsum_write(self, base, accs):
        a = self.a
        self.natural_col(vU)
        a(f"s_mul_i32 s{sA}, s{sW}, {128 * len(accs)}")
        a(f"s_add_u32 s{sA}, s{sA}, {base}")
        a(f"v_add_u32 v{vU}, s{sA}, v{vU}")
        for tile, acc in enumerate(accs):
            self.fold_halves(acc)
            a.ds(f"ds_write_b32 v{vU}, v{acc} offset:{tile * 128}")

    def colsum_final(self, base, ntile, dst, tmp):
        a = self.a
        a(f"v_lshlrev_b32 v{vT}, 2, v{vLANE}")
        if ntile == 1:
            a(f"v_and_b32 v{vT}, 127, v{vT}")
        a(f"v_add_u32 v{vU}, {base}, v{vT}")
        for w in range(4):
            t = a.ds(f"ds_read_b32 v{tmp + w}, v{vU} offset:{128 * ntile * w}")
        a(f"v_add_u32 v{vU}, {dst}, v{vT}")
        a.wait(lg=t)
        a(f"v_add_f32 v{tmp}, v{tmp}, v{tmp + 1}")
        a(f"v_add_f32 v{tmp + 2}, v{tmp + 2}, v{tmp + 3}")
        a(f"v_add_f32 v{tmp}, v{tmp}, v{tmp + 2}")
        return a.ds(f"ds_write_b32 v{vU}, v{tmp}")

    def prologue(self):
        a = self.a
        if self.opt["amp2"] == 2:
            a("s_memrealtime s[12:13]")
        a("s_cmp_ge_u32 s2, 256")
        a("s_cbranch_scc1 L_end")
        a("s_getpc_b64 s[4:5]")
        for srd, off in ((S_AX, 0), (S_WQ, 8), (S_WS, 80), (S_WG, 40), (S_WU, 48), (S_WD, 56), (S_DBG, 72), (S_PHI, 16),
                         (S_WO, 24), (S_OUT, 64)):
            a(f"s_load_dwordx2 s[{srd}:{srd + 1}], s[0:1], {off}")
        a(f"v_lshrrev_b32 v{vU}, 6, v0")
        a(f"v_and_b32 v{vT}, 3, v0")
        a(f"v_lshl_add_u32 v{vT}, v{vU}, 2, v{vT}")
        a(f"s_lshr_b32 s{sG}, s2, 3")
        a(f"s_lshl_b32 s{sA}, s{sG}, 11")
        a(f"v_lshl_add_u32 v{vT}, v{vT}, 7, s{sA}")
        a.vmop(f"global_load_dword v255, v{vT}, s[4:5]")
        a(f"v_readfirstlane_b32 s{sW}, v{vU}")
        a(f"s_getreg_b32 s{sXCC}, hwreg(HW_REG_XCC_ID, 0, 4)")
        a(f"v_and_b32 v{vLANE}, 63, v0")
        a(f"v_lshlrev_b32 v{vL16}, 4, v{vLANE}")
        for srd, size in ((S_AX, 2 << 20), (S_WQ, 512 * 1536 * 2), (S_WS, WS_SIZE), (S_WG, 512 * 1792 * 2),
                          (S_WU, 512 * 1792 * 2), (S_WD, 1792 * 512 * 2), (S_DBG, 256), (S_PHI, 16384),
                          (S_WO, 512 * 512 * 2), (S_OUT, 2 << 20)):
            a(f"s_mov_b32 s{srd + 2}, {size}")
            a(f"s_mov_b32 s{srd + 3}, 0x20000")
        if self.diag:
            a(f"v_mov_b32 v{vDIAG}, 0")
        a(f"s_mov_b32 s{sTO}, 0")
        a(f"s_and_b32 s{sD}, s{sXCC}, 7")
        a(f"s_lshl_b32 s{sCL}, s{sD}, 1")
        a(f"s_lshr_b32 s{sA}, s2, 7")
        a(f"s_add_u32 s{sCL}, s{sCL}, s{sA}")
        a(f"s_bfe_u32 s{sC}, s2, 0x40003")
        a(f"s_lshl_b32 s{sE}, s{sG}, 2")
        a(f"s_add_u32 s{sE}, s{sE}, s{sW}")
        a(f"s_lshl_b32 s{sA}, s{sD}, 18")
        a(f"s_lshl_b32 s{sB}, s{sE}, 11")
        a(f"s_add_u32 s{sH2}, s{sA}, s{sB}")
        a(f"s_mul_i32 s{sH3}, s{sE}, 3072")
        a(f"v_and_b32 v{vT}, 1, v{vLANE}")
        a(f"v_bfe_u32 v{vU}, v{vLANE}, 1, 1")
        a(f"v_lshlrev_b32 v{vT}, 7, v{vT}")
        a(f"v_lshl_add_u32 v250, v{vU}, 10, v{vT}")
        a(f"v_and_b32 v{vT}, 15, v{vLANE}")
        a(f"v_lshlrev_b32 v251, 7, v{vT}")
        a("s_waitcnt lgkmcnt(0)")
        self.clear_flags()
        self.t_clear = a.vm
        for r in range(2):
            for _, f in self.touch_items(r):
                f()

    def clear_flags(self):
        a = self.a
        skip = a.label("clr")
        a(f"s_cmp_lg_u32 s{sW}, 3")
        a(f"s_cbranch_scc1 {skip}")
        a(f"s_lshl_b32 s{sA}, s{sCL}, 8")
        a(f"s_lshl_b32 s{sB}, s{sC}, 2")
        a(f"s_add_u32 s{sA}, s{sA}, s{sB}")
        a(f"s_lshl_b32 s{sB}, s{sC}, 8")
        a(f"s_lshl_b32 s{sD}, s{sCL}, 2")
        a(f"s_add_u32 s{sB}, s{sB}, s{sD}")
        a(f"s_lshr_b32 s{sD}, s2, 4")
        a(f"s_and_b32 s{sF}, s2, 15")
        a(f"s_lshl_b32 s{sG}, s{sD}, 8")
        a(f"s_lshl_b32 s{sBG}, s{sF}, 2")
        a(f"s_add_u32 s{sG}, s{sG}, s{sBG}")
        a(f"s_lshl_b32 s{sF}, s{sF}, 8")
        a(f"s_lshl_b32 s{sD}, s{sD}, 2")
        a(f"s_add_u32 s{sF}, s{sF}, s{sD}")
        a(f"v_mov_b32 v{vU}, s{sB}")
        a(f"v_writelane_b32 v{vU}, s{sA}, 0")
        a(f"v_writelane_b32 v{vU}, s{sG}, 4")
        a(f"v_writelane_b32 v{vU}, s{sF}, 5")
        a(f"v_writelane_b32 v{vU}, s{sF}, 6")
        a(f"v_lshl_add_u32 v{vU}, v{vLANE}, 12, v{vU}")
        a(f"v_mov_b32 v{vT}, 0")
        a("s_mov_b64 exec, 0x77")
        for w in range(4):
            self.store(V(vT), S_WS, vU, 0, 64 * w, sc1=True, width="dword", counted=False)
        a("s_mov_b64 exec, -1")
        a(f"{skip}:")

    def touch_items(self, r):
        a = self.a

        def w():
            a(f"s_add_u32 s{sBG}, s{sH3}, {128 * r * 3072 + 1024}")
            a.vmop(f"buffer_load_dword v253, v251, {S(S_WQ)}, s{sBG} offen")
        return [(40, w), (40, lambda: a.vmop(f"buffer_load_dword v254, v250, {S(S_AX)}, s{sH2} offen offset:{256 * r}"))]

    def late_touch_items(self):
        a = self.a
        a(f"s_mul_i32 s{sQ0}, s{sE}, {4 * 3072}")
        a(f"s_lshl_b32 s{sQ1}, s{sE}, 12")
        a(f"v_and_b32 v{vT}, 7, v{vLANE}")
        a(f"v_lshlrev_b32 v{vT}, 7, v{vT}")
        a(f"v_bfe_u32 v{vU}, v{vLANE}, 3, 2")
        a(f"v_lshl_add_u32 v{vROW}, v{vU}, 10, v{vT}")
        a(f"v_mul_u32_u24 v{vU}, 3072, v{vU}")
        a(f"v_add_u32 v{vBG}, v{vU}, v{vT}")
        return [(72, lambda: a.vmop(f"buffer_load_dword v{vP}, v{vBG}, {S(S_WQ)}, s{sQ0} offen")),
                (72, lambda: a.vmop(f"buffer_load_dword v{vP}, v{vROW}, {S(S_WO)}, s{sQ1} offen"))]

    def slot_scalars(self):
        a = self.a
        a(f"s_lshl_b32 s{sTT}, s{sCL}, 2")
        a(f"s_add_u32 s{sTT}, s{sTT}, s{sW}")
        a(f"s_and_b32 s{sCT}, s{sC}, 7")
        a(f"s_lshr_b32 s{sTH2}, s{sC}, 3")
        a(f"s_lshr_b32 s{sKH}, s{sW}, 1")
        a(f"s_and_b32 s{sTH}, s{sW}, 1")

    def lane_consts(self):
        a = self.a
        a(f"v_bfe_u32 v{vT}, v{vLANE}, 2, 2")
        a(f"v_lshrrev_b32 v{vU}, 5, v{vLANE}")
        a(f"v_lshl_add_u32 v{vA0}, v{vU}, 3, v{vT}")
        a(f"v_and_b32 v{vA1}, 1, v{vLANE}")
        a(f"v_lshlrev_b32 v{vA1}, 4, v{vA1}")
        a(f"v_bfe_u32 v{vP}, v{vLANE}, 1, 1")
        a(f"v_lshl_add_u32 v{vA1}, v{vP}, 3, v{vA1}")
        a(f"v_bfe_u32 v{vP}, v{vLANE}, 4, 1")
        a(f"v_lshl_add_u32 v{vA1}, v{vP}, 5, v{vA1}")
        a(f"v_lshl_add_u32 v{vTRQ}, v{vA0}, 6, v{vA1}")
        a(f"v_add_u32 v{vTRQ}, {ZQ}, v{vTRQ}")
        a(f"v_lshl_add_u32 v{vTR0}, v{vA0}, 7, v{vA1}")
        a(f"v_lshrrev_b32 v{vT}, 1, v{vT}")
        a(f"v_lshl_add_u32 v{vTR0}, v{vT}, 6, v{vTR0}")
        a(f"v_xor_b32 v{vTR1}, 64, v{vTR0}")
        a(f"v_lshlrev_b32 v{vCS}, 5, v{vU}")
        a(f"v_add_u32 v{vCS}, {PERS}, v{vCS}")
        a(f"s_lshl_b32 s{sA}, s{sTT}, 6")
        a(f"s_lshl_b32 s{sB}, s{sC}, 2")
        a(f"s_add_u32 s{sFLAG}, s{sA}, s{sB}")
        if self.slow:
            a(f"s_add_u32 s{sFLAG}, s{sFLAG}, {WS_ALT}")
        a(f"s_mov_b32 s{sLOG2E}, 0x3fb8aa3b")
        a(f"s_mov_b32 s{sLOG2E + 1}, 0x3fb8aa3b")
        a(f"s_mov_b32 s{sONES}, 0x3f803f80")
        a(f"s_mov_b32 s{sLO}, 0x3f80")
        a(f"s_mov_b32 s{sHI}, 0x3f800000")
        a(f"v_bfe_u32 v{vT}, v{vLANE}, 2, 1")
        a(f"v_cmp_eq_u32 vcc, v{vT}, v{vU}")
        a(f"v_and_b32 v{vT}, 1, v{vLANE}")
        a(f"v_lshlrev_b32 v{vT}, 4, v{vT}")
        a(f"v_mov_b32 v{vA0}, 0x3f80")
        a(f"v_lshlrev_b32 v{vA0}, v{vT}, v{vA0}")
        a(f"v_cndmask_b32 v{vA0}, 0, v{vA0}, vcc")
        a(f"v_bfe_u32 v{vT}, v{vLANE}, 1, 1")
        a(f"v_bfe_u32 v{vA1}, v{vLANE}, 3, 2")
        a(f"v_lshl_add_u32 v{vT}, v{vA1}, 1, v{vT}")
        for r in range(8):
            a(f"v_cmp_eq_u32 vcc, {r}, v{vT}")
            a(f"v_cndmask_b32 v{vA1}, 0, v{vA0}, vcc")
            a(f"v_accvgpr_write_b32 a{aI + r}, v{vA1}")

    def w1q_items(self):
        a = self.a
        a(f"v_lshrrev_b32 v{vT}, 2, v{vLANE}")
        a(f"v_mul_u32_u24 v{vT}, 3072, v{vT}")
        a(f"v_and_b32 v{vBG}, 3, v{vLANE}")
        a(f"v_lshl_add_u32 v{vBG}, v{vBG}, 4, v{vT}")
        a(f"s_mul_i32 s{sQ0}, s{sW}, {128 * 3072}")
        a(f"s_lshl_b32 s{sB}, s{sC}, 6")
        a(f"s_add_u32 s{sQ0}, s{sQ0}, s{sB}")
        a(f"s_lshl_b32 s{sQ1}, s{sW}, 13")
        return self.dma_items(8, S_WQ, vBG, sQ0, 16 * 3072, sQ1, ZQ, 140)

    def swz_voff(self, dst, stride, lo, hi):
        a = self.a
        a(f"v_lshrrev_b32 v{vT}, 3, v{vLANE}")
        a(f"v_mul_u32_u24 v{vT}, {stride}, v{vT}")
        a(f"v_and_b32 v{dst}, 3, v{vLANE}")
        a(f"v_lshl_add_u32 v{vT}, v{dst}, 4, v{vT}")
        a(f"v_lshrrev_b32 v{dst}, 2, v{vLANE}")
        a(f"v_lshrrev_b32 v{vU}, 4, v{vLANE}")
        a(f"v_xor_b32 v{dst}, v{dst}, v{vU}")
        a(f"v_and_b32 v{dst}, 1, v{dst}")
        a(f"v_mul_u32_u24 v{dst}, {hi - lo}, v{dst}")
        if lo:
            a(f"v_add_u32 v{vT}, {lo}, v{vT}")
        a(f"v_add_u32 v{dst}, v{dst}, v{vT}")

    def w2_items(self):
        a = self.a
        self.swz_voff(vROW, 1024, 0, 64)
        a(f"s_lshl_b32 s{sH3}, s{sW}, 14")
        a(f"s_lshl_b32 s{sA}, s{sW}, 17")
        a(f"s_lshl_b32 s{sB}, s{sCT}, 7")
        a(f"s_add_u32 s{sH2}, s{sA}, s{sB}")
        a(f"s_sub_u32 s{sA}, s{sH2}, 16384")
        a(f"s_and_b32 s{sR0}, s{sA}, 0x7ffff")
        late = self.dma_items(2, S_WO, vROW, sR0, 8192, sH3, ZW2, 72)
        return self.dma_items(14, S_WO, vROW, sH2, 8192, sH3, ZW2 + 2048, 60), late

    def w2_read(self):
        a = self.a
        a(f"s_lshl_b32 s{sA}, s{sKH}, 15")
        a(f"s_add_u32 s{sA}, s{sA}, {ZW2 + 2048}")
        a(f"s_mul_i32 s{sB}, s{sKH}, {-32768 & 0xffffffff}")
        a(f"s_add_u32 s{sB}, s{sB}, {ZW2 + 32768}")
        a(f"v_add_u32 v{vT}, s{sA}, v{vTR0}")
        a(f"v_add_u32 v{vU}, s{sA}, v{vTR1}")
        for kb in range(16):
            if kb == 15:
                a(f"v_add_u32 v{vT}, s{sB}, v{vTR0}")
                a(f"v_add_u32 v{vU}, s{sB}, v{vTR1}")
            o = kb * 2048 if kb < 15 else 0
            for nt in range(2):
                t = self.tr(X0 + (kb * 2 + nt) * 4, (vT, vU)[nt], (o, o + 512))
        return t

    def ring_init(self):
        a = self.a
        self.ring_next, self.ring_tag = 0, {}
        a(f"s_lshl_b32 s{sW3N}, s{sW}, 11")
        a(f"s_mul_i32 s{sW3}, s{sC}, {224 * 1024}")
        a(f"s_add_u32 s{sW3}, s{sW3}, s{sW3N}")
        a(f"s_add_u32 s{sW3}, s{sW3}, {WS_W3}")

    def ring_one(self):
        a = self.a
        s, h = divmod(self.ring_next, 2)
        a(f"s_add_u32 m0, s{sW3N}, {RING_AT[s % NSLOT] + 1024 * h}")
        a(f"s_add_u32 s{sBG}, s{sW3}, {s * 8192 + 1024 * h}")
        self.ring_tag[s] = self.dma(S_WS, vL16, f"s{sBG}")
        self.ring_next += 1

    def ring_items(self, stages, gap=72):
        return [(gap, self.ring_one) for _ in range(2 * stages)]

    def w4_init(self):
        a = self.a
        self.w4_next = 0
        a(f"s_mul_i32 s{sW4}, s{sCT}, {224 * 1024}")
        a(f"s_mul_i32 s{sB}, s{sW}, {56 * 1024}")
        a(f"s_add_u32 s{sW4}, s{sW4}, s{sB}")
        a(f"s_add_u32 s{sW4}, s{sW4}, {WS_W4}")

    def w4_one(self):
        f = self.w4_next
        if f and f % 4 == 0:
            self.a(f"s_add_u32 s{sW4}, s{sW4}, 4096")
        self.load(A(4 * f, 4), S_WS, vL16, f"s{sW4}", (f % 4) * 1024, sc1=False)
        self.w4_next += 1

    def publish(self):
        a = self.a
        skip = a.label("pub")
        a(f"s_cmp_lg_u32 s{sW}, 3")
        a(f"s_cbranch_scc1 {skip}")
        a(f"s_min_u32 s{sD}, s{sXCC}, 14")
        a(f"s_add_u32 s{sD}, s{sD}, 1")
        a(f"s_and_b32 s{sA}, s2, 3")
        a(f"s_lshl_b32 s{sA}, s{sA}, 3")
        a(f"s_lshl_b32 s{sA}, s{sD}, s{sA}")
        a(f"s_and_b32 s{sB}, s2, 0xfc")
        a(f"v_mov_b32 v{vT}, s{sA}")
        a(f"v_mov_b32 v{vU}, s{sB}")
        a("s_mov_b64 exec, 1")
        a.vmop(f"buffer_atomic_or v{vT}, v{vU}, {S(S_DBG)}, 0 offen sc1", counted=False)
        a("s_mov_b64 exec, -1")
        a(f"{skip}:")

    def table_check(self, first):
        a = self.a

        def test():
            a(f"v_add_u32 v{vU}, 0x7f7f7f7f, v{vP}")
            a(f"v_and_b32 v{vU}, 0x80808080, v{vU}")
            a(f"v_cmp_ne_u32 vcc, 0x80808080, v{vU}")
        a(f"v_lshlrev_b32 v{vA0}, 2, v{vLANE}")
        self.poll(vA0, test, first=first, srd=S_DBG)
        a(f"v_mov_b32 v{vU}, 0")
        for b in range(4):
            a(f"v_bfe_u32 v{vT}, v{vP}, {8 * b}, 4")
            a(f"v_lshlrev_b32 v{vT}, v{vT}, 1")
            a(f"v_or_b32 v{vU}, v{vU}, v{vT}")
        a(f"v_or_b32_dpp v{vU}, v{vU}, v{vU} quad_perm:[1,0,3,2] row_mask:0xf bank_mask:0xf")
        a(f"v_cmp_ne_u32 vcc, 0x1fe, v{vU}")
        a("s_branch L_slow" if self.force_slow else "s_cbranch_vccnz L_slow")

    def prep_items(self):
        a = self.a
        va, vb = WK + 78, WK + 79
        a(f"v_lshrrev_b32 v{vT}, 3, v{vLANE}")
        a(f"v_and_b32 v{vU}, 7, v{vLANE}")
        a(f"v_lshlrev_b32 v{vU}, 4, v{vU}")
        a(f"v_lshl_add_u32 v{vb}, v{vT}, 10, v{vU}")
        a(f"v_mul_u32_u24 v{vT}, 3584, v{vT}")
        a(f"v_add_u32 v{va}, v{vT}, v{vU}")
        a(f"s_min_u32 s{sF}, s2, 223")
        a(f"s_and_b32 s{sA}, s{sF}, 7")
        a(f"s_lshl_b32 s{sA}, s{sA}, 2")
        a(f"s_add_u32 s{sA}, s{sA}, s{sW}")
        a(f"s_mul_i32 s{sA}, s{sA}, {16 * 3584}")
        a(f"s_lshr_b32 s{sB}, s{sF}, 3")
        a(f"s_lshl_b32 s{sB}, s{sB}, 7")
        a(f"s_add_u32 s{sW3}, s{sA}, s{sB}")
        a(f"s_lshl_b32 s{sW3N}, s{sW}, 11")
        a(f"s_lshl_b32 s{sA}, s{sF}, 2")
        a(f"s_add_u32 s{sA}, s{sA}, s{sW}")
        a(f"s_and_b32 s{sB}, s{sA}, 7")
        a(f"s_lshl_b32 s{sB}, s{sB}, 7")
        a(f"s_lshr_b32 s{sA}, s{sA}, 3")
        a(f"s_lshl_b32 s{sA}, s{sA}, 14")
        a(f"s_add_u32 s{sW4}, s{sA}, s{sB}")
        return [self.dma_items(2, S_WG, va, sW3, 8 * 3584, sW3N, PREP_G, 60),
                self.dma_items(2, S_WU, va, sW3, 8 * 3584, sW3N, PREP_U, 60),
                self.dma_items(2, S_WD, vb, sW4, 8192, sW3N, PREP_D, 60)]

    def prep_setup(self):
        a = self.a
        va, vb, vc = WK + 72, WK + 73, WK + 74
        a(f"v_and_b32 v{va}, 0xffffffbf, v{vTR0}")
        a(f"s_lshl_b32 s{sA}, s{sW}, 11")
        a(f"s_add_u32 s{sA}, s{sA}, {PREP_D}")
        a(f"v_add_u32 v{vb}, s{sA}, v{va}")
        a(f"v_and_b32 v{vT}, 32, v{va}")
        a(f"v_and_b32 v{va}, 0xffffffdf, v{va}")
        a(f"v_lshl_add_u32 v{va}, v{vT}, 8, v{va}")
        a(f"s_lshl_b32 s{sA}, s{sW}, 5")
        a(f"s_add_u32 s{sA}, s{sA}, {PREP_G}")
        a(f"v_add_u32 v{va}, s{sA}, v{va}")
        self.natural_col(vc)
        a(f"s_lshr_b32 s{sA}, s2, 3")
        a(f"s_lshl_b32 s{sA}, s{sA}, 2")
        a(f"s_add_u32 s{sA}, s{sA}, s{sW}")
        a(f"s_mul_i32 s{sB}, s{sA}, 9363")
        a(f"s_lshr_b32 s{sB}, s{sB}, 16")
        a(f"s_mul_i32 s{sD}, s{sB}, 7")
        a(f"s_sub_u32 s{sD}, s{sA}, s{sD}")
        a(f"s_mul_i32 s{sB}, s{sB}, {224 * 1024}")
        a(f"s_add_u32 s{sB}, s{sB}, {WS_W3}")
        a(f"s_and_b32 s{sF}, s2, 7")
        a("s_mov_b32 s11, 4096")
        a(f"s_cmp_ge_u32 s{sD}, 4")
        a("s_cselect_b32 s11, 2048, s11")
        a(f"s_cselect_b32 s{sG}, {124 * 1024}, 0")
        a(f"s_cmp_ge_u32 s{sD}, 6")
        a("s_cselect_b32 s11, 1024, s11")
        a(f"s_cselect_b32 s{sG}, {186 * 1024}, s{sG}")
        a(f"s_lshl_b32 s{sD}, s{sD}, 10")
        a(f"s_add_u32 s{sB}, s{sB}, s{sD}")
        a(f"s_add_u32 s{sB}, s{sB}, s{sG}")
        a(f"s_mul_i32 s{sD}, s{sF}, s11")
        a(f"s_lshl_b32 s{sD}, s{sD}, 2")
        a(f"s_add_u32 s10, s{sB}, s{sD}")
        a(f"s_mul_i32 s{sF}, s{sF}, 112")
        a(f"s_add_u32 s{sF}, s{sF}, s{sA}")
        a(f"s_lshl_b32 s{sF}, s{sF}, 7")
        a(f"s_add_u32 s12, s{sF}, {WS_CS3}")
        a(f"s_lshl_b32 s{sA}, s2, 2")
        a(f"s_add_u32 s{sA}, s{sA}, s{sW}")
        a(f"s_and_b32 s{sD}, s{sA}, 7")
        a(f"s_mul_i32 s{sD}, s{sD}, {224 * 1024}")
        a(f"s_lshr_b32 s{sA}, s{sA}, 3")
        a(f"s_lshl_b32 s{sA}, s{sA}, 11")
        a(f"s_add_u32 s{sA}, s{sA}, s{sD}")
        a(f"s_add_u32 s13, s{sA}, {WS_W4}")

    def prep_write(self, tmp):
        a = self.a
        va, vb, vc = WK + 72, WK + 73, WK + 74
        on, a.on = a.on, False
        skip = a.label("noprepw")
        a("s_cmp_ge_u32 s2, 224")
        a(f"s_cbranch_scc1 {skip}")
        for j in range(4):
            a(f"ds_read_b64_tr_b16 {V(tmp + 4 * j, 2)}, v{va} offset:{j * 2048}")
            a(f"ds_read_b64_tr_b16 {V(tmp + 4 * j + 2, 2)}, v{va} offset:{j * 2048 + 512}")
        for j in range(2):
            a(f"ds_read_b64_tr_b16 {V(tmp + 16 + 4 * j, 2)}, v{vb} offset:{j * 64}")
            a(f"ds_read_b64_tr_b16 {V(tmp + 18 + 4 * j, 2)}, v{vb} offset:{j * 64 + 512}")
        acc = tmp + 24
        a(f"v_mov_b32 v{acc}, 0")
        a(f"v_mov_b32 v{acc + 1}, 0")
        a("s_waitcnt lgkmcnt(0)")
        for j in range(4):
            self.store(V(tmp + 4 * j, 4), S_WS, vL16, "s10", sc1=True, counted=False)
            if j < 3:
                a("s_add_u32 s10, s10, s11")
            for i in range(4):
                a(f"v_dot2c_f32_bf16 v{acc + (i & 1)}, s{sONES}, v{tmp + 4 * j + i}")
        for j in range(2):
            self.store(V(tmp + 16 + 4 * j, 4), S_WS, vL16, "s13", 1024 * j, sc1=True, counted=False)
        self.fold_halves(acc)
        self.store(V(acc), S_WS, vc, "s12", sc1=True, width="dword", counted=False)
        a(f"{skip}:")
        a.on = on

    def p1_start_l0(self):
        a = self.a
        first = not self.slow
        self.slot_scalars()
        xa, wv = WK, WK + 10
        a(f"v_lshrrev_b32 v{vT}, 3, v{vLANE}")
        a(f"v_lshrrev_b32 v{vU}, 4, v{vLANE}")
        a(f"v_xor_b32 v{vU}, v{vU}, v{vLANE}")
        a(f"v_and_b32 v{vU}, 7, v{vU}")
        a(f"v_lshlrev_b32 v{vU}, 4, v{vU}")
        a(f"v_lshl_add_u32 v{xa}, v{vT}, 10, v{vU}")
        a(f"v_xor_b32 v{xa + 1}, 64, v{xa}")
        a(f"s_lshl_b32 s{sH0}, s{sTT}, 15")
        a(f"s_lshl_b32 s{sH1}, s{sW}, 14")
        a(f"s_add_u32 s{sH1}, s{sH1}, {XS}")
        self.swz_voff(wv, 3072, 1024, 2048)
        a(f"s_mul_i32 s{sR0}, s{sW}, {32 * 3072}")
        a(f"s_lshl_b32 s{sB}, s{sC}, 6")
        a(f"s_add_u32 s{sR0}, s{sR0}, s{sB}")
        a(f"s_lshl_b32 s{sR1}, s{sW}, 12")
        tg = {}

        def range_items(r):
            def xi(s, i):
                def f():
                    a(f"s_add_u32 m0, s{sH1}, {(s % 4) * 4096 + i * 1024}")
                    a(f"s_add_u32 s{sBG}, s{sH0}, {i * 8192 + s * 128}")
                    tg["x", s] = self.dma(S_AX, xa + (i & 1), f"s{sBG}")
                return 60, f

            def wi(i):
                def f():
                    a(f"s_add_u32 m0, s{sR1}, {r * 16384 + i * 1024}")
                    a(f"s_add_u32 s{sBG}, s{sR0}, {(128 * r + 8 * i) * 3072}")
                    tg["w", r] = self.dma(S_WQ, wv, f"s{sBG}")
                return 60, f
            return [xi(2 * r, i) for i in range(4)] + [xi(2 * r + 1, i) for i in range(4)] + [wi(i) for i in range(4)]
        a(f"s_mov_b32 m0, {PHI_IMG}")
        a(f"s_lshl_b32 s{sA}, s{sC}, 10")
        self.dma(S_PHI, vL16, f"s{sA}")
        tch = self.touch_items if first else (lambda r: [])
        a.bg = range_items(0) + tch(2) + range_items(1) + tch(3)
        a.pop(6)
        late = self.late_touch_items() if first else []
        prep = self.prep_items() if first else [[], [], []]
        a.on = True
        self.lane_consts()
        ra = WK + 2
        a(f"v_and_b32 v{vT}, 31, v{vLANE}")
        a(f"v_bfe_u32 v{vU}, v{vLANE}, 1, 3")
        a(f"v_lshrrev_b32 v{vP}, 5, v{vLANE}")
        a(f"v_xor_b32 v{vU}, v{vU}, v{vP}")
        a(f"v_lshlrev_b32 v{vU}, 4, v{vU}")
        a(f"v_lshl_add_u32 v{vU}, v{vT}, 7, v{vU}")
        for j in range(4):
            a(f"v_xor_b32 v{ra + j}, {32 * j}, v{vU}")
            a(f"v_add_u32 v{ra + j}, s{sH1}, v{ra + j}")
        ss, sq, ck, cv, ca = WK + 6, WK + 8, WK + 12, WK + 14, WK + 76
        for r in (ss, ss + 1, sq, sq + 1, ck, ck + 1, cv, cv + 1):
            a(f"v_mov_b32 v{r}, 0")
        a(f"v_add_u32 v{ca}, s{sR1}, v{vTR0}")
        a(f"v_add_u32 v{ca + 1}, s{sR1}, v{vTR1}")
        if first:
            self.prep_setup()
        a.flush()
        self.stamp("issued")
        accK, accV, ring, tmp = WK + 16, WK + 32, WK + 48, WK + 80
        for r in range(4):
            a.wait(vm=tg["x", 2 * r + 1])
            for s in (2 * r, 2 * r + 1):
                for j in range(4):
                    t = a.ds(f"ds_read_b128 {V(X0 + (4 * s + j) * 4, 4)}, v{ra + j} offset:{(s % 4) * 4096}")
            a.wait(lg=t)
            if r == 0:
                a.bg += range_items(2) + prep[0] + prep[1]
            if r == 1:
                a.bg += prep[2] + range_items(3) + late
            for x in range(X0 + 32 * r, X0 + 32 * r + 32):
                a(f"v_dot2c_f32_bf16 v{ss + (x & 1)}, s{sONES}, v{x}")
                a(f"v_dot2c_f32_bf16 v{sq + (x & 1)}, v{x}, v{x}")
            a.wait(vm=tg["w", r])
            for j in range(2):
                self.tr(tmp + 8 * j, ca, (r * 16384 + j * 2048, r * 16384 + j * 2048 + 512))
                t = self.tr(tmp + 8 * j + 4, ca + 1, (r * 16384 + j * 2048, r * 16384 + j * 2048 + 512))
            a.wait(lg=t)
            for j in range(16):
                a(f"v_dot2c_f32_bf16 v{(cv if j & 4 else ck) + (j & 1)}, s{sONES}, v{tmp + j}")
            a("s_barrier")
            self.stamp(f"range{r}")
            self.gemm_kv(range(8 * r, 8 * r + 8), None, accK, accV, ring)
            if r == 0:
                self.phi_operands(tmp)
            if r == 3 and first:
                self.prep_write(tmp)
            if r == 1:
                a.pop(len(a.bg) - len(late))
        a.flush()
        a.on = False
        self.colsum_write(CSP, (ck, cv))
        a(f"v_add_f32 v{ss}, v{ss}, v{ss + 1}")
        a(f"v_add_f32 v{sq}, v{sq}, v{sq + 1}")
        self.finish_stats(ss, sq)
        a.drain(vm=False)
        a("s_barrier")
        if first:
            self.publish()
        self.colsum_final(CSP, 2, CS1, tmp)
        a.bg = self.w1q_items()
        self.stamp("kvgemm")
        return accK, accV

    def phi_operands(self, tmp):
        a = self.a
        a(f"v_bfe_u32 v{vT}, v{vLANE}, 2, 2")
        a(f"v_lshrrev_b32 v{vU}, 5, v{vLANE}")
        a(f"v_lshl_add_u32 v{vT}, v{vU}, 3, v{vT}")
        a(f"v_and_b32 v{vU}, 3, v{vLANE}")
        a(f"v_lshlrev_b32 v{vU}, 3, v{vU}")
        a(f"v_lshl_add_u32 v{vT}, v{vT}, 5, v{vU}")
        a(f"v_add_u32 v{vT}, {PHI_IMG}, v{vT}")
        for h in range(2):
            t = self.tr(tmp + 4 * h, vT, (512 * h, 512 * h + 128))
        a(f"v_bfe_u32 v{vU}, v{vLANE}, 4, 1")
        a(f"v_mul_u32_u24 v{vU}, 0x8000, v{vU}")
        a(f"v_lshl_or_b32 v{vU}, v{vU}, 16, v{vU}")
        a.wait(lg=t)
        for r in range(8):
            a(f"v_xor_b32 v{tmp + r}, v{vU}, v{tmp + r}")
            a(f"v_accvgpr_write_b32 a{aPHI + r}, v{tmp + r}")

    def p1_start_l1(self):
        a = self.a
        xt = {}
        later = self.stats_items(WS_ST, WK + 80, xt, vA0, 60) + self.w1q_items()
        self.rows_poll_addr()
        self.poll(vU, 5)
        self.stamp("S5")
        xi = self.x_items(WS_A, xt, 60)
        a.bg = xi[:20] + later[:4] + xi[20:] + later[4:]
        a.pop(self.opt["lead"])
        a.on = True
        self.gemm_kv(range(32), xt, WK + 16, WK + 32, WK + 48,
                     extra=(22, a.capture(lambda: self.sum_stats(WK + 80, packed=False))))
        self.stamp("kvgemm")
        return WK + 16, WK + 32

    def rows_poll_addr(self):
        a = self.a
        a(f"s_lshl_b32 s{sA}, s{sCL}, 8")
        a(f"s_lshl_b32 s{sB}, s{sTH}, 6")
        a(f"s_add_u32 s{sA}, s{sA}, s{sB}")
        a(f"s_lshl_b32 s{sB}, s{sKH}, 5")
        a(f"s_add_u32 s{sA}, s{sA}, s{sB}")
        if self.slow:
            a(f"s_add_u32 s{sA}, s{sA}, {WS_ALT}")
        a(f"v_and_b32 v{vT}, 7, v{vLANE}")
        a(f"v_bfe_u32 v{vU}, v{vLANE}, 3, 1")
        a(f"v_lshlrev_b32 v{vU}, 7, v{vU}")
        a(f"v_lshl_add_u32 v{vU}, v{vT}, 2, v{vU}")
        a(f"v_add_u32 v{vU}, s{sA}, v{vU}")

    def x_items(self, base, tags, gap):
        a = self.a
        a(f"s_lshl_b32 s{sH0}, s{sTT}, 15")
        a(f"s_add_u32 s{sH0}, s{sH0}, {base}")

        def item(kb):
            def f():
                if kb and kb % 4 == 0:
                    a(f"s_add_u32 s{sH0}, s{sH0}, 4096")
                tags[kb] = self.load(V(X0 + 4 * kb, 4), S_WS, vL16, f"s{sH0}", (kb % 4) * 1024)
            return gap, f
        return [item(kb) for kb in range(32)]

    def gemm_kv(self, kbs, xt, accK, accV, ring, extra=None):
        a = self.a
        tg = {}

        def rd(kb):
            r = ring + (kb % 3) * 8
            self.tr(r, vTR0, (kb * 2048, kb * 2048 + 512))
            tg[kb] = self.tr(r + 4, vTR1, (kb * 2048, kb * 2048 + 512))
        rd(kbs[0])
        rd(kbs[0] + 1)
        for kb in kbs:
            if kb + 2 <= kbs[-1]:
                rd(kb + 2)
            a.wait(vm=xt[kb] if xt is not None else None, lg=tg[kb])
            r = ring + (kb % 3) * 8
            x = V(X0 + 4 * kb, 4)
            for acc, w in ((accK, r), (accV, r + 4)):
                self.mfma(V(acc, 16), V(w, 4), x, "0" if kb == 0 else None)
                if extra and kb >= extra[0]:
                    for _ in range(2):
                        if extra[1]:
                            Asm.__call__(a, extra[1].pop(0))
        assert not (extra and extra[1])

    def e1_kv(self, layer, accK, accV):
        a = self.a
        a.on = True
        cs, Kb, Vb, PB, VB, tmp = WK + 48, WK + 80, WK + 88, WK + 96, WK, WK + 48
        tk = self.read_cs(0, cs)
        tv = self.read_cs(1, cs + 16)
        a.wait(lg=tk)
        self.normalize(accK, cs, Kb)
        PA = accK
        self.mfma(V(PA, 16), A(aPHI, 4), V(Kb, 4), "0")
        self.mfma(V(PB, 16), A(aPHI + 4, 4), V(Kb + 4, 4), "0")
        a.wait(lg=tv)
        self.normalize(accV, cs + 16, Vb)
        VA = accV
        self.mfma(V(VA, 16), V(Vb, 4), A(aI, 4), "0")
        self.mfma(V(VB, 16), V(Vb + 4, 4), A(aI + 4, 4), "0")
        phA, phB = tmp + 8, tmp + 16
        self.softmax_pair(PA, tmp, phA)
        VAb, VBb = Kb, Vb
        self.cvt16(VA, VAb)
        TA = VA
        self.mfma(V(TA, 16), V(phA, 4), A(aI, 4), "0")
        self.mfma(V(TA, 16), V(phA + 4, 4), A(aI + 4, 4))
        self.cvt16(VB, VBb)
        self.softmax_pair(PB, tmp, phB)
        TB = VB
        self.mfma(V(TB, 16), V(phB, 4), A(aI, 4), "0")
        self.mfma(V(TB, 16), V(phB + 4, 4), A(aI + 4, 4))
        KV = PA

        def zsum(T):
            for w in (8, 4, 2):
                for i in range(0, w, 2):
                    a(f"v_pk_add_f32 {V(T + i, 2)}, {V(T + i, 2)}, {V(T + w + i, 2)}")
            a(f"v_add_f32 v{T}, v{T}, v{T + 1}")
        self.cvt16(TA, phA)
        self.mfma(V(KV, 16), V(phA, 4), V(VAb, 4), "0")
        self.mfma(V(KV, 16), V(phA + 4, 4), V(VAb + 4, 4))
        zsum(TA)
        self.cvt16(TB, phB)
        self.mfma(V(KV, 16), V(phB, 4), V(VBb, 4))
        self.mfma(V(KV, 16), V(phB + 4, 4), V(VBb + 4, 4))
        zsum(TB)
        a.flush()
        a.on = False
        a(f"v_permlane32_swap_b32 v{TA}, v{TB}")
        a(f"v_add_f32 v{TA}, v{TA}, v{TB}")
        a(f"s_lshl_b32 s{sA}, s{sW}, 8")
        a(f"s_add_u32 s{sA}, s{sA}, {ZS + 12288}")
        a(f"v_lshl_add_u32 v{vU}, v{vLANE}, 2, s{sA}")
        a.ds(f"ds_write_b32 v{vU}, v{TA}")
        own = tmp
        self.scatter(KV, 4, own, ZS, 1024)
        a(f"s_mul_i32 s{sA}, s{sW}, 3072")
        a(f"s_add_u32 s{sA}, s{sA}, {ZS}")
        a(f"v_add_u32 v{vU}, s{sA}, v{vL16}")
        a(f"v_lshlrev_b32 v{vT}, 2, v{vLANE}")
        a(f"v_add_u32 v{vA0}, {ZS + 12288}, v{vT}")
        kvp = (WS_KVP_ALT if self.slow else WS_KVP) + layer * 256 * KVP_SZ
        a(f"s_lshl_b32 s{sA}, s{sC}, 4")
        a(f"s_add_u32 s{sA}, s{sA}, s{sCL}")
        a(f"s_mul_i32 s{sA}, s{sA}, {KVP_SZ}")
        a(f"s_add_u32 s{sA}, s{sA}, {kvp}")
        a(f"s_lshl_b32 s{sB}, s{sW}, 9")
        a(f"s_add_u32 s{sB}, s{sB}, s{sA}")
        a(f"s_lshl_b32 s{sD}, s{sC}, 8")
        a(f"s_lshl_b32 s{sE}, s{sW}, 6")
        a(f"s_add_u32 s{sD}, s{sD}, s{sE}")
        a(f"s_add_u32 s{sR1}, s{sD}, {WS_S1F + layer * 4096 + (WS_ALT if self.slow else 0)}")
        a(f"s_lshl_b32 s{sE}, s{sCL}, 2")
        a(f"s_add_u32 s{sD}, s{sR1}, s{sE}")
        a.drain(vm=False)
        a("s_barrier")
        for j in range(3):
            t = a.ds(f"ds_read_b128 {V(own + 4 + 4 * j, 4)}, v{vU} offset:{1024 * j}")
        for j in range(4):
            tz = a.ds(f"ds_read_b32 v{own + 16 + j}, v{vA0} offset:{256 * j}")
        a(f"v_lshlrev_b32 v{vU}, 3, v{vLANE}")
        a.wait(lg=t)
        for i in (0, 2):
            a(f"v_pk_add_f32 {V(own + i, 2)}, {V(own + i, 2)}, {V(own + 4 + i, 2)}")
            a(f"v_pk_add_f32 {V(own + 8 + i, 2)}, {V(own + 8 + i, 2)}, {V(own + 12 + i, 2)}")
        for i in (0, 2):
            a(f"v_pk_add_f32 {V(own + i, 2)}, {V(own + i, 2)}, {V(own + 8 + i, 2)}")
        a(f"v_cvt_pk_bf16_f32 v{own}, v{own}, v{own + 1}")
        a(f"v_cvt_pk_bf16_f32 v{own + 1}, v{own + 2}, v{own + 3}")
        self.store(V(own, 2), S_WS, vU, f"s{sB}", sc1=True, width="dwordx2")
        a.wait(lg=tz)
        skip = a.label("noz")
        a(f"s_cmp_lg_u32 s{sW}, 0")
        a(f"s_cbranch_scc1 {skip}")
        a(f"v_pk_add_f32 {V(own + 16, 2)}, {V(own + 16, 2)}, {V(own + 18, 2)}")
        a(f"v_add_f32 v{own + 16}, v{own + 16}, v{own + 17}")
        self.store(V(own + 16), S_WS, vT, f"s{sA}", 2048, sc1=True, width="dword", counted=False)
        a(f"{skip}:")
        self.stamp("e1")
        self.signal(1, sreg=sD, sc1=True)
        self.stamp("kvdrain")

    def scatter(self, src, n, own, base, piece):
        a = self.a
        for q in range(4):
            skip, done = a.label("own"), a.label("ownd")
            a(f"s_sub_u32 s{sA}, s{sW}, {q + 1}")
            a(f"s_and_b32 s{sA}, s{sA}, 3")
            a(f"s_cmp_eq_u32 s{sA}, 3")
            a(f"s_cbranch_scc1 {skip}")
            a(f"s_mul_i32 s{sA}, s{sA}, {piece}")
            a(f"s_add_u32 s{sA}, s{sA}, {base + q * 3 * piece}")
            a(f"v_add_u32 v{vU}, s{sA}, v{vL16}")
            for j in range(n // 4):
                a(f"ds_write_b128 v{vU}, {V(src + n * q + 4 * j, 4)} offset:{1024 * j}")
            a(f"s_branch {done}")
            a(f"{skip}:")
            for i in range(0, n, 2):
                a(f"v_pk_add_f32 {V(own + i, 2)}, {V(src + n * q + i, 2)}, 0")
            a(f"{done}:")

    def s1_window(self, layer):
        a = self.a
        acc, ring = WK, WK + 16
        check = layer == 0 and not self.slow
        a.bg, w2_late = self.w2_items()
        a("s_barrier")
        if check:
            a(f"v_lshlrev_b32 v{vA0}, 2, v{vLANE}")
            t_tab = self.poll_issue(vA0, S_DBG)
        a.pop(2)
        a.on = True
        if layer == 0:
            cq, tmp = WK + 96, WK + 64
            a(f"s_lshl_b32 s{sA}, s{sW}, 13")
            a(f"v_add_u32 v{vA0}, s{sA}, v{vTRQ}")
            a(f"v_mov_b32 v{cq}, 0")
            a(f"v_mov_b32 v{cq + 1}, 0")
            for j in range(8):
                t = self.tr(tmp + 4 * j, vA0, (j * 1024, j * 1024 + 256))
            a.wait(lg=t)
            for j in range(32):
                a(f"v_dot2c_f32_bf16 v{cq + (j & 1)}, s{sONES}, v{tmp + j}")
            self.colsum_write(CSPQ, (cq,))
        kvr, zr, ks = WK + 72, WK + 40, WK + 104
        a(f"v_and_b32 v{vU}, 15, v{vLANE}")
        a(f"v_lshl_add_u32 v{vBG}, v{vU}, 2, s{sR1}")
        a(f"v_lshrrev_b32 v{vT}, 4, v{vLANE}")
        a(f"v_mul_u32_u24 v{vT}, {KVP_SZ}, v{vT}")
        a(f"v_lshl_add_u32 v{vA1}, v{vU}, 4, v{vT}")
        kvp = (WS_KVP_ALT if self.slow else WS_KVP) + layer * 256 * KVP_SZ
        a(f"s_mul_i32 s{sD}, s{sC}, {16 * KVP_SZ}")
        a(f"s_add_u32 s{sD}, s{sD}, {kvp}")
        a(f"s_lshl_b32 s{sE}, s{sW}, 9")
        a(f"s_add_u32 s{sE}, s{sE}, s{sD}")
        self.ring_init()
        if layer == 0:
            self.w4_init()
        tg, tp = {}, {}
        if not check:
            a.bg.append((60, lambda: tp.setdefault(0, self.poll_issue(vBG))))

        def rd(kb):
            tg[kb] = self.tr(ring + (kb % 4) * 4, vTRQ, (kb * 1024, kb * 1024 + 256))
        for kb in range(3):
            rd(kb)
        for kb in range(32):
            if kb + 3 < 32:
                rd(kb + 3)
            a.wait(lg=tg[kb])
            self.mfma(V(acc, 16), V(ring + (kb % 4) * 4, 4), V(X0 + 4 * kb, 4), "0" if kb == 0 else None)
        a.flush()
        a.on = False
        if check:
            self.table_check(t_tab)
            tp[0] = self.poll_issue(vBG)

        a(f"v_lshrrev_b32 v{vT}, 5, v{vLANE}")
        a(f"v_mul_u32_u24 v{vT}, {KVP_SZ}, v{vT}")
        a(f"v_and_b32 v{vA0}, 31, v{vLANE}")
        a(f"v_lshl_add_u32 v{vA0}, v{vA0}, 4, v{vT}")
        a.drain(vm=False)
        a("s_barrier")
        self.stamp("qgemm")
        if layer == 0:
            self.colsum_final(CSPQ, 1, CS1 + 256, WK + 64)
        cs, Qb, PB, tmp = WK + 16, WK + 32, WK + 56, WK + 32
        t = self.read_cs(2, cs)
        a.wait(lg=t)
        self.normalize(acc, cs, Qb)
        self.mfma(V(acc, 16), A(aPHI, 4), V(Qb, 4), "0")
        self.mfma(V(PB, 16), A(aPHI + 4, 4), V(Qb + 4, 4), "0")
        self.phq = WK + 16
        self.poll(vBG, 1, first=tp[0])
        self.stamp("S1")
        skip = a.label("zld")
        a(f"s_cmp_lg_u32 s{sW}, 0")
        a(f"s_cbranch_scc1 {skip}")
        for i in range(4):
            self.load(V(zr + 4 * i, 4), S_WS, vA1, f"s{sD}", 2048, counted=False)
            if i < 3:
                a(f"s_add_u32 s{sD}, s{sD}, {4 * KVP_SZ}")
        a(f"{skip}:")
        kt = {}

        def kv_item(p):
            def f():
                if p:
                    a(f"s_add_u32 s{sE}, s{sE}, {2 * KVP_SZ}")
                kt[p] = self.load(V(kvr + 4 * p, 4), S_WS, vA0, f"s{sE}")
            return 40, f
        wt = {}
        a.bg = [kv_item(p) for p in range(8)] + w2_late + [(0, lambda: wt.setdefault(0, a.vm))] + \
            self.ring_items(self.opt["pre_a"] if layer else 0)
        a.pop(4)
        a.on = True
        self.softmax_pair(acc, tmp, self.phq)
        self.softmax_pair(PB, tmp, self.phq + 8)
        for i in range(8):
            a(f"v_mov_b32 v{ks + i}, 0")
        a.flush()
        a.on = False
        self.stamp("qdone")
        skip = a.label("zsum")
        a(f"s_cmp_lg_u32 s{sW}, 0")
        a(f"s_cbranch_scc1 {skip}")
        a(f"v_bfe_u32 v{vT}, v{vLANE}, 2, 2")
        a(f"v_lshlrev_b32 v{vT}, 10, v{vT}")
        a(f"v_and_b32 v{vU}, 1, v{vLANE}")
        a(f"v_lshl_add_u32 v{vT}, v{vU}, 9, v{vT}")
        a(f"v_bfe_u32 v{vU}, v{vLANE}, 1, 1")
        a(f"v_lshl_add_u32 v{vT}, v{vU}, 3, v{vT}")
        a(f"v_add_u32 v{vT}, {ZAIMG + 256}, v{vT}")
        a(f"s_waitcnt vmcnt({a.vm - kt[0] + 1})")
        for i in (0, 2):
            a(f"v_pk_add_f32 {V(zr + i, 2)}, {V(zr + i, 2)}, {V(zr + 4 + i, 2)}")
            a(f"v_pk_add_f32 {V(zr + 8 + i, 2)}, {V(zr + 8 + i, 2)}, {V(zr + 12 + i, 2)}")
        for i in (0, 2):
            a(f"v_pk_add_f32 {V(zr + i, 2)}, {V(zr + i, 2)}, {V(zr + 8 + i, 2)}")
        for sw in ("v_permlane16_swap_b32", "v_permlane32_swap_b32"):
            for i in range(4):
                a(f"v_mov_b32 v{zr + 4 + i}, v{zr + i}")
            for i in range(4):
                a(f"{sw} v{zr + i}, v{zr + 4 + i}")
            for i in range(4):
                a(f"v_add_f32 v{zr + i}, v{zr + i}, v{zr + 4 + i}")
        a(f"v_cvt_pk_bf16_f32 v{zr}, v{zr}, v{zr + 1}")
        a(f"v_cvt_pk_bf16_f32 v{zr + 1}, v{zr + 2}, v{zr + 3}")
        a(f"ds_write_b64 v{vT}, {V(zr, 2)}")
        a(f"{skip}:")
        a(f"v_lshlrev_b32 v{vU}, 1, v{vLANE}")
        a(f"v_lshrrev_b32 v{vT}, 5, v{vLANE}")
        a(f"v_and_or_b32 v{vU}, v{vU}, 62, v{vT}")
        a(f"v_bfe_u32 v{vT}, v{vU}, 4, 1")
        a(f"v_lshlrev_b32 v{vT}, 11, v{vT}")
        a(f"v_and_b32 v{vU}, 47, v{vU}")
        a(f"v_lshl_add_u32 v{vT}, v{vU}, 4, v{vT}")
        a(f"s_lshl_b32 s{sA}, s{sKH}, 10")
        a(f"s_lshl_b32 s{sB}, s{sTH}, 3")
        a(f"s_add_u32 s{sA}, s{sA}, s{sB}")
        a(f"s_add_u32 s{sA}, s{sA}, {ZAIMG}")
        a(f"v_add_u32 v{vA0}, s{sA}, v{vT}")
        a(f"v_and_b32 v{vT}, 31, v{vLANE}")
        a(f"v_min_u32 v{vT}, 16, v{vT}")
        a(f"v_and_b32 v{vU}, 32, v{vLANE}")
        a(f"v_add_u32 v{vT}, v{vT}, v{vU}")
        a(f"v_lshlrev_b32 v{vT}, 4, v{vT}")
        a(f"v_add_u32 v{vA1}, {ZAIMG}, v{vT}")
        a(f"s_lshl_b32 s{sA}, s{sTT}, 15")
        a(f"s_lshl_b32 s{sB}, s{sC}, 11")
        a(f"s_add_u32 s{sA}, s{sA}, s{sB}")
        a(f"s_add_u32 s{sG}, s{sA}, {WS_OBUF[layer]}")
        for p in range(8):
            a.wait(vm=kt[p])
            for i in range(4):
                a(f"v_dot2c_f32_bf16 v{ks + 2 * i}, s{sLO}, v{kvr + 4 * p + i}")
                a(f"v_dot2c_f32_bf16 v{ks + 2 * i + 1}, s{sHI}, v{kvr + 4 * p + i}")
        for i in range(4):
            a(f"v_permlane32_swap_b32 v{ks + i}, v{ks + 4 + i}")
        for i in (0, 2):
            a(f"v_pk_add_f32 {V(ks + i, 2)}, {V(ks + i, 2)}, {V(ks + 4 + i, 2)}")
        a(f"v_cvt_pk_bf16_f32 v{ks}, v{ks}, v{ks + 1}")
        a(f"v_cvt_pk_bf16_f32 v{ks + 1}, v{ks + 2}, v{ks + 3}")
        a.ds(f"ds_write_b64 v{vA0}, {V(ks, 2)}")
        a.wait(vm=wt[0])
        a.drain(vm=False)
        a("s_barrier")
        self.stamp("kvsum")
        op, O = WK + 32, WK + 48
        for j in range(4):
            t = a.ds(f"ds_read_b128 {V(op + 4 * j, 4)}, v{vA1} offset:{1024 * j}")
        a.wait(lg=t)
        for h in range(2):
            self.mfma(V(O + 16 * h, 16), V(op + 8 * h, 4), V(self.phq + 8 * h, 4), "0")
            self.mfma(V(O + 16 * h, 16), V(op + 8 * h + 4, 4), V(self.phq + 8 * h + 4, 4))
        for h in range(2):
            o = O + 16 * h
            a(f"v_add_f32 v{o + 8}, 0x358637bd, v{o + 8}")
            a(f"v_rcp_f32 v{o + 8}, v{o + 8}")
            for i in range(0, 8, 2):
                a(f"v_pk_mul_f32 {V(o + i, 2)}, {V(o + i, 2)}, {V(o + 8, 2)} op_sel_hi:[1,0]")
            for i in range(4):
                a(f"v_cvt_pk_bf16_f32 v{o + 12 + i}, v{o + 2 * i}, v{o + 2 * i + 1}")
            self.store(V(o + 12, 4), S_WS, vL16, f"s{sG}", 1024 * h, sc1="first" if layer == 0 else None)
        self.w2_read()
        self.signal(1 + 5 * layer)
        self.stamp("o")

    def res_addr(self):
        a = self.a
        a(f"s_lshl_b32 s{sE}, s{sCL}, 2")
        a(f"s_lshl_b32 s{sA}, s{sTH2}, 1")
        a(f"s_add_u32 s{sE}, s{sE}, s{sA}")
        a(f"s_add_u32 s{sE}, s{sE}, s{sTH}")
        a(f"s_lshl_b32 s{sF}, s{sE}, 12")
        a(f"s_lshl_b32 s{sA}, s{sCT}, 9")
        a(f"s_add_u32 s{sF}, s{sF}, s{sA}")
        a(f"s_lshl_b32 s{sA}, s{sKH}, 3")
        a(f"s_add_u32 s{sF}, s{sF}, s{sA}")
        a(f"s_lshl_b32 s{sE}, s{sE}, 15")
        a(f"s_lshl_b32 s{sA}, s{sCT}, 7")
        a(f"s_lshl_b32 s{sB}, s{sKH}, 6")
        a(f"s_add_u32 s{sA}, s{sA}, s{sB}")
        a(f"s_add_u32 s{sD}, s{sE}, s{sA}")
        a(f"s_lshl_b32 s{sA}, s{sA}, 5")
        a(f"s_add_u32 s{sE}, s{sE}, s{sA}")
        a(f"v_and_b32 v{vT}, 31, v{vLANE}")
        a(f"v_lshrrev_b32 v{vU}, 5, v{vLANE}")
        a(f"v_lshlrev_b32 v{vROW}, 10, v{vT}")
        a(f"v_lshl_add_u32 v{vROW}, v{vU}, 4, v{vROW}")
        a(f"v_lshlrev_b32 v{vT}, 4, v{vT}")
        a(f"v_lshl_add_u32 v{vBG}, v{vU}, 2, v{vT}")

    def res_load(self, dst, src):
        a = self.a
        if src is None:
            for j in range(2):
                t = self.load(V(dst + 4 * j, 4), S_AX, vROW, f"s{sD}", 32 * j, sc1=False)
        else:
            a(f"s_add_u32 s{sBG}, s{sE}, {src}")
            for j in range(2):
                t = self.load(V(dst + 4 * j, 4), S_WS, vL16, f"s{sBG}", 1024 * j)
        return t

    def res_finish(self, acc, res, dst, flag, sc1=None):
        a = self.a
        for i in range(8):
            a(f"v_dot2c_f32_bf16 v{acc + 2 * i}, s{sLO}, v{res + i}")
            a(f"v_dot2c_f32_bf16 v{acc + 2 * i + 1}, s{sHI}, v{res + i}")
        self.cvt16(acc, res)
        if dst is None:
            for j in range(2):
                self.store(V(res + 4 * j, 4), S_OUT, vROW, f"s{sD}", 32 * j, sc1=False)
            return
        a(f"s_add_u32 s{sA}, s{sE}, {dst}")
        for j in range(2):
            self.store(V(res + 4 * j, 4), S_WS, vL16, f"s{sA}", 1024 * j, sc1=sc1)
        a(f"v_mov_b32 v{acc}, 0")
        a(f"v_mov_b32 v{acc + 1}, 0")
        for i in range(8):
            a(f"v_dot2c_f32_bf16 v{acc}, s{sONES}, v{res + i}")
            a(f"v_dot2c_f32_bf16 v{acc + 1}, v{res + i}, v{res + i}")
        a(f"s_add_u32 s{sA}, s{sF}, {WS_ST}")
        a(f"v_permlane32_swap_b32 v{acc}, v{acc + 1}")
        a(f"v_add_f32 v{acc}, v{acc}, v{acc + 1}")
        self.store(V(acc), S_WS, vBG, f"s{sA}", width="dword", sc1=sc1)
        self.signal(flag)

    def p2(self, layer):
        a = self.a
        of, acc, res = WK, WK + 64, WK + 96
        self.res_addr()
        tr = self.res_load(res, None if layer == 0 else WS_A)
        a(f"s_lshl_b32 s{sA}, s{sTH2}, 1")
        a(f"s_add_u32 s{sA}, s{sA}, s{sTH}")
        a(f"s_lshl_b32 s{sG}, s{sCL}, 2")
        a(f"s_add_u32 s{sG}, s{sG}, s{sA}")
        a(f"s_lshl_b32 s{sA}, s{sG}, 6")
        a(f"s_lshl_b32 s{sB}, s{sKH}, 5")
        a(f"s_add_u32 s{sA}, s{sA}, s{sB}")
        if self.slow:
            a(f"s_add_u32 s{sA}, s{sA}, {WS_ALT}")
        a(f"v_and_b32 v{vU}, 7, v{vLANE}")
        a(f"v_lshl_add_u32 v{vU}, v{vU}, 2, s{sA}")
        a(f"s_lshl_b32 s{sG}, s{sG}, 15")
        a(f"s_lshl_b32 s{sB}, s{sKH}, 14")
        a(f"s_add_u32 s{sG}, s{sG}, s{sB}")
        a(f"s_add_u32 s{sH0}, s{sG}, {WS_OBUF[layer]}")
        a(f"s_xor_b32 s{sA}, s{sW}, 2")
        a(f"s_lshl_b32 s{sA}, s{sA}, 12")
        a(f"s_add_u32 s{sA}, s{sA}, {P2S}")
        a(f"v_add_u32 v{vA0}, s{sA}, v{vL16}")
        a(f"s_lshl_b32 s{sA}, s{sW}, 12")
        a(f"s_add_u32 s{sA}, s{sA}, {P2S}")
        a(f"v_add_u32 v{vA1}, s{sA}, v{vL16}")
        a.drain(vm=False)
        a("s_barrier")
        self.poll(vU, 1 + 5 * layer)
        self.stamp("S2")
        ot = {}

        def item(kb):
            def f():
                if kb and kb % 4 == 0:
                    a(f"s_add_u32 s{sH0}, s{sH0}, 4096")
                ot[kb] = self.load(V(of + 4 * kb, 4), S_WS, vL16, f"s{sH0}", (kb % 4) * 1024)
            return 60, f
        a.bg = [item(kb) for kb in range(16)]
        if layer == 0:
            a.bg.append((0, lambda: a("s_barrier")))
        a.bg += self.ring_items(self.opt["pre_c" if layer else "pre_c0"], 60)
        a.pop(self.opt["lead"])
        a.on = True
        for kb in range(16):
            a.wait(vm=ot[kb])
            for nt in range(2):
                self.mfma(V(acc + 16 * nt, 16), V(X0 + (kb * 2 + nt) * 4, 4), V(of + 4 * kb, 4), "0" if kb == 0 else None)
        a.flush()
        a.on = False
        self.stamp("p2gemm")
        hi, done = a.label("khi"), a.label("kd")
        a(f"s_cmp_lg_u32 s{sKH}, 0")
        a(f"s_cbranch_scc1 {hi}")
        for q in range(4):
            a(f"ds_write_b128 v{vA0}, {V(acc + 16 + 4 * q, 4)} offset:{1024 * q}")
        a(f"s_branch {done}")
        a(f"{hi}:")
        for q in range(4):
            a(f"ds_write_b128 v{vA0}, {V(acc + 4 * q, 4)} offset:{1024 * q}")
        for i in range(0, 16, 2):
            a(f"v_pk_add_f32 {V(acc + i, 2)}, {V(acc + 16 + i, 2)}, 0")
        a(f"{done}:")
        a.drain(vm=False)
        a("s_barrier")
        for q in range(4):
            t = a.ds(f"ds_read_b128 {V(acc + 16 + 4 * q, 4)}, v{vA1} offset:{1024 * q}")
        a.wait(vm=tr, lg=t)
        for i in range(0, 16, 2):
            a(f"v_pk_add_f32 {V(acc + i, 2)}, {V(acc + i, 2)}, {V(acc + 16 + i, 2)}")
        self.res_finish(acc, res, WS_XMID[layer], 2 + 5 * layer, sc1="first" if layer == 0 else None)
        self.stamp("x1")

    def p3(self, layer):
        a = self.a
        BAR = self.opt["bar"]
        if layer == 0:
            skip = a.label("cs3")
            a(f"s_cmp_lg_u32 s{sW}, 0")
            a(f"s_cbranch_scc1 {skip}")
            a(f"s_mul_i32 s{sA}, s{sC}, 896")
            a(f"s_add_u32 s{sA}, s{sA}, {WS_CS3}")
            for k in range(8):
                self.load(V(WK + 4 * k, 4), S_WS, vL16, f"s{sA}", counted=False)
                a(f"s_add_u32 s{sA}, s{sA}, {112 * 128}")
            a("s_waitcnt vmcnt(0)")
            for w in (16, 8, 4):
                for i in range(0, w, 2):
                    a(f"v_pk_add_f32 {V(WK + i, 2)}, {V(WK + i, 2)}, {V(WK + w + i, 2)}")
            for i in range(4):
                a(f"v_cvt_pk_bf16_f32 v{WK + 4 + i}, v{WK + i}, v{WK + i}")
                a(f"v_and_b32 v{WK + 8 + i}, 0xffff0000, v{WK + 4 + i}")
                a(f"v_sub_f32 v{WK + i}, v{WK + i}, v{WK + 8 + i}")
                a(f"v_cvt_pk_bf16_f32 v{WK + i}, v{WK + 8 + i}, v{WK + i}")
            a(f"v_add_u32 v{vT}, {CS3}, v{vL16}")
            a("s_mov_b32 exec_hi, 0x00ffffff")
            a(f"ds_write_b128 v{vT}, {V(WK, 4)}")
            a("s_mov_b64 exec, -1")
            a("s_waitcnt lgkmcnt(0)")
            a(f"{skip}:")
        accs = [WK, WK + 16, WK + 32, WK + 48, WK + 64, WK + 80, WK]
        tmp = WK + 96
        xt = {}
        st_items = self.stats_items(WS_ST, tmp, xt, vBG, 0)
        x_items = self.x_items(WS_XMID[layer], xt, 0)
        a(f"v_add_u32 v{vA0}, {ZB}, v{vL16}")
        a(f"v_add_u32 v{vA1}, {ZB + 65536}, v{vL16}")
        a(f"s_mul_i32 s{sH1}, s{sTT}, {112 * 1024}")
        a(f"s_mul_i32 s{sA}, s{sC}, {7 * 1024}")
        a(f"s_add_u32 s{sH1}, s{sH1}, s{sA}")
        a(f"s_add_u32 s{sH1}, s{sH1}, {WS_H}")
        self.rows_poll_addr()
        seq = [(g, kb) for kb in range(32) for g in range(4)] + [(g, kb) for kb in range(32) for g in (4, 5)] + \
              [(6, kb) for kb in range(32)]
        rt = {}
        self.free_upto = -1

        def rd(f):
            s = f // 8
            if f % BAR == 0:
                last = s + BAR // 8 - 1
                while self.ring_next < 2 * last + 2:
                    self.ring_one()
                a.wait(vm=self.ring_tag[last])
                a("s_barrier")
                self.free_upto = s - 2
            off = RING_AT[s % NSLOT] - ZB + (f % 8) * 1024
            addr, off = (vA0, off) if off < 65536 else (vA1, off - 65536)
            rt[f] = a.ds(f"ds_read_b128 {A(aRING + (f % 4) * 4, 4)}, v{addr} offset:{off}")
        for f in range(4):
            rd(f)
        self.poll(vU, 2 + 5 * layer)
        self.stamp("S3")
        for _ in range(self.opt["lead3"]):
            x_items.pop(0)[1]()
        x_items += st_items

        ext, mu = tmp + 8, tmp + 4

        def epi(gs):
            l = []
            for g in gs:
                acc = accs[g]
                for i in range(8):
                    l.append(("v", f"v_mul_f32 v{acc + 8 + i}, v{vRHO}, v{acc + 8 + i}", None))
                for i in range(8):
                    l.append(("v", f"v_mul_f32 v{acc + i}, v{acc + i}, v{acc + 8 + i}", None))
                for i in range(4):
                    l.append(("v", f"v_cvt_pk_bf16_f32 v{acc + 8 + i}, v{acc + 2 * i}, v{acc + 2 * i + 1}", None))
                l.append(("st", g, None))
            return l

        def mean_operand():
            a(f"v_mul_f32 v{vRHO}, v{vRHO}, v{vRHO}")
            a(f"v_cvt_pk_bf16_f32 v{mu}, v{vNMU}, v{vNMU}")
            a(f"v_and_b32 v{vT}, 0xffff0000, v{mu}")
            a(f"v_sub_f32 v{vT}, v{vNMU}, v{vT}")
            a(f"v_cvt_pk_bf16_f32 v{mu + 1}, v{vT}, v{vT}")
            a(f"v_cmp_gt_u32 vcc, 32, v{vLANE}")
            a(f"v_mov_b32 v{mu + 2}, 0")
            a(f"v_mov_b32 v{mu + 3}, 0")
            a(f"v_cndmask_b32 v{mu}, 0, v{mu}, vcc")
            a(f"v_cndmask_b32 v{mu + 1}, 0, v{mu + 1}, vcc")
            for i in (2, 3, 6, 7):
                a(f"v_mov_b32 v{ext + i}, 0")
            self.natural_col(tmp)
            a(f"v_add_u32 v{tmp}, {CS3}, v{tmp}")
        ext_tag, h_tag = {}, {}

        def ext_read(g):
            ext_tag[g] = a.ds(f"ds_read2_b32 {V(ext + 4 * (g & 1), 2)}, v{tmp} offset0:{32 * g} offset1:{32 * g}")

        def run(item):
            k, x, key = item
            if k == "v":
                a(x)
            elif k == "st":
                if x == 4:
                    a(f"s_add_u32 s{sH1}, s{sH1}, 4096")
                h_tag[x] = self.store(V(accs[x] + 8, 4), S_WS, vL16, f"s{sH1}", (x % 4) * 1024,
                                      sc1="first" if layer == 0 else None)
            elif k == "call":
                x()
        tp = {}

        def sig_a():
            a(f"v_mov_b32 v{vT}, {3 + 5 * layer}")
            a(f"v_mov_b32 v{vROW}, s{sFLAG}")
            a.wait(vm=h_tag[3])
            a("s_mov_b64 exec, 1")
            self.store(V(vT), S_WS, vROW, 0, width="dword")
            a("s_mov_b64 exec, -1")
        pend = []
        for f, (g, kb) in enumerate(seq):
            if f == 131:
                assert not pend
                pend = epi((0, 1, 2, 3)) + [("v", l, None) for l in a.capture(self.p4_setup)]
            if f == 195:
                assert not pend
                pend = epi((4, 5))
                pend.insert(4, ("call", sig_a, None))
            if f in (16, 48, 96, 128, 192):
                self.stamp(f"p3f{f}")
            a.wait(vm=xt[kb] if g == 0 else None, lg=rt[f])
            self.mfma(V(accs[g], 16), A(aRING + (f % 4) * 4, 4), V(X0 + 4 * kb, 4), "0" if kb == 0 else None)
            if f + 4 < 224:
                rd(f + 4)
            if kb == 31:
                a.wait(lg=ext_tag[g])
                self.mfma(V(accs[g], 16), V(ext + 4 * (g & 1), 4), V(mu, 4))
                if g + 2 < 7:
                    ext_read(g + 2)
            if f == 120:
                assert not pend
                ext_read(0)
                ext_read(1)
            ring_ok = self.ring_next < 56 and self.ring_next // 2 - NSLOT <= self.free_upto
            ring_due = self.ring_next // 2 * 8 - f < 40
            if f % 2 == 0:
                if x_items and not (ring_ok and ring_due and f < 72 and (36 - len(x_items)) * 4 - f > 24):
                    x_items.pop(0)[1]()
                elif ring_ok:
                    self.ring_one()
                elif layer == 0 and self.w4_next < 56:
                    self.w4_one()
            if f == 96:
                assert not x_items
                a.wait(vm=xt["st"])
                pend = [("v", l, None) for l in a.capture(lambda: self.sum_stats(tmp, packed=False))]
                pend += [("v", l, None) for l in a.capture(mean_operand)]
            if f == 216:
                tp["a"] = self.poll_issue(vU)
            for _ in range(3 if f < 128 else 2):
                if pend:
                    run(pend.pop(0))
        assert not pend, len(pend)
        while layer == 0 and self.w4_next < 56:
            self.w4_one()
        self.stamp("p3gemm")
        a("s_barrier")
        for it in epi((6,)):
            run(it)
        self.p4(layer, tp["a"], h_tag[6])

    def p4_setup(self):
        a = self.a
        self.res_addr()
        a(f"s_lshl_b32 s{sA}, s{sCL}, 8")
        a(f"s_lshl_b32 s{sB}, s{sTH2}, 7")
        a(f"s_add_u32 s{sA}, s{sA}, s{sB}")
        a(f"s_lshl_b32 s{sB}, s{sW}, 4")
        a(f"s_add_u32 s{sA}, s{sA}, s{sB}")
        if self.slow:
            a(f"s_add_u32 s{sA}, s{sA}, {WS_ALT}")
        a(f"v_and_b32 v{vT}, 3, v{vLANE}")
        a(f"v_bfe_u32 v{vU}, v{vLANE}, 2, 1")
        a(f"v_lshlrev_b32 v{vU}, 6, v{vU}")
        a(f"v_lshl_add_u32 v{vU}, v{vT}, 2, v{vU}")
        a(f"v_add_u32 v{vU}, s{sA}, v{vU}")
        a(f"s_lshl_b32 s{sA}, s{sCL}, 2")
        a(f"s_lshl_b32 s{sB}, s{sTH2}, 1")
        a(f"s_add_u32 s{sA}, s{sA}, s{sB}")
        a(f"s_mul_i32 s{sH2}, s{sA}, {112 * 1024}")
        a(f"s_mul_i32 s{sB}, s{sW}, {28 * 1024}")
        a(f"s_add_u32 s{sH2}, s{sH2}, s{sB}")
        a(f"s_add_u32 s{sH2}, s{sH2}, {WS_H}")
        a(f"s_add_u32 s{sH3}, s{sH2}, {112 * 1024}")

    def p4(self, layer, t_poll_a, t_last_h):
        a = self.a
        acc, res = X0, WK + 96
        slots = [X0 + 64 + 8 * i for i in range(8)] + [WK + 16 + 8 * i for i in range(10)]
        NH = len(slots)
        order = [7 * p + g for g in range(4) for p in range(4)] + [7 * p + g for g in (4, 5, 6) for p in range(4)]
        ht = {}

        def ld(n):
            i, th = divmod(n, 2)
            a(f"s_add_u32 s{sA}, s{sH2 + th}, {order[i] * 1024}")
            ht[n] = self.load(V(slots[i % NH] + 4 * th, 4), S_WS, vL16, f"s{sA}")
        self.poll(vU, 3 + 5 * layer, first=t_poll_a)
        for n in range(4):
            ld(n)
        self.signal(4 + 5 * layer, after=t_last_h)
        self.stamp("h")
        lead = 2 * self.opt["lead4"]
        for n in range(4, lead):
            ld(n)
        nl, tp, tr = lead, None, None
        for i in range(28):
            for th in range(2):
                a.wait(vm=ht[2 * i + th])
                for nt in range(2):
                    self.mfma(V(acc + 16 * (2 * nt + th), 16), A((order[i] * 2 + nt) * 4, 4),
                              V(slots[i % NH] + 4 * th, 4), "0" if i == 0 else None)
                    if nt == 0:
                        if nl == 24:
                            tp = self.poll_issue(vU)
                        if nl == 32:
                            self.poll(vU, 4 + 5 * layer, first=tp)
                        if nl < 56:
                            ld(nl)
                            nl += 1
                        elif tr is None:
                            tr = self.res_load(res, WS_XMID[layer])
        self.stamp("p4gemm")
        if layer == 1:
            a(f"v_and_b32 v{vT}, 31, v{vLANE}")
            a(f"v_lshrrev_b32 v{vU}, 5, v{vLANE}")
            a(f"v_lshlrev_b32 v{vROW}, 10, v{vT}")
            a(f"v_lshl_add_u32 v{vROW}, v{vU}, 4, v{vROW}")
        own = WK
        self.scatter(acc, 16, own, P4S, 4096)
        a(f"s_mul_i32 s{sA}, s{sW}, 12288")
        a(f"s_add_u32 s{sA}, s{sA}, {P4S}")
        a(f"v_add_u32 v{vA0}, s{sA}, v{vL16}")
        a.drain(vm=False)
        a("s_barrier")
        ts = []
        for j in range(12):
            ts.append(a.ds(f"ds_read_b128 {V(acc + 4 * j, 4)}, v{vA0} offset:{1024 * j}"))
        for s in range(3):
            a.wait(lg=ts[4 * s + 3])
            for i in range(0, 16, 2):
                a(f"v_pk_add_f32 {V(own + i, 2)}, {V(own + i, 2)}, {V(acc + 16 * s + i, 2)}")
        a.wait(vm=tr)
        if layer == 0:
            self.res_finish(own, res, WS_A, 5)
            a("s_barrier")
        else:
            self.res_finish(own, res, None, None)
        self.stamp("x2")

    def body(self):
        for layer in range(self.opt["layers"]):
            acc = self.p1_start_l0() if layer == 0 else self.p1_start_l1()
            self.e1_kv(layer, *acc)
            self.s1_window(layer)
            self.p2(layer)
            self.p3(layer)
            if layer == 0 and self.opt["amp2"] == 1 and not self.slow:
                self.a("s_memrealtime s[12:13]")
                self.a("s_memtime s[18:19]")
                self.a.drain(vm=False)

    def build(self):
        a = self.a
        self.slow = False
        self.prologue()
        self.stamp("start")
        if self.diag or self.opt["amp"]:
            a("s_memrealtime s[6:7]")
            a("s_memtime s[14:15]")
        self.body()
        if self.opt["amp"]:
            a("s_waitcnt vmcnt(0)")
            a("s_memtime s[16:17]")
            a("s_memrealtime s[8:9]")
            a("s_waitcnt lgkmcnt(0)")
            a(f"s_cmp_lg_u32 s2, {self.opt['amp']}")
            a("s_cbranch_scc1 L_end")
            a(("s_sub_u32 s10, s8, s6", "s_sub_u32 s10, s8, s12", "s_sub_u32 s10, s6, s12")[self.opt["amp2"]])
            a("s_mul_i32 s10, s10, 20")
            if self.opt["ampc"]:
                a("s_sub_u32 s10, s16, s18" if self.opt["amp2"] else "s_sub_u32 s10, s16, s14")
            a("L_amp:")
            a("s_sleep 8")
            a("s_memrealtime s[6:7]")
            a("s_waitcnt lgkmcnt(0)")
            a("s_sub_u32 s11, s6, s8")
            a("s_cmp_lt_u32 s11, s10")
            a("s_cbranch_scc1 L_amp")
        if self.diag:
            a("s_memrealtime s[8:9]")
            a.drain(vm=False)
            a(f"v_writelane_b32 v{vDIAG}, s6, 61")
            a(f"v_writelane_b32 v{vDIAG}, s8, 62")
            a(f"v_writelane_b32 v{vDIAG}, s{sTO}, 63")
            a(f"s_lshl_b32 s{sA}, s{sCL}, 4")
            a(f"s_add_u32 s{sA}, s{sA}, s{sC}")
            a(f"s_lshl_b32 s{sA}, s{sA}, 2")
            a(f"s_add_u32 s{sA}, s{sA}, s{sW}")
            a(f"s_lshl_b32 s{sA}, s{sA}, 8")
            a(f"s_add_u32 s{sA}, s{sA}, {WS_SIZE - 0x40000}")
            a(f"v_lshlrev_b32 v{vT}, 2, v{vLANE}")
            self.store(V(vDIAG), S_WS, vT, f"s{sA}", width="dword")
        a("L_end:")
        a("s_endpgm")
        self.slow = True
        a("L_slow:")
        a.drain()
        a("s_barrier")
        a(f"s_lshr_b32 s{sCL}, s2, 4")
        a(f"s_and_b32 s{sC}, s2, 15")
        self.body()
        a("s_endpgm")
        lines, n = fix_hazards(a.lines)
        head = HEADER.format(lds=LDS_SIZE, name=NAME)
        return head + "\n".join(lines) + "\n" + TAIL.format(name=NAME), n

HEADER = """; Two interleaved (Hedgehog linear attention, bilinear GLU) blocks in one persistent launch: 256 workgroups, one per CU.
; Work split: 16 clusters of 16 workgroups, one cluster per 128 token rows.  Phases per layer:
;   P1 k,v,q = LN(x) Wqkv (2 heads per workgroup), feature maps, partial phi_k^T [v 1]  -> exchange over the 16 clusters
; LayerNorm is applied after the product: LN(x) W = rstd * (x W - mean * colsum(W)).
; Hand-offs inside a cluster: when the table in d_debug (every workgroup publishes the XCD it really runs on) shows that each
; cluster sits on one XCD, they stay in that XCD's L2 (plain stores, L1-bypassing loads); under any other placement every
; workgroup jumps to L_slow, a copy that writes all hand-offs through to memory.  Hand-offs between clusters always write through.
; @launch grid=(256,1,1) block=(256,1,1) lds={lds}
.amdgcn_target "amdgcn-amd-amdhsa--gfx950"
.text
.globl {name}_kernel
.p2align 8
.type {name}_kernel,@function
{name}_kernel:
"""
TAIL = """.section .rodata,"a"
.p2align 6
.amdhsa_kernel {name}_kernel
  .amdhsa_next_free_vgpr 512
  .amdhsa_next_free_sgpr 102
  .amdhsa_accum_offset 256
  .amdhsa_group_segment_fixed_size 0
  .amdhsa_kernarg_size 88
  .amdhsa_user_sgpr_count 2
  .amdhsa_user_sgpr_kernarg_segment_ptr 1
  .amdhsa_system_sgpr_workgroup_id_x 1
.end_amdhsa_kernel
"""

if __name__ == "__main__":
    out = sys.argv[1]
    flags = sys.argv[2:]
    opt = {f.split("=")[0]: int(f.split("=")[1]) for f in flags if "=" in f}
    g = Gen(diag="diag" in flags, force_slow="slow" in flags, opt=opt)
    text, n = g.build()
    open(out, "w").write(text)
    if g.diag:
        open(out + ".stamps", "w").write("\n".join(g.stamps))
    print(f"{out}: {len(text)} bytes, {text.count(chr(10))} lines, {n} hazard nops")
```

```python
import re

REG_RE = re.compile(r"(?<![\w.])([vas])(?:(\d+)|\[(\d+):(\d+)\])(?![\w])")
TRANS = ("v_exp_f32", "v_log_f32", "v_rcp_f32", "v_rsq_f32", "v_sqrt_f32")


def regs_of(op):
    out = set()
    op = op.strip()
    if op == "vcc":
        return {("s", 106), ("s", 107)}
    if op == "exec":
        return {("s", 126), ("s", 127)}
    if op == "m0":
        return {("s", 124)}
    for m in REG_RE.finditer(op):
        f = m.group(1)
        if m.group(2) is not None:
            out.add((f, int(m.group(2))))
        else:
            out.update((f, i) for i in range(int(m.group(3)), int(m.group(4)) + 1))
    return out


class Ins:
    __slots__ = ("text", "mn", "kind", "rd", "wr", "srcc", "ab", "data", "states", "label", "target")

    def __init__(self, text):
        self.text = text
        self.label = None
        self.target = None
        self.rd, self.wr, self.srcc, self.ab, self.data = set(), set(), set(), set(), set()
        self.states = 1
        t = text.split(";")[0].strip()
        if t.endswith(":"):
            self.kind, self.mn, self.label, self.states = "label", "", t[:-1], 0
            return
        if t.startswith(".") or not t:
            self.kind, self.mn, self.states = "dir", "", 0
            return
        parts = t.split(None, 1)
        mn = parts[0]
        for suf in ("_e32", "_e64", "_dpp", "_sdwa"):
            if mn.endswith(suf):
                mn = mn[: -len(suf)]
        self.mn = mn
        rest = parts[1] if len(parts) > 1 else ""
        ops = [o.strip() for o in re.split(r",(?![^\[]*\])", rest)] if rest else []
        if ops:
            ops[-1] = ops[-1].split()[0] if ops[-1].split() else ops[-1]
        R = [regs_of(o) for o in ops]
        U = lambda l: set().union(*l) if l else set()
        if mn.startswith("v_mfma"):
            self.kind = "mfma"
            self.wr, self.ab, self.srcc = R[0], R[1] | R[2], R[3]
            self.rd = self.ab | self.srcc
        elif mn.startswith("v_"):
            self.kind = "valu"
            if mn.startswith("v_permlane"):
                self.kind = "perm"
                self.rd = self.wr = R[0] | R[1]
            elif mn in ("v_add_co_u32", "v_addc_co_u32", "v_sub_co_u32"):
                self.wr, self.rd = R[0] | R[1], U(R[2:])
            else:
                self.wr, self.rd = R[0], U(R[1:])
                if mn in ("v_fmac_f32", "v_dot2c_f32_bf16", "v_writelane_b32") or "_dpp" in parts[0]:
                    self.rd = self.rd | R[0]
                if mn == "v_cndmask_b32" and len(ops) == 3:
                    self.rd = self.rd | regs_of("vcc")
        elif mn.startswith("buffer_") or mn.startswith("global_"):
            self.kind = "vmem"
            if mn in ("buffer_inv", "buffer_wbl2"):
                pass
            elif "load" in mn and not re.search(r"\blds\b", t) and "_lds_" not in mn:
                self.wr, self.rd = R[0], U(R[1:])
                if "d16" in mn:
                    self.rd = self.rd | R[0]
            elif "load" in mn:
                self.rd = U(R) | regs_of("m0")
            else:
                di = 1 if mn.startswith("global_") else 0
                self.rd = U(R)
                if "x4" in mn or "x3" in mn:
                    self.data = R[di]
                if "atomic" in mn and re.search(r"\bsc0\b", t):
                    self.wr = R[di]
        elif mn.startswith("ds_"):
            self.kind = "ds"
            if "read" in mn:
                self.wr, self.rd = R[0], U(R[1:])
            else:
                self.rd = U(R)
        elif mn.startswith("s_"):
            self.kind = "salu"
            if mn == "s_nop":
                self.states = int(ops[0], 0) + 1
            elif mn.startswith("s_cbranch") or mn == "s_branch":
                self.kind, self.target = "branch", ops[0]
            elif mn.startswith("s_cmp") or mn.startswith("s_bitcmp") or mn in (
                    "s_waitcnt", "s_barrier", "s_endpgm", "s_sleep", "s_setprio"):
                self.rd = U(R) if not mn == "s_waitcnt" else set()
            else:
                self.wr, self.rd = R[0], U(R[1:])
                if "saveexec" in mn:
                    self.wr = self.wr | regs_of("exec")
        else:
            raise ValueError("unknown instruction: " + text)


def is_valu(i):
    return i.kind in ("valu", "perm")


def vec(s):
    return {r for r in s if r[0] != "s"}


def sca(s):
    return {r for r in s if r[0] == "s"}


EXEC = regs_of("exec")
M0 = regs_of("m0")


def need(p, c):
    n = 0
    if is_valu(p):
        wv, ws = vec(p.wr), sca(p.wr)
        if c.kind == "mfma" and wv & c.rd:
            n = max(n, 2)
        if c.kind == "perm" and wv & c.rd:
            n = max(n, 2)
        if is_valu(c) and "_dpp" in c.text.split()[0] and wv & c.rd:
            n = max(n, 2)
        if c.mn in ("v_readfirstlane_b32", "v_readlane_b32") and wv & c.rd:
            n = max(n, 1)
        if p.mn in TRANS and is_valu(c) and wv & (c.rd | c.wr):
            n = max(n, 1)
        if p.mn.startswith("v_dot2") and (is_valu(c) or c.kind == "mfma") and c.mn != p.mn and wv & (c.rd | c.wr):
            n = max(n, 3)
        if p.mn.startswith("v_dot2") and c.kind in ("vmem", "ds") and wv & c.rd:
            n = max(n, 3)
        if ws:
            if is_valu(c) and ws & c.rd:
                n = max(n, 4 if c.mn in ("v_readlane_b32", "v_writelane_b32") else 2)
            if c.kind == "vmem" and ws & c.rd:
                n = max(n, 5)
            if c.kind in ("salu", "branch") and (ws & c.rd or c.mn in ("s_cbranch_vccnz", "s_cbranch_vccz")):
                n = max(n, 1)
            if ws & EXEC and c.kind in ("mfma", "perm"):
                n = max(n, 4)
    if p.kind == "mfma":
        lat = 12 if "32x32" in p.mn else 8
        if c.kind == "mfma":
            if p.wr & c.ab:
                n = max(n, lat)
            if p.wr & c.srcc and p.wr != c.srcc:
                n = max(n, lat - 2)
            if p.wr & c.wr and not (p.wr == c.srcc):
                n = max(n, lat)
        elif is_valu(c):
            if p.wr & (c.rd | c.wr):
                n = max(n, lat)
            if p.srcc & c.wr:
                n = max(n, 7 if lat == 12 else 3)
        elif c.kind in ("vmem", "ds"):
            if p.wr & (c.rd | c.wr):
                n = max(n, lat)
    if p.kind == "vmem" and p.data:
        if is_valu(c) and p.data & c.wr:
            n = max(n, 2)
        elif c.kind in ("mfma", "ds", "vmem") and p.data & c.wr:
            n = max(n, 1)
    if p.kind == "salu" and p.wr & M0 and c.kind == "vmem" and c.rd & M0:
        n = max(n, 1)
    return n


def fix_hazards(lines):
    ins = [Ins(l) for l in lines]
    inserted = 0
    i = 0
    labels = None
    while i < len(ins):
        c = ins[i]
        if c.kind in ("label", "dir"):
            i += 1
            continue
        if labels is None:
            labels = {}
            for j, x in enumerate(ins):
                if x.kind == "branch":
                    labels.setdefault(x.target, []).append(x)
            pos = {id(x): j for j, x in enumerate(ins)}
        short = 0
        stack = [(i - 1, 0)]
        seen = {}
        while stack:
            j, d = stack.pop()
            while j >= 0 and d < 13:
                if seen.get(j, 99) <= d:
                    break
                seen[j] = d
                p = ins[j]
                if p.kind == "label":
                    for b in labels.get(p.label, ()):
                        stack.append((pos[id(b)], d))
                    if j > 0 and ins[j - 1].mn in ("s_branch", "s_endpgm"):
                        break
                elif p.kind != "dir":
                    short = max(short, need(p, c) - d)
                    d += p.states
                j -= 1
        if short > 0:
            ins.insert(i, Ins(f"s_nop {short - 1}"))
            inserted += 1
            labels = None
            i += 1
        i += 1
    return [x.text for x in ins], inserted


class Asm:
    def __init__(self):
        self.lines = []
        self.vm = 0
        self.lg = 0
        self.vm_done = 0
        self.lg_done = 0
        self.uid = 0

    def __call__(self, text):
        for l in text.strip("\n").split("\n"):
            l = l.strip()
            if l:
                self.lines.append(l)

    def label(self, stem):
        self.uid += 1
        return f"L{stem}_{self.uid}"

    def vmop(self, text, counted=True):
        self(text)
        if counted:
            self.vm += 1
        return self.vm

    def ds(self, text, counted=True):
        self(text)
        if counted:
            self.lg += 1
        return self.lg

    def wait(self, vm=None, lg=None):
        parts = []
        if vm is not None and vm > self.vm_done:
            n = self.vm - vm
            if n < 63:
                parts.append(f"vmcnt({n})")
            self.vm_done = vm
        if lg is not None and lg > self.lg_done:
            n = min(self.lg - lg, 15)
            parts.append(f"lgkmcnt({n})")
            self.lg_done = max(lg, self.lg - n)
        if parts:
            self("s_waitcnt " + " ".join(parts))

    def drain(self, vm=True, lg=True):
        parts = []
        if vm:
            parts.append("vmcnt(0)")
            self.vm_done = self.vm
        if lg:
            parts.append("lgkmcnt(0)")
            self.lg_done = self.lg
        self("s_waitcnt " + " ".join(parts))


PROMOTE = ("v_mov_b32", "v_add_f32", "v_sub_f32", "v_mul_f32", "v_max_f32", "v_fmac_f32", "v_exp_f32", "v_rcp_f32", "v_rsq_f32",
           "v_add_u32", "v_and_b32", "v_or_b32", "v_xor_b32", "v_lshlrev_b32", "v_lshrrev_b32", "v_min_u32", "v_mul_u32_u24",
           "v_permlane32_swap_b32", "v_permlane16_swap_b32")


def sizes(lines):
    import subprocess, tempfile, os
    d = tempfile.mkdtemp()
    open(d + "/a.s", "w").write('.amdgcn_target "amdgcn-amd-amdhsa--gfx950"\n.text\n' + "\n".join(lines) + "\n")
    subprocess.run(["clang", "-x", "assembler", "-target", "amdgcn-amd-amdhsa", "-mcpu=gfx950", "-c",
                    d + "/a.s", "-o", d + "/a.o"], check=True)
    out = subprocess.run(["llvm-objdump", "-d", "--mcpu=gfx950", d + "/a.o"], capture_output=True,
                         text=True).stdout
    return [4 * len(l.split("//")[1].split(":")[1].split()) for l in out.splitlines() if "//" in l]


def align8(lines):
    idx = [i for i, l in enumerate(lines) if not (l.endswith(":") or l.startswith("."))]
    sz = sizes(lines)
    assert len(sz) == len(idx)
    lines = list(lines)
    off, cand = 0, None
    for i, n in zip(idx, sz):
        if n == 4:
            if lines[i].split()[0] in PROMOTE:
                cand = i
        else:
            if off % 8 and cand is not None:
                m, rest = lines[cand].split(None, 1)
                lines[cand] = m + "_e64 " + rest
                off += 4
            cand = None
        off += n
    return lines
```

```python
import sys
from asmlib import Asm, fix_hazards, align8

NAME = "interleave_layers__linear_kernel_hedgehog__glu_gated_bilinear__prompt"

WS_FLAG = 0x0
WS_S1F = 0x1000
WS_PREP = 0x3000
WS_ALT = 0x4000
WS_CS3 = 0x20000
WS_ST = 0x40000
WS_KVP = 0x100000
WS_KVP_ALT = 0x240000
KVP_SZ = 2304
WS_A = 0x400000
WS_B = 0x600000
WS_OBUF = (WS_A, WS_B)
WS_XMID = (WS_B, WS_A)
WS_H = 0xA00000
WS_W3 = 0x1200000
WS_W4 = 0x1600000
WS_SIZE = 0x1800000

W1KV = 0
PERS = 65536
CS1 = PERS
CS3 = PERS + 512
ZB = PERS + 2048
ZQ = ZB
ZW2 = ZB + 30720
ZS = ZB + 32768
ZAIMG = ZB + 24576
XS = ZB
PREP_G = ZB + 65536
PREP_U = PREP_G + 8192
PREP_D = PREP_U + 8192
PHI_IMG = ZB + 90112
CSP = PHI_IMG + 1024
CSPQ = PERS + 1408
NSLOT = 11
RING_AT = [ZB + 8192 * i for i in (0, 1, 2, 4, 5, 6, 7, 8, 9, 10, 3)]
P2S = ZB + 73728
P4S = ZB
LDS_SIZE = 163840

sTM = 4
S_AX, S_WQ, S_WS, S_DBG, S_PHI, S_WO, S_WG, S_WU, S_WD, S_OUT = 28, 32, 36, 40, 44, 48, 52, 56, 60, 64
sW, sCL, sC, sTT, sCT, sTH2, sKH, sTH = 68, 69, 70, 71, 72, 73, 74, 75
sXCC = 76
sA, sB, sD, sE, sF, sG = 77, 78, 79, 80, 81, 82
sFLAG = 83
sLOG2E = 84
sONES, sLO, sHI = 86, 87, 88
sH0, sH1, sH2, sH3 = 89, 90, 92, 93
sTO = 91
sBG = 94
sQ0, sQ1, sR0, sR1, sW3, sW3N, sW4 = 95, 96, 97, 98, 99, 100, 101

vLANE, vL16, vTR0, vTR1, vTRQ, vBG, vP, vT = 0, 1, 2, 3, 4, 5, 6, 7
vNMU, vRHO = 8, 9
vCS, vU, vA0, vA1, vROW, vDIAG = 10, 11, 12, 13, 14, 15
X0 = 16
WK = 144
aI, aPHI, aRING = 224, 232, 240


def V(a, n=1):
    return f"v{a}" if n == 1 else f"v[{a}:{a + n - 1}]"


def A(a, n=1):
    return f"a{a}" if n == 1 else f"a[{a}:{a + n - 1}]"


def S(a, n=4):
    return f"s[{a}:{a + n - 1}]"


class PacedAsm(Asm):
    def __init__(self):
        super().__init__()
        self.bg, self.on, self.acc, self.busy = [], False, 0, False

    def __call__(self, text):
        super().__call__(text)
        if self.on and not self.busy and text.startswith("v_"):
            mn = text.split()[0]
            self.acc += 32 if "mfma" in mn else 8 if mn[2:5] in ("exp", "rcp", "rsq", "per") else 4
            if self.bg and self.acc >= self.bg[0][0]:
                self.pop()

    def pop(self, n=1):
        for _ in range(n):
            if self.bg:
                self.busy = True
                self.bg.pop(0)[1]()
                self.busy = False
                self.acc = 0

    def flush(self):
        self.pop(len(self.bg))

    def capture(self, fn):
        n, on = len(self.lines), self.on
        self.on = False
        fn()
        self.on = on
        got = self.lines[n:]
        del self.lines[n:]
        return got


class Gen:
    def __init__(self, diag=False, force_slow=False, opt=None):
        self.a = PacedAsm()
        self.diag, self.force_slow = diag, force_slow
        self.nstamp, self.stamps = 0, []
        self.opt = dict(pre_a=3, pre_c0=8, t_first=2, gx=60, gw=60, xfirst=12, keep=4, late_r=1, hwt=1, pre_d=0, nt=0, keep0=8, keep1=20, align=1, pre_c=5, layers=2, bar=16, lead=12, lead3=10, lead4=6, prepat=0, wt0=1, amp=0, amp2=0, ampc=0, stf=0)
        self.opt.update(opt or {})

    def stamp(self, name):
        if not self.diag or self.slow:
            return
        a = self.a
        on, a.on = a.on, False
        a(f"s_memtime s[{sTM}:{sTM + 1}]")
        a.drain(vm=False)
        a(f"v_writelane_b32 v{vDIAG}, s{sTM}, {self.nstamp}")
        a.on = on
        self.stamps.append(name)
        self.nstamp += 1

    def mfma(self, d, x, y, c=None):
        self.a(f"v_mfma_f32_32x32x16_bf16 {d}, {x}, {y}, {c if c is not None else d}")

    def dma(self, srd, voff, soff, imm=0, counted=True, extra=""):
        o = f" offset:{imm}" if imm else ""
        return self.a.vmop(f"buffer_load_dwordx4 v{voff}, {S(srd)}, {soff} offen{o}{extra} lds", counted)

    def load(self, dst, srd, voff, soff, imm=0, sc1=True, counted=True, extra=""):
        o = (f" offset:{imm}" if imm else "") + extra
        return self.a.vmop(f"buffer_load_dwordx4 {dst}, v{voff}, {S(srd)}, {soff} offen{o}{' sc1' if sc1 else ''}", counted)

    def store(self, src, srd, voff, soff, imm=0, sc1=None, width="dwordx4", counted=True):
        if sc1 is None:
            sc1 = self.slow
        if sc1 == "first":
            sc1 = self.slow or bool(self.opt["wt0"])
        o = f" offset:{imm}" if imm else ""
        fl = " sc1" if sc1 else ""
        if not sc1 and width == "dwordx4":
            fl = ("", " nt", " sc1", " sc0")[self.opt["stf"]]
        return self.a.vmop(f"buffer_store_{width} {src}, v{voff}, {S(srd)}, {soff} offen{o}{fl}", counted)

    def dma_items(self, n, srd, voff, src, src_step, lds, lds0, gap, tags=None, key=None):
        a = self.a

        def item(i):
            def f():
                a(f"s_add_u32 m0, s{lds}, {lds0 + i * 1024}")
                a(f"s_add_u32 s{sBG}, s{src}, {i * src_step}")
                t = self.dma(srd, voff, f"s{sBG}", extra=" nt" if self.opt["nt"] & 4 else "")
                if tags is not None:
                    tags[key] = t
            return gap, f
        return [item(i) for i in range(n)]

    def tr(self, dst, addr, off):
        self.a.ds(f"ds_read_b64_tr_b16 {V(dst, 2)}, v{addr} offset:{off[0]}")
        return self.a.ds(f"ds_read_b64_tr_b16 {V(dst + 2, 2)}, v{addr} offset:{off[1]}")

    def flag_store(self, value, sreg=sFLAG, sc1=None):
        a = self.a
        a("s_mov_b64 exec, 1")
        self.store(V(vT), S_WS, vA1, 0, sc1=sc1, width="dword")
        a("s_mov_b64 exec, -1")

    def signal(self, value, sreg=sFLAG, sc1=None, after=None):
        a = self.a
        a(f"v_mov_b32 v{vT}, {value}")
        a(f"v_mov_b32 v{vA1}, s{sreg}")
        if after is None:
            a.drain(lg=False)
        else:
            a.wait(vm=after)
        self.flag_store(value, sreg, sc1)

    def spin(self, lp, done):
        a = self.a
        a(f"s_cbranch_vccz {done}")
        a(f"s_add_u32 s{sTO}, s{sTO}, 1")
        a(f"s_bitcmp0_b32 s{sTO}, 20")
        a(f"s_cbranch_scc1 {lp}")
        a(f"{done}:")

    def poll_issue(self, addr, srd=S_WS):
        return self.a.vmop(f"buffer_load_dword v{vP}, v{addr}, {S(srd)}, 0 offen sc1")

    def poll(self, addr, test, first=None, srd=S_WS):
        a = self.a
        on, a.on = a.on, False
        if not callable(test):
            value = test
            test = lambda: a(f"v_cmp_gt_u32 vcc, {value}, v{vP}")
        lp, done = a.label("poll"), a.label("go")
        if first is not None:
            a.wait(vm=first)
            test()
            a(f"s_cbranch_vccz {done}")
        a(f"{lp}:")
        a.vmop(f"buffer_load_dword v{vP}, v{addr}, {S(srd)}, 0 offen sc1", counted=first is None)
        if first is None:
            a.drain(lg=False)
        else:
            a("s_waitcnt vmcnt(0)")
        test()
        self.spin(lp, done)
        a.on = on

    def half_reduce2(self, x, y, op):
        a = self.a
        a(f"v_permlane32_swap_b32 v{x}, v{y}")
        a(f"{op} v{x}, v{x}, v{y}")
        a(f"v_mov_b32 v{y}, v{x}")
        a(f"v_permlane32_swap_b32 v{x}, v{y}")

    def finish_stats(self, s, q):
        a = self.a
        self.half_reduce2(s, q, "v_add_f32")
        a(f"v_mul_f32 v{vNMU}, {-1.0 / 512}, v{s}")
        a(f"v_mul_f32 v{q}, {1.0 / 512}, v{q}")
        a(f"v_fma_f32 v{q}, -v{vNMU}, v{vNMU}, v{q}")
        a(f"v_max_f32 v{q}, 0, v{q}")
        a(f"v_add_f32 v{q}, 0x3727c5ac, v{q}")
        a(f"v_rsq_f32 v{vRHO}, v{q}")

    def stats_items(self, base, dst, tags, voff, gap):
        a = self.a
        a(f"s_lshl_b32 s{sR0}, s{sTT}, 12")
        a(f"s_add_u32 s{sR0}, s{sR0}, {base}")
        a(f"v_and_b32 v{vT}, 31, v{vLANE}")
        a(f"v_lshlrev_b32 v{vT}, 4, v{vT}")
        a(f"v_lshrrev_b32 v{voff}, 5, v{vLANE}")
        a(f"v_lshl_add_u32 v{voff}, v{voff}, 11, v{vT}")

        def item(i):
            def f():
                tags["st"] = self.load(V(dst + 4 * i, 4), S_WS, voff, f"s{sR0}", 512 * i)
            return gap, f
        return [item(i) for i in range(4)]

    def sum_stats(self, src, packed=True):
        a = self.a
        for w in (8, 4, 2):
            for i in range(0, w, 2):
                if packed:
                    a(f"v_pk_add_f32 {V(src + i, 2)}, {V(src + i, 2)}, {V(src + w + i, 2)}")
                else:
                    a(f"v_add_f32 v{src + i}, v{src + i}, v{src + w + i}")
                    a(f"v_add_f32 v{src + i + 1}, v{src + i + 1}, v{src + w + i + 1}")
        self.finish_stats(src, src + 1)

    def normalize(self, acc, cs, dst):
        a = self.a
        for i in range(0, 16, 2):
            a(f"v_pk_fma_f32 {V(acc + i, 2)}, {V(cs + i, 2)}, {V(vNMU, 2)}, {V(acc + i, 2)} op_sel_hi:[1,0,1]")
        for i in range(0, 16, 2):
            a(f"v_pk_mul_f32 {V(acc + i, 2)}, {V(acc + i, 2)}, {V(vNMU, 2)} op_sel:[0,1] op_sel_hi:[1,1]")
        self.cvt16(acc, dst)

    def cvt16(self, src, dst):
        for i in range(8):
            self.a(f"v_cvt_pk_bf16_f32 v{dst + i}, v{src + 2 * i}, v{src + 2 * i + 1}")

    def read_cs(self, tile, dst):
        for j, o in enumerate((0, 16, 64, 80)):
            t = self.a.ds(f"ds_read_b128 {V(dst + 4 * j, 4)}, v{vCS} offset:{tile * 128 + o}")
        return t

    def softmax_pair(self, p, tmp, dst):
        a = self.a
        m0, m1 = tmp, tmp + 2
        for g, m in ((p, m0), (p + 8, m1)):
            a(f"v_max3_f32 v{m}, v{g}, v{g + 1}, v{g + 2}")
            a(f"v_max3_f32 v{m + 1}, v{g + 3}, v{g + 4}, v{g + 5}")
            a(f"v_max3_f32 v{m}, v{g + 6}, v{g + 7}, v{m}")
            a(f"v_max_f32 v{m}, v{m}, v{m + 1}")
        self.half_reduce2(m0, m1, "v_max_f32")
        for m in (m0, m1):
            a(f"v_mul_f32 v{m}, 0xbfb8aa3b, v{m}")
        for g, m in ((p, m0), (p + 8, m1)):
            for i in range(0, 8, 2):
                a(f"v_pk_fma_f32 {V(g + i, 2)}, {V(g + i, 2)}, {S(sLOG2E, 2)}, {V(m, 2)} op_sel_hi:[1,1,0]")
        for i in range(16):
            a(f"v_exp_f32 v{p + i}, v{p + i}")
        for g, m in ((p, m0), (p + 8, m1)):
            a(f"v_pk_add_f32 {V(m, 2)}, {V(g, 2)}, {V(g + 2, 2)}")
            a(f"v_pk_add_f32 {V(tmp + 4, 2)}, {V(g + 4, 2)}, {V(g + 6, 2)}")
            a(f"v_pk_add_f32 {V(m, 2)}, {V(m, 2)}, {V(tmp + 4, 2)}")
            a(f"v_add_f32 v{m}, v{m}, v{m + 1}")
        self.half_reduce2(m0, m1, "v_add_f32")
        a(f"v_rcp_f32 v{m0}, v{m0}")
        a(f"v_rcp_f32 v{m1}, v{m1}")
        for g, m in ((p, m0), (p + 8, m1)):
            for i in range(0, 8, 2):
                a(f"v_pk_mul_f32 {V(g + i, 2)}, {V(g + i, 2)}, {V(m, 2)} op_sel_hi:[1,0]")
        self.cvt16(p, dst)

    def natural_col(self, dst):
        a = self.a
        a(f"v_and_b32 v{vT}, 19, v{vLANE}")
        a(f"v_bfe_u32 v{dst}, v{vLANE}, 2, 1")
        a(f"v_lshl_add_u32 v{vT}, v{dst}, 3, v{vT}")
        a(f"v_bfe_u32 v{dst}, v{vLANE}, 3, 1")
        a(f"v_lshl_add_u32 v{vT}, v{dst}, 2, v{vT}")
        a(f"v_lshlrev_b32 v{dst}, 2, v{vT}")

    def fold_halves(self, acc):
        a = self.a
        a(f"v_add_f32 v{acc}, v{acc}, v{acc + 1}")
        a(f"v_mov_b32 v{acc + 1}, v{acc}")
        a(f"v_permlane32_swap_b32 v{acc}, v{acc + 1}")
        a(f"v_add_f32 v{acc}, v{acc}, v{acc + 1}")

    def colsum_write(self, base, accs):
        a = self.a
        self.natural_col(vU)
        a(f"s_mul_i32 s{sA}, s{sW}, {128 * len(accs)}")
        a(f"s_add_u32 s{sA}, s{sA}, {base}")
        a(f"v_add_u32 v{vU}, s{sA}, v{vU}")
        for tile, acc in enumerate(accs):
            self.fold_halves(acc)
            a.ds(f"ds_write_b32 v{vU}, v{acc} offset:{tile * 128}")

    def colsum_final(self, base, ntile, dst, tmp):
        a = self.a
        a(f"v_lshlrev_b32 v{vT}, 2, v{vLANE}")
        if ntile == 1:
            a(f"v_and_b32 v{vT}, 127, v{vT}")
        a(f"v_add_u32 v{vU}, {base}, v{vT}")
        for w in range(4):
            t = a.ds(f"ds_read_b32 v{tmp + w}, v{vU} offset:{128 * ntile * w}")
        a(f"v_add_u32 v{vU}, {dst}, v{vT}")
        a.wait(lg=t)
        a(f"v_add_f32 v{tmp}, v{tmp}, v{tmp + 1}")
        a(f"v_add_f32 v{tmp + 2}, v{tmp + 2}, v{tmp + 3}")
        a(f"v_add_f32 v{tmp}, v{tmp}, v{tmp + 2}")
        return a.ds(f"ds_write_b32 v{vU}, v{tmp}")

    def prologue(self):
        a = self.a
        if self.opt["amp2"] == 2:
            a("s_memrealtime s[12:13]")
        a("s_cmp_ge_u32 s2, 256")
        a("s_cbranch_scc1 L_end")
        a("s_getpc_b64 s[4:5]")
        for srd, off in ((S_AX, 0), (S_WQ, 8), (S_WS, 80), (S_WG, 40), (S_WU, 48), (S_WD, 56), (S_DBG, 72), (S_PHI, 16),
                         (S_WO, 24), (S_OUT, 64)):
            a(f"s_load_dwordx2 s[{srd}:{srd + 1}], s[0:1], {off}")
        a(f"v_lshrrev_b32 v{vU}, 6, v0")
        a(f"v_and_b32 v{vT}, 3, v0")
        a(f"v_lshl_add_u32 v{vT}, v{vU}, 2, v{vT}")
        a(f"s_lshr_b32 s{sG}, s2, 3")
        a(f"s_lshl_b32 s{sA}, s{sG}, 11")
        a(f"v_lshl_add_u32 v{vT}, v{vT}, 7, s{sA}")
        a.vmop(f"global_load_dword v255, v{vT}, s[4:5]")
        a(f"v_readfirstlane_b32 s{sW}, v{vU}")
        a(f"s_getreg_b32 s{sXCC}, hwreg(HW_REG_XCC_ID, 0, 4)")
        a(f"v_and_b32 v{vLANE}, 63, v0")
        a(f"v_lshlrev_b32 v{vL16}, 4, v{vLANE}")
        for srd, size in ((S_AX, 2 << 20), (S_WQ, 512 * 1536 * 2), (S_WS, WS_SIZE), (S_WG, 512 * 1792 * 2),
                          (S_WU, 512 * 1792 * 2), (S_WD, 1792 * 512 * 2), (S_DBG, 256), (S_PHI, 16384),
                          (S_WO, 512 * 512 * 2), (S_OUT, 2 << 20)):
            a(f"s_mov_b32 s{srd + 2}, {size}")
            a(f"s_mov_b32 s{srd + 3}, 0x20000")
        if self.diag:
            a(f"v_mov_b32 v{vDIAG}, 0")
        a(f"s_mov_b32 s{sTO}, 0")
        a(f"s_and_b32 s{sD}, s{sXCC}, 7")
        a(f"s_lshl_b32 s{sCL}, s{sD}, 1")
        a(f"s_lshr_b32 s{sA}, s2, 7")
        a(f"s_add_u32 s{sCL}, s{sCL}, s{sA}")
        a(f"s_bfe_u32 s{sC}, s2, 0x40003")
        a(f"s_lshl_b32 s{sE}, s{sG}, 2")
        a(f"s_add_u32 s{sE}, s{sE}, s{sW}")
        a(f"s_lshl_b32 s{sA}, s{sD}, 18")
        a(f"s_lshl_b32 s{sB}, s{sE}, 11")
        a(f"s_add_u32 s{sH2}, s{sA}, s{sB}")
        a(f"s_mul_i32 s{sH3}, s{sE}, 3072")
        a(f"v_and_b32 v{vT}, 1, v{vLANE}")
        a(f"v_bfe_u32 v{vU}, v{vLANE}, 1, 1")
        a(f"v_lshlrev_b32 v{vT}, 7, v{vT}")
        a(f"v_lshl_add_u32 v250, v{vU}, 10, v{vT}")
        a(f"v_and_b32 v{vT}, 15, v{vLANE}")
        a(f"v_lshlrev_b32 v251, 7, v{vT}")
        a("s_waitcnt lgkmcnt(0)")
        for r in range(self.opt["t_first"]):
            for _, f in self.touch_items(r):
                f()

    def clear_flags(self):
        a = self.a
        skip = a.label("clr")
        a(f"s_cmp_lg_u32 s{sW}, 3")
        a(f"s_cbranch_scc1 {skip}")
        a(f"s_lshl_b32 s{sA}, s{sCL}, 8")
        a(f"s_lshl_b32 s{sB}, s{sC}, 2")
        a(f"s_add_u32 s{sA}, s{sA}, s{sB}")
        a(f"s_lshl_b32 s{sB}, s{sC}, 8")
        a(f"s_lshl_b32 s{sD}, s{sCL}, 2")
        a(f"s_add_u32 s{sB}, s{sB}, s{sD}")
        a(f"s_lshr_b32 s{sD}, s2, 4")
        a(f"s_and_b32 s{sF}, s2, 15")
        a(f"s_lshl_b32 s{sG}, s{sD}, 8")
        a(f"s_lshl_b32 s{sBG}, s{sF}, 2")
        a(f"s_add_u32 s{sG}, s{sG}, s{sBG}")
        a(f"s_lshl_b32 s{sF}, s{sF}, 8")
        a(f"s_lshl_b32 s{sD}, s{sD}, 2")
        a(f"s_add_u32 s{sF}, s{sF}, s{sD}")
        a(f"s_lshl_b32 s{sD}, s2, 2")
        a(f"v_mov_b32 v{vU}, s{sB}")
        a(f"v_writelane_b32 v{vU}, s{sA}, 0")
        a(f"v_writelane_b32 v{vU}, s{sD}, 3")
        a(f"v_writelane_b32 v{vU}, s{sG}, 4")
        a(f"v_writelane_b32 v{vU}, s{sF}, 5")
        a(f"v_writelane_b32 v{vU}, s{sF}, 6")
        a(f"v_lshl_add_u32 v{vU}, v{vLANE}, 12, v{vU}")
        a(f"v_mov_b32 v{vT}, 0")
        a("s_mov_b64 exec, 0x7f")
        for w in range(4):
            self.store(V(vT), S_WS, vU, 0, 64 * w, sc1=True, width="dword", counted=False)
            if w == 0:
                a("s_mov_b64 exec, 0x77")
        a("s_mov_b64 exec, -1")
        a(f"{skip}:")

    def touch_items(self, r):
        a = self.a

        def w():
            a(f"s_add_u32 s{sBG}, s{sH3}, {128 * r * 3072 + 1024}")
            a.vmop(f"buffer_load_dword v253, v251, {S(S_WQ)}, s{sBG} offen")
        return [(40, w), (40, lambda: a.vmop(f"buffer_load_dword v254, v250, {S(S_AX)}, s{sH2} offen offset:{256 * r}"))]

    def late_touch_items(self, va, vb, dst):
        a = self.a
        a(f"s_lshr_b32 s{sQ1}, s2, 3")
        a(f"s_lshl_b32 s{sQ1}, s{sQ1}, 2")
        a(f"s_add_u32 s{sQ1}, s{sQ1}, s{sW}")
        a(f"s_mul_i32 s{sQ0}, s{sQ1}, {4 * 3072}")
        a(f"s_lshl_b32 s{sQ1}, s{sQ1}, 12")
        a(f"v_and_b32 v{vT}, 7, v{vLANE}")
        a(f"v_lshlrev_b32 v{vT}, 7, v{vT}")
        a(f"v_bfe_u32 v{va}, v{vLANE}, 3, 2")
        a(f"v_lshl_add_u32 v{vb}, v{va}, 10, v{vT}")
        a(f"v_mul_u32_u24 v{va}, 3072, v{va}")
        a(f"v_add_u32 v{va}, v{va}, v{vT}")
        return [(72, lambda: a.vmop(f"buffer_load_dword v{dst}, v{va}, {S(S_WQ)}, s{sQ0} offen")),
                (72, lambda: a.vmop(f"buffer_load_dword v{dst}, v{vb}, {S(S_WO)}, s{sQ1} offen"))]

    def slot_scalars(self):
        a = self.a
        a(f"s_lshl_b32 s{sTT}, s{sCL}, 2")
        a(f"s_add_u32 s{sTT}, s{sTT}, s{sW}")
        a(f"s_and_b32 s{sCT}, s{sC}, 7")
        a(f"s_lshr_b32 s{sTH2}, s{sC}, 3")
        a(f"s_lshr_b32 s{sKH}, s{sW}, 1")
        a(f"s_and_b32 s{sTH}, s{sW}, 1")

    def lane_consts(self):
        a = self.a
        a(f"v_bfe_u32 v{vT}, v{vLANE}, 2, 2")
        a(f"v_lshrrev_b32 v{vU}, 5, v{vLANE}")
        a(f"v_lshl_add_u32 v{vA0}, v{vU}, 3, v{vT}")
        a(f"v_and_b32 v{vA1}, 1, v{vLANE}")
        a(f"v_lshlrev_b32 v{vA1}, 4, v{vA1}")
        a(f"v_bfe_u32 v{vP}, v{vLANE}, 1, 1")
        a(f"v_lshl_add_u32 v{vA1}, v{vP}, 3, v{vA1}")
        a(f"v_bfe_u32 v{vP}, v{vLANE}, 4, 1")
        a(f"v_lshl_add_u32 v{vA1}, v{vP}, 5, v{vA1}")
        a(f"v_lshl_add_u32 v{vTRQ}, v{vA0}, 6, v{vA1}")
        a(f"v_add_u32 v{vTRQ}, {ZQ}, v{vTRQ}")
        a(f"v_lshl_add_u32 v{vTR0}, v{vA0}, 7, v{vA1}")
        a(f"v_lshrrev_b32 v{vT}, 1, v{vT}")
        a(f"v_lshl_add_u32 v{vTR0}, v{vT}, 6, v{vTR0}")
        a(f"v_xor_b32 v{vTR1}, 64, v{vTR0}")
        a(f"v_lshlrev_b32 v{vCS}, 5, v{vU}")
        a(f"v_add_u32 v{vCS}, {PERS}, v{vCS}")
        a(f"s_lshl_b32 s{sA}, s{sTT}, 6")
        a(f"s_lshl_b32 s{sB}, s{sC}, 2")
        a(f"s_add_u32 s{sFLAG}, s{sA}, s{sB}")
        if self.slow:
            a(f"s_add_u32 s{sFLAG}, s{sFLAG}, {WS_ALT}")
        a(f"s_mov_b32 s{sLOG2E}, 0x3fb8aa3b")
        a(f"s_mov_b32 s{sLOG2E + 1}, 0x3fb8aa3b")
        a(f"s_mov_b32 s{sONES}, 0x3f803f80")
        a(f"s_mov_b32 s{sLO}, 0x3f80")
        a(f"s_mov_b32 s{sHI}, 0x3f800000")
        a(f"v_bfe_u32 v{vT}, v{vLANE}, 2, 1")
        a(f"v_cmp_eq_u32 vcc, v{vT}, v{vU}")
        a(f"v_and_b32 v{vT}, 1, v{vLANE}")
        a(f"v_lshlrev_b32 v{vT}, 4, v{vT}")
        a(f"v_mov_b32 v{vA0}, 0x3f80")
        a(f"v_lshlrev_b32 v{vA0}, v{vT}, v{vA0}")
        a(f"v_cndmask_b32 v{vA0}, 0, v{vA0}, vcc")
        a(f"v_bfe_u32 v{vT}, v{vLANE}, 1, 1")
        a(f"v_bfe_u32 v{vA1}, v{vLANE}, 3, 2")
        a(f"v_lshl_add_u32 v{vT}, v{vA1}, 1, v{vT}")
        for r in range(8):
            a(f"v_cmp_eq_u32 vcc, {r}, v{vT}")
            a(f"v_cndmask_b32 v{vA1}, 0, v{vA0}, vcc")
            a(f"v_accvgpr_write_b32 a{aI + r}, v{vA1}")

    def w1q_items(self):
        a = self.a
        a(f"v_lshrrev_b32 v{vT}, 2, v{vLANE}")
        a(f"v_mul_u32_u24 v{vT}, 3072, v{vT}")
        a(f"v_and_b32 v{vBG}, 3, v{vLANE}")
        a(f"v_lshl_add_u32 v{vBG}, v{vBG}, 4, v{vT}")
        a(f"s_mul_i32 s{sQ0}, s{sW}, {128 * 3072}")
        a(f"s_lshl_b32 s{sB}, s{sC}, 6")
        a(f"s_add_u32 s{sQ0}, s{sQ0}, s{sB}")
        a(f"s_lshl_b32 s{sQ1}, s{sW}, 13")
        return self.dma_items(8, S_WQ, vBG, sQ0, 16 * 3072, sQ1, ZQ, 140)

    def swz_voff(self, dst, stride, lo, hi):
        a = self.a
        a(f"v_lshrrev_b32 v{vT}, 3, v{vLANE}")
        a(f"v_mul_u32_u24 v{vT}, {stride}, v{vT}")
        a(f"v_and_b32 v{dst}, 3, v{vLANE}")
        a(f"v_lshl_add_u32 v{vT}, v{dst}, 4, v{vT}")
        a(f"v_lshrrev_b32 v{dst}, 2, v{vLANE}")
        a(f"v_lshrrev_b32 v{vU}, 4, v{vLANE}")
        a(f"v_xor_b32 v{dst}, v{dst}, v{vU}")
        a(f"v_and_b32 v{dst}, 1, v{dst}")
        a(f"v_mul_u32_u24 v{dst}, {hi - lo}, v{dst}")
        if lo:
            a(f"v_add_u32 v{vT}, {lo}, v{vT}")
        a(f"v_add_u32 v{dst}, v{dst}, v{vT}")

    def w2_items(self):
        a = self.a
        self.swz_voff(vROW, 1024, 0, 64)
        a(f"s_lshl_b32 s{sH3}, s{sW}, 14")
        a(f"s_lshl_b32 s{sA}, s{sW}, 17")
        a(f"s_lshl_b32 s{sB}, s{sCT}, 7")
        a(f"s_add_u32 s{sH2}, s{sA}, s{sB}")
        a(f"s_sub_u32 s{sA}, s{sH2}, 16384")
        a(f"s_and_b32 s{sR0}, s{sA}, 0x7ffff")
        late = self.dma_items(2, S_WO, vROW, sR0, 8192, sH3, ZW2, 72)
        return self.dma_items(14, S_WO, vROW, sH2, 8192, sH3, ZW2 + 2048, 60), late

    def w2_read(self, kbs):
        a = self.a
        a(f"s_lshl_b32 s{sA}, s{sKH}, 15")
        a(f"s_add_u32 s{sA}, s{sA}, {ZW2 + 2048}")
        a(f"s_mul_i32 s{sB}, s{sKH}, {-32768 & 0xffffffff}")
        a(f"s_add_u32 s{sB}, s{sB}, {ZW2 + 32768}")
        a(f"v_add_u32 v{vT}, s{sA}, v{vTR0}")
        a(f"v_add_u32 v{vU}, s{sA}, v{vTR1}")
        for kb in kbs:
            if kb == 15:
                a(f"v_add_u32 v{vT}, s{sB}, v{vTR0}")
                a(f"v_add_u32 v{vU}, s{sB}, v{vTR1}")
            o = kb * 2048 if kb < 15 else 0
            for nt in range(2):
                t = self.tr(X0 + (kb * 2 + nt) * 4, (vT, vU)[nt], (o, o + 512))
        return t

    def ring_init(self):
        a = self.a
        self.ring_next, self.ring_tag = 0, {}
        a(f"s_lshl_b32 s{sW3N}, s{sW}, 11")
        a(f"s_mul_i32 s{sW3}, s{sC}, {224 * 1024}")
        a(f"s_add_u32 s{sW3}, s{sW3}, s{sW3N}")
        a(f"s_add_u32 s{sW3}, s{sW3}, {WS_W3}")

    def ring_one(self):
        a = self.a
        s, h = divmod(self.ring_next, 2)
        a(f"s_add_u32 m0, s{sW3N}, {RING_AT[s % NSLOT] + 1024 * h}")
        a(f"s_add_u32 s{sBG}, s{sW3}, {s * 8192 + 1024 * h}")
        self.ring_tag[s] = self.dma(S_WS, vL16, f"s{sBG}", extra=" nt" if self.opt["nt"] & 1 and not self.opt["keep0"] <= s < self.opt["keep1"] else "")
        self.ring_next += 1

    def ring_items(self, stages, gap=72):
        return [(gap, self.ring_one) for _ in range(2 * stages)]

    def w4_init(self):
        a = self.a
        self.w4_next = 0
        a(f"s_mul_i32 s{sW4}, s{sCT}, {224 * 1024}")
        a(f"s_mul_i32 s{sB}, s{sW}, {56 * 1024}")
        a(f"s_add_u32 s{sW4}, s{sW4}, s{sB}")
        a(f"s_add_u32 s{sW4}, s{sW4}, {WS_W4}")

    def w4_one(self):
        f = self.w4_next
        if f and f % 4 == 0:
            self.a(f"s_add_u32 s{sW4}, s{sW4}, 4096")
        self.load(A(4 * f, 4), S_WS, vL16, f"s{sW4}", (f % 4) * 1024, sc1=False, extra=" nt" if self.opt["nt"] & 2 else "")
        self.w4_next += 1

    def publish(self):
        a = self.a
        skip = a.label("pub")
        a(f"s_cmp_lg_u32 s{sW}, 3")
        a(f"s_cbranch_scc1 {skip}")
        a(f"s_min_u32 s{sD}, s{sXCC}, 14")
        a(f"s_add_u32 s{sD}, s{sD}, 1")
        a(f"s_and_b32 s{sA}, s2, 3")
        a(f"s_lshl_b32 s{sA}, s{sA}, 3")
        a(f"s_lshl_b32 s{sA}, s{sD}, s{sA}")
        a(f"s_and_b32 s{sB}, s2, 0xfc")
        a(f"v_mov_b32 v{vT}, s{sA}")
        a(f"v_mov_b32 v{vU}, s{sB}")
        a("s_mov_b64 exec, 1")
        a.vmop(f"buffer_atomic_or v{vT}, v{vU}, {S(S_DBG)}, 0 offen sc1", counted=False)
        a("s_mov_b64 exec, -1")
        a(f"{skip}:")

    def prep_done(self):
        a = self.a
        skip = a.label("pd")
        a(f"s_cmp_lg_u32 s{sW}, 3")
        a(f"s_cbranch_scc1 {skip}")
        a(f"s_lshl_b32 s{sA}, s2, 2")
        a(f"s_add_u32 s{sA}, s{sA}, {WS_PREP}")
        a(f"v_mov_b32 v{vT}, 1")
        a(f"v_mov_b32 v{vU}, s{sA}")
        a("s_mov_b64 exec, 1")
        self.store(V(vT), S_WS, vU, 0, sc1=True, width="dword", counted=False)
        a("s_mov_b64 exec, -1")
        a(f"{skip}:")

    def prep_wait(self, dst, first):
        a = self.a
        lp, done = a.label("pw"), a.label("pwok")

        def test():
            a(f"v_min_u32 v{dst}, v{dst}, v{dst + 1}")
            a(f"v_min3_u32 v{dst}, v{dst}, v{dst + 2}, v{dst + 3}")
            a(f"v_cmp_eq_u32 vcc, 0, v{dst}")
        a.wait(vm=first)
        test()
        a(f"s_cbranch_vccz {done}")
        a(f"{lp}:")
        self.prep_poll(dst, counted=False)
        a("s_waitcnt vmcnt(0)")
        test()
        self.spin(lp, done)

    def prep_poll(self, dst, counted=True):
        self.a(f"s_mov_b32 s{sBG}, {WS_PREP}")
        return self.load(V(dst, 4), S_WS, vL16, f"s{sBG}", counted=counted)

    def table_check(self, first):
        a = self.a

        def test():
            a(f"v_add_u32 v{vU}, 0x7f7f7f7f, v{vP}")
            a(f"v_and_b32 v{vU}, 0x80808080, v{vU}")
            a(f"v_cmp_ne_u32 vcc, 0x80808080, v{vU}")
        a(f"v_lshlrev_b32 v{vA0}, 2, v{vLANE}")
        self.poll(vA0, test, first=first, srd=S_DBG)
        a(f"v_mov_b32 v{vU}, 0")
        for b in range(4):
            a(f"v_bfe_u32 v{vT}, v{vP}, {8 * b}, 4")
            a(f"v_lshlrev_b32 v{vT}, v{vT}, 1")
            a(f"v_or_b32 v{vU}, v{vU}, v{vT}")
        a(f"v_or_b32_dpp v{vU}, v{vU}, v{vU} quad_perm:[1,0,3,2] row_mask:0xf bank_mask:0xf")
        a(f"v_cmp_ne_u32 vcc, 0x1fe, v{vU}")
        a("s_branch L_slow" if self.force_slow else "s_cbranch_vccnz L_slow")

    def prep_items(self):
        a = self.a
        va, vb = WK + 78, WK + 79
        a(f"v_lshrrev_b32 v{vT}, 3, v{vLANE}")
        a(f"v_and_b32 v{vU}, 7, v{vLANE}")
        a(f"v_lshlrev_b32 v{vU}, 4, v{vU}")
        a(f"v_lshl_add_u32 v{vb}, v{vT}, 10, v{vU}")
        a(f"v_mul_u32_u24 v{vT}, 3584, v{vT}")
        a(f"v_add_u32 v{va}, v{vT}, v{vU}")
        a(f"s_min_u32 s{sF}, s2, 223")
        a(f"s_and_b32 s{sA}, s{sF}, 7")
        a(f"s_lshl_b32 s{sA}, s{sA}, 2")
        a(f"s_add_u32 s{sA}, s{sA}, s{sW}")
        a(f"s_mul_i32 s{sA}, s{sA}, {16 * 3584}")
        a(f"s_lshr_b32 s{sB}, s{sF}, 3")
        a(f"s_lshl_b32 s{sB}, s{sB}, 7")
        a(f"s_add_u32 s{sW3}, s{sA}, s{sB}")
        a(f"s_lshl_b32 s{sW3N}, s{sW}, 11")
        a(f"s_lshl_b32 s{sA}, s{sF}, 2")
        a(f"s_add_u32 s{sA}, s{sA}, s{sW}")
        a(f"s_and_b32 s{sB}, s{sA}, 7")
        a(f"s_lshl_b32 s{sB}, s{sB}, 7")
        a(f"s_lshr_b32 s{sA}, s{sA}, 3")
        a(f"s_lshl_b32 s{sA}, s{sA}, 14")
        a(f"s_add_u32 s{sW4}, s{sA}, s{sB}")
        return [self.dma_items(2, S_WG, va, sW3, 8 * 3584, sW3N, PREP_G, 60),
                self.dma_items(2, S_WU, va, sW3, 8 * 3584, sW3N, PREP_U, 60),
                self.dma_items(2, S_WD, vb, sW4, 8192, sW3N, PREP_D, 60)]

    def prep_setup(self):
        a = self.a
        a(f"s_lshr_b32 s{sA}, s2, 3")
        a(f"s_lshl_b32 s{sA}, s{sA}, 2")
        a(f"s_add_u32 s{sA}, s{sA}, s{sW}")
        a(f"s_mul_i32 s{sB}, s{sA}, 9363")
        a(f"s_lshr_b32 s{sB}, s{sB}, 16")
        a(f"s_mul_i32 s{sD}, s{sB}, 7")
        a(f"s_sub_u32 s{sD}, s{sA}, s{sD}")
        a(f"s_mul_i32 s{sB}, s{sB}, {224 * 1024}")
        a(f"s_add_u32 s{sB}, s{sB}, {WS_W3}")
        a(f"s_and_b32 s{sF}, s2, 7")
        a("s_mov_b32 s11, 4096")
        a(f"s_cmp_ge_u32 s{sD}, 4")
        a("s_cselect_b32 s11, 2048, s11")
        a(f"s_cselect_b32 s{sG}, {124 * 1024}, 0")
        a(f"s_cmp_ge_u32 s{sD}, 6")
        a("s_cselect_b32 s11, 1024, s11")
        a(f"s_cselect_b32 s{sG}, {186 * 1024}, s{sG}")
        a(f"s_lshl_b32 s{sD}, s{sD}, 10")
        a(f"s_add_u32 s{sB}, s{sB}, s{sD}")
        a(f"s_add_u32 s{sB}, s{sB}, s{sG}")
        a(f"s_mul_i32 s{sD}, s{sF}, s11")
        a(f"s_lshl_b32 s{sD}, s{sD}, 2")
        a(f"s_add_u32 s10, s{sB}, s{sD}")
        a(f"s_mul_i32 s{sF}, s{sF}, 112")
        a(f"s_add_u32 s{sF}, s{sF}, s{sA}")
        a(f"s_lshl_b32 s{sF}, s{sF}, 7")
        a(f"s_add_u32 s12, s{sF}, {WS_CS3}")
        a(f"s_lshl_b32 s{sA}, s2, 2")
        a(f"s_add_u32 s{sA}, s{sA}, s{sW}")
        a(f"s_and_b32 s{sD}, s{sA}, 7")
        a(f"s_mul_i32 s{sD}, s{sD}, {224 * 1024}")
        a(f"s_lshr_b32 s{sA}, s{sA}, 3")
        a(f"s_lshl_b32 s{sA}, s{sA}, 11")
        a(f"s_add_u32 s{sA}, s{sA}, s{sD}")
        a(f"s_add_u32 s13, s{sA}, {WS_W4}")

    def prep_write(self, tmp):
        a = self.a
        va, vb, vc = vA0, vA1, vU
        on, a.on = a.on, False
        skip = a.label("noprepw")
        a("s_cmp_ge_u32 s2, 224")
        a(f"s_cbranch_scc1 {skip}")
        a(f"v_and_b32 v{va}, 0xffffffbf, v{vTR0}")
        a(f"s_lshl_b32 s{sA}, s{sW}, 11")
        a(f"s_add_u32 s{sA}, s{sA}, {PREP_D}")
        a(f"v_add_u32 v{vb}, s{sA}, v{va}")
        a(f"v_and_b32 v{vT}, 32, v{va}")
        a(f"v_and_b32 v{va}, 0xffffffdf, v{va}")
        a(f"v_lshl_add_u32 v{va}, v{vT}, 8, v{va}")
        a(f"s_lshl_b32 s{sA}, s{sW}, 5")
        a(f"s_add_u32 s{sA}, s{sA}, {PREP_G}")
        a(f"v_add_u32 v{va}, s{sA}, v{va}")
        for j in range(4):
            a(f"ds_read_b64_tr_b16 {V(tmp + 4 * j, 2)}, v{va} offset:{j * 2048}")
            a(f"ds_read_b64_tr_b16 {V(tmp + 4 * j + 2, 2)}, v{va} offset:{j * 2048 + 512}")
        for j in range(2):
            a(f"ds_read_b64_tr_b16 {V(tmp + 16 + 4 * j, 2)}, v{vb} offset:{j * 64}")
            a(f"ds_read_b64_tr_b16 {V(tmp + 18 + 4 * j, 2)}, v{vb} offset:{j * 64 + 512}")
        acc = tmp + 24
        self.natural_col(vc)
        a(f"v_mov_b32 v{acc}, 0")
        a(f"v_mov_b32 v{acc + 1}, 0")
        a("s_waitcnt lgkmcnt(0)")
        a("s_barrier")
        for j in range(4):
            self.store(V(tmp + 4 * j, 4), S_WS, vL16, "s10", sc1=True, counted=False)
            if j < 3:
                a("s_add_u32 s10, s10, s11")
            for i in range(4):
                a(f"v_dot2c_f32_bf16 v{acc + (i & 1)}, s{sONES}, v{tmp + 4 * j + i}")
        for j in range(2):
            self.store(V(tmp + 16 + 4 * j, 4), S_WS, vL16, "s13", 1024 * j, sc1=True, counted=False)
        self.fold_halves(acc)
        self.store(V(acc), S_WS, vc, "s12", sc1=True, width="dword", counted=False)
        done = a.label("prepd")
        a(f"s_branch {done}")
        a(f"{skip}:")
        a("s_barrier")
        a(f"{done}:")
        a.on = on

    def p1_start_l0(self):
        a = self.a
        first = not self.slow
        self.slot_scalars()
        xa, wv = WK, WK + 10
        a(f"v_lshrrev_b32 v{vT}, 3, v{vLANE}")
        a(f"v_lshrrev_b32 v{vU}, 4, v{vLANE}")
        a(f"v_xor_b32 v{vU}, v{vU}, v{vLANE}")
        a(f"v_and_b32 v{vU}, 7, v{vU}")
        a(f"v_lshlrev_b32 v{vU}, 4, v{vU}")
        a(f"v_lshl_add_u32 v{xa}, v{vT}, 10, v{vU}")
        a(f"v_xor_b32 v{xa + 1}, 64, v{xa}")
        a(f"s_lshl_b32 s{sH0}, s{sTT}, 15")
        a(f"s_lshl_b32 s{sH1}, s{sW}, 14")
        a(f"s_add_u32 s{sH1}, s{sH1}, {XS}")
        self.swz_voff(wv, 3072, 1024, 2048)
        a(f"s_mul_i32 s{sR0}, s{sW}, {32 * 3072}")
        a(f"s_lshl_b32 s{sB}, s{sC}, 6")
        a(f"s_add_u32 s{sR0}, s{sR0}, s{sB}")
        a(f"s_lshl_b32 s{sR1}, s{sW}, 12")
        tg, done_items = {}, [0] * 4

        def range_items(r):
            def xi(s, i):
                def f():
                    a(f"s_add_u32 m0, s{sH1}, {(s % 4) * 4096 + i * 1024}")
                    a(f"s_add_u32 s{sBG}, s{sH0}, {i * 8192 + s * 128}")
                    tg["x", s] = self.dma(S_AX, xa + (i & 1), f"s{sBG}")
                    done_items[r] += 1
                return self.opt["gx"], f

            def wi(i):
                def f():
                    a(f"s_add_u32 m0, s{sR1}, {r * 16384 + i * 1024}")
                    a(f"s_add_u32 s{sBG}, s{sR0}, {(128 * r + 8 * i) * 3072}")
                    tg["w", r] = self.dma(S_WQ, wv, f"s{sBG}")
                    done_items[r] += 1
                return self.opt["gw"], f
            return [xi(2 * r, i) for i in range(4)] + [xi(2 * r + 1, i) for i in range(4)] + [wi(i) for i in range(4)]
        a(f"s_mov_b32 m0, {PHI_IMG}")
        a(f"s_lshl_b32 s{sA}, s{sC}, 10")
        self.dma(S_PHI, vL16, f"s{sA}")
        tch = self.touch_items if first else (lambda r: [])
        r0, r1 = range_items(0), range_items(1)
        if self.opt["t_first"] == 1:
            a.bg = r0[:8] + tch(1) + r0[8:] + tch(2) + r1[:8] + tch(3) + r1[8:]
        else:
            a.bg = r0 + tch(2) + r1 + tch(3)
        a.pop(6)
        if first:
            self.clear_flags()
        late = self.late_touch_items(vBG, vROW, vP) if first else []
        prep = self.prep_items() if first else [[], [], []]
        a.on = True
        self.lane_consts()
        ra = WK + 2
        a(f"v_and_b32 v{vT}, 31, v{vLANE}")
        a(f"v_bfe_u32 v{vU}, v{vLANE}, 1, 3")
        a(f"v_lshrrev_b32 v{vP}, 5, v{vLANE}")
        a(f"v_xor_b32 v{vU}, v{vU}, v{vP}")
        a(f"v_lshlrev_b32 v{vU}, 4, v{vU}")
        a(f"v_lshl_add_u32 v{vU}, v{vT}, 7, v{vU}")
        for j in range(4):
            a(f"v_xor_b32 v{ra + j}, {32 * j}, v{vU}")
            a(f"v_add_u32 v{ra + j}, s{sH1}, v{ra + j}")
        ss, sq, ck, cv, ca = WK + 6, WK + 8, WK + 12, WK + 14, WK + 76
        for r in (ss, ss + 1, sq, sq + 1, ck, ck + 1, cv, cv + 1):
            a(f"v_mov_b32 v{r}, 0")
        a(f"v_add_u32 v{ca}, s{sR1}, v{vTR0}")
        a(f"v_add_u32 v{ca + 1}, s{sR1}, v{vTR1}")
        if first:
            self.prep_setup()
        a.pop(len(a.bg) - self.opt["keep"])
        self.stamp("issued")
        accK, accV, ring, tmp = WK + 16, WK + 32, WK + 48, WK + 80
        def xread(r):
            while done_items[r] < 8:
                a.pop()
            a.wait(vm=tg["x", 2 * r + 1])
            return [f"ds_read_b128 {V(X0 + (4 * s + j) * 4, 4)}, v{ra + j} offset:{(s % 4) * 4096}"
                    for s in (2 * r, 2 * r + 1) for j in range(4)]
        for l in xread(0):
            a.ds(l)
        for r in range(4):
            while done_items[r] < 12:
                a.pop()
            a.wait(vm=tg["w", r])
            for j in range(2):
                self.tr(tmp + 8 * j, ca, (r * 16384 + j * 2048, r * 16384 + j * 2048 + 512))
                t = self.tr(tmp + 8 * j + 4, ca + 1, (r * 16384 + j * 2048, r * 16384 + j * 2048 + 512))
            a("s_barrier")
            a.wait(lg=t - 8)
            if r < 2:
                a.bg += range_items(r + 2)
            if r == self.opt["late_r"]:
                a.bg += late + sum(prep, [])
            pre = self.gemm_kv_head(8 * r, ring)
            for x in range(X0 + 32 * r, X0 + 32 * r + 32):
                a(f"v_dot2c_f32_bf16 v{ss + (x & 1)}, s{sONES}, v{x}")
                a(f"v_dot2c_f32_bf16 v{sq + (x & 1)}, v{x}, v{x}")
            a.wait(lg=t)
            for j in range(16):
                a(f"v_dot2c_f32_bf16 v{(cv if j & 4 else ck) + (j & 1)}, s{sONES}, v{tmp + j}")
            self.stamp(f"range{r}")
            self.gemm_kv(range(8 * r, 8 * r + 8), None, accK, accV, ring, pre=pre,
                         hook=(8 * r + 5, (lambda r=r: xread(r + 1))) if r < 3 else None)
            if r == 0:
                self.phi_operands(tmp)
        rest, a.bg = a.bg, []
        a.on = False
        self.colsum_write(CSP, (ck, cv))
        a(f"v_add_f32 v{ss}, v{ss}, v{ss + 1}")
        a(f"v_add_f32 v{sq}, v{sq}, v{sq + 1}")
        self.finish_stats(ss, sq)
        a.drain(vm=False)
        a("s_barrier")
        if first:
            self.publish()
        self.colsum_final(CSP, 2, CS1, tmp)
        a.bg = rest
        a.flush()
        a.bg = self.w1q_items()
        self.stamp("kvgemm")
        return accK, accV

    def out_touch_items(self):
        a = self.a
        va = WK + 110
        self.res_addr()
        a(f"s_lshl_b32 s15, s{sTT}, 15")
        a(f"s_lshl_b32 s{sB}, s{sC}, 11")
        a(f"s_add_u32 s15, s15, s{sB}")
        a(f"s_add_u32 s15, s15, {WS_A}")
        a(f"s_add_u32 s16, s{sE}, {WS_B}")
        a(f"s_sub_u32 s16, s16, s15")
        a(f"s_add_u32 s17, s{sF}, {WS_ST}")
        a(f"s_sub_u32 s17, s17, s15")
        a(f"v_and_b32 v{vT}, 15, v{vLANE}")
        a(f"v_lshlrev_b32 v{vT}, 7, v{vT}")
        a(f"v_mov_b32 v{va}, s17")
        a(f"v_and_b32 v{vU}, 0x1ff, v{vT}")
        a(f"v_add_u32 v{va}, v{va}, v{vU}")
        a(f"v_add_u32 v{vU}, s16, v{vT}")
        a(f"v_cmp_gt_u32 vcc, 48, v{vLANE}")
        a(f"v_cndmask_b32 v{va}, v{va}, v{vU}, vcc")
        a(f"v_cmp_gt_u32 vcc, 16, v{vLANE}")
        a(f"v_cndmask_b32 v{va}, v{va}, v{vT}, vcc")
        a(f"v_add_u32 v{va}, s15, v{va}")
        return [(72, lambda: a.vmop(f"buffer_load_dword v{va}, v{va}, {S(S_WS)}, 0 offen"))]

    def phi_operands(self, tmp):
        a = self.a
        a(f"v_bfe_u32 v{vT}, v{vLANE}, 2, 2")
        a(f"v_lshrrev_b32 v{vU}, 5, v{vLANE}")
        a(f"v_lshl_add_u32 v{vT}, v{vU}, 3, v{vT}")
        a(f"v_and_b32 v{vU}, 3, v{vLANE}")
        a(f"v_lshlrev_b32 v{vU}, 3, v{vU}")
        a(f"v_lshl_add_u32 v{vT}, v{vT}, 5, v{vU}")
        a(f"v_add_u32 v{vT}, {PHI_IMG}, v{vT}")
        for h in range(2):
            t = self.tr(tmp + 4 * h, vT, (512 * h, 512 * h + 128))
        a(f"v_bfe_u32 v{vU}, v{vLANE}, 4, 1")
        a(f"v_mul_u32_u24 v{vU}, 0x8000, v{vU}")
        a(f"v_lshl_or_b32 v{vU}, v{vU}, 16, v{vU}")
        a.wait(lg=t)
        for r in range(8):
            a(f"v_xor_b32 v{tmp + r}, v{vU}, v{tmp + r}")
            a(f"v_accvgpr_write_b32 a{aPHI + r}, v{tmp + r}")

    def p1_start_l1(self):
        a = self.a
        xt = {}
        later = self.stats_items(WS_ST, WK + 80, xt, vA0, 60) + self.w1q_items()
        self.rows_poll_addr()
        self.poll(vU, 5)
        self.stamp("S5")
        xi = self.x_items(WS_A, xt, 60)
        a.bg = xi[:20] + later[:4] + xi[20:] + later[4:]
        a.pop(self.opt["lead"])
        a.on = True
        self.gemm_kv(range(32), xt, WK + 16, WK + 32, WK + 48,
                     extra=(22, a.capture(lambda: self.sum_stats(WK + 80, packed=False))))
        self.stamp("kvgemm")
        return WK + 16, WK + 32

    def rows_poll_addr(self):
        a = self.a
        a(f"s_lshl_b32 s{sA}, s{sCL}, 8")
        a(f"s_lshl_b32 s{sB}, s{sTH}, 6")
        a(f"s_add_u32 s{sA}, s{sA}, s{sB}")
        a(f"s_lshl_b32 s{sB}, s{sKH}, 5")
        a(f"s_add_u32 s{sA}, s{sA}, s{sB}")
        if self.slow:
            a(f"s_add_u32 s{sA}, s{sA}, {WS_ALT}")
        a(f"v_and_b32 v{vT}, 7, v{vLANE}")
        a(f"v_bfe_u32 v{vU}, v{vLANE}, 3, 1")
        a(f"v_lshlrev_b32 v{vU}, 7, v{vU}")
        a(f"v_lshl_add_u32 v{vU}, v{vT}, 2, v{vU}")
        a(f"v_add_u32 v{vU}, s{sA}, v{vU}")

    def x_items(self, base, tags, gap):
        a = self.a
        a(f"s_lshl_b32 s{sH0}, s{sTT}, 15")
        a(f"s_add_u32 s{sH0}, s{sH0}, {base}")

        def item(kb):
            def f():
                if kb and kb % 4 == 0:
                    a(f"s_add_u32 s{sH0}, s{sH0}, 4096")
                tags[kb] = self.load(V(X0 + 4 * kb, 4), S_WS, vL16, f"s{sH0}", (kb % 4) * 1024)
            return gap, f
        return [item(kb) for kb in range(32)]

    def kv_read(self, kb, ring):
        r = ring + (kb % 3) * 8
        self.tr(r, vTR0, (kb * 2048, kb * 2048 + 512))
        return self.tr(r + 4, vTR1, (kb * 2048, kb * 2048 + 512))

    def gemm_kv_head(self, kb, ring):
        return {kb: self.kv_read(kb, ring), kb + 1: self.kv_read(kb + 1, ring)}

    def gemm_kv(self, kbs, xt, accK, accV, ring, extra=None, pre=None, hook=None):
        a = self.a
        tg = pre or self.gemm_kv_head(kbs[0], ring)
        more = []
        for kb in kbs:
            if kb + 2 <= kbs[-1]:
                tg[kb + 2] = self.kv_read(kb + 2, ring)
            a.wait(vm=xt[kb] if xt is not None else None, lg=tg[kb])
            r = ring + (kb % 3) * 8
            x = V(X0 + 4 * kb, 4)
            for acc, w in ((accK, r), (accV, r + 4)):
                self.mfma(V(acc, 16), V(w, 4), x, "0" if kb == 0 else None)
                if hook and kb == hook[0] and acc == accV:
                    more = hook[1]()
                for _ in range(2):
                    if extra and kb >= extra[0] and extra[1]:
                        Asm.__call__(a, extra[1].pop(0))
                    if more and kb > hook[0]:
                        a.ds(more.pop(0))
        assert not (extra and extra[1]) and not more

    def e1_kv(self, layer, accK, accV):
        a = self.a
        a.on = True
        cs, Kb, Vb, PB, VB, tmp = WK + 48, WK + 80, WK + 88, WK + 96, WK, WK + 48
        tk = self.read_cs(0, cs)
        tv = self.read_cs(1, cs + 16)
        a.wait(lg=tk)
        self.normalize(accK, cs, Kb)
        PA = accK
        self.mfma(V(PA, 16), A(aPHI, 4), V(Kb, 4), "0")
        self.mfma(V(PB, 16), A(aPHI + 4, 4), V(Kb + 4, 4), "0")
        a.wait(lg=tv)
        self.normalize(accV, cs + 16, Vb)
        VA = accV
        self.mfma(V(VA, 16), V(Vb, 4), A(aI, 4), "0")
        self.mfma(V(VB, 16), V(Vb + 4, 4), A(aI + 4, 4), "0")
        phA, phB = tmp + 8, tmp + 16
        self.softmax_pair(PA, tmp, phA)
        VAb, VBb = Kb, Vb
        self.cvt16(VA, VAb)
        TA = VA
        self.mfma(V(TA, 16), V(phA, 4), A(aI, 4), "0")
        self.mfma(V(TA, 16), V(phA + 4, 4), A(aI + 4, 4))
        self.cvt16(VB, VBb)
        self.softmax_pair(PB, tmp, phB)
        TB = VB
        self.mfma(V(TB, 16), V(phB, 4), A(aI, 4), "0")
        self.mfma(V(TB, 16), V(phB + 4, 4), A(aI + 4, 4))
        KV = PA

        def zsum(T):
            for w in (8, 4, 2):
                for i in range(0, w, 2):
                    a(f"v_pk_add_f32 {V(T + i, 2)}, {V(T + i, 2)}, {V(T + w + i, 2)}")
            a(f"v_add_f32 v{T}, v{T}, v{T + 1}")
        self.cvt16(TA, phA)
        self.mfma(V(KV, 16), V(phA, 4), V(VAb, 4), "0")
        self.mfma(V(KV, 16), V(phA + 4, 4), V(VAb + 4, 4))
        zsum(TA)
        self.cvt16(TB, phB)
        self.mfma(V(KV, 16), V(phB, 4), V(VBb, 4))
        self.mfma(V(KV, 16), V(phB + 4, 4), V(VBb + 4, 4))
        zsum(TB)
        a.flush()
        a.on = False
        a(f"v_permlane32_swap_b32 v{TA}, v{TB}")
        a(f"v_add_f32 v{TA}, v{TA}, v{TB}")
        a(f"s_lshl_b32 s{sA}, s{sW}, 8")
        a(f"s_add_u32 s{sA}, s{sA}, {ZS + 12288}")
        a(f"v_lshl_add_u32 v{vU}, v{vLANE}, 2, s{sA}")
        a.ds(f"ds_write_b32 v{vU}, v{TA}")
        own = tmp
        self.scatter(KV, 4, own, ZS, 1024)
        a(f"s_mul_i32 s{sA}, s{sW}, 3072")
        a(f"s_add_u32 s{sA}, s{sA}, {ZS}")
        a(f"v_add_u32 v{vU}, s{sA}, v{vL16}")
        a(f"v_lshlrev_b32 v{vT}, 2, v{vLANE}")
        a(f"v_add_u32 v{vA0}, {ZS + 12288}, v{vT}")
        kvp = (WS_KVP_ALT if self.slow else WS_KVP) + layer * 256 * KVP_SZ
        a(f"s_lshl_b32 s{sA}, s{sC}, 4")
        a(f"s_add_u32 s{sA}, s{sA}, s{sCL}")
        a(f"s_mul_i32 s{sA}, s{sA}, {KVP_SZ}")
        a(f"s_add_u32 s{sA}, s{sA}, {kvp}")
        a(f"s_lshl_b32 s{sB}, s{sW}, 9")
        a(f"s_add_u32 s{sB}, s{sB}, s{sA}")
        a(f"s_lshl_b32 s{sD}, s{sC}, 8")
        a(f"s_lshl_b32 s{sE}, s{sW}, 6")
        a(f"s_add_u32 s{sD}, s{sD}, s{sE}")
        a(f"s_add_u32 s{sR1}, s{sD}, {WS_S1F + layer * 4096 + (WS_ALT if self.slow else 0)}")
        a(f"s_lshl_b32 s{sE}, s{sCL}, 2")
        a(f"s_add_u32 s{sD}, s{sR1}, s{sE}")
        a.drain(vm=False)
        a("s_barrier")
        for j in range(3):
            t = a.ds(f"ds_read_b128 {V(own + 4 + 4 * j, 4)}, v{vU} offset:{1024 * j}")
        for j in range(4):
            tz = a.ds(f"ds_read_b32 v{own + 16 + j}, v{vA0} offset:{256 * j}")
        a(f"v_lshlrev_b32 v{vU}, 3, v{vLANE}")
        a.wait(lg=t)
        for i in (0, 2):
            a(f"v_pk_add_f32 {V(own + i, 2)}, {V(own + i, 2)}, {V(own + 4 + i, 2)}")
            a(f"v_pk_add_f32 {V(own + 8 + i, 2)}, {V(own + 8 + i, 2)}, {V(own + 12 + i, 2)}")
        for i in (0, 2):
            a(f"v_pk_add_f32 {V(own + i, 2)}, {V(own + i, 2)}, {V(own + 8 + i, 2)}")
        a(f"v_cvt_pk_bf16_f32 v{own}, v{own}, v{own + 1}")
        a(f"v_cvt_pk_bf16_f32 v{own + 1}, v{own + 2}, v{own + 3}")
        self.store(V(own, 2), S_WS, vU, f"s{sB}", sc1=True, width="dwordx2")
        a.wait(lg=tz)
        skip = a.label("noz")
        a(f"s_cmp_lg_u32 s{sW}, 0")
        a(f"s_cbranch_scc1 {skip}")
        a(f"v_pk_add_f32 {V(own + 16, 2)}, {V(own + 16, 2)}, {V(own + 18, 2)}")
        a(f"v_add_f32 v{own + 16}, v{own + 16}, v{own + 17}")
        self.store(V(own + 16), S_WS, vT, f"s{sA}", 2048, sc1=True, width="dword", counted=False)
        a(f"{skip}:")
        self.stamp("e1")
        self.signal(1, sreg=sD, sc1=True)
        self.stamp("kvdrain")

    def scatter(self, src, n, own, base, piece):
        a = self.a
        lab, done = [a.label("sc") for _ in range(4)], a.label("scd")
        a(f"v_add_u32 v{vU}, {base}, v{vL16}")
        a(f"s_cmp_ge_u32 s{sW}, 2")
        a(f"s_cbranch_scc1 {lab[2]}")
        for w in range(4):
            a(f"{lab[w]}:")
            if w % 2 == 0:
                a(f"s_cmp_eq_u32 s{sW}, {w + 1}")
                a(f"s_cbranch_scc1 {lab[w + 1]}")
            for q in range(4):
                if q != w:
                    for j in range(n // 4):
                        a(f"ds_write_b128 v{vU}, {V(src + n * q + 4 * j, 4)} "
                          f"offset:{(3 * q + ((w - q - 1) & 3)) * piece + 1024 * j}")
            for i in range(0, n, 2):
                a(f"v_pk_add_f32 {V(own + i, 2)}, {V(src + n * w + i, 2)}, 0")
            if w < 3:
                a(f"s_branch {done}")
        a(f"{done}:")

    def s1_window(self, layer):
        a = self.a
        acc, ring = WK, WK + 16
        check = layer == 0 and not self.slow
        if check and not self.opt["wt0"]:
            self.out_touch_items()[0][1]()
        a.bg, w2_late = self.w2_items()
        a("s_barrier")
        if check:
            self.prep_write(WK + 16)
            a(f"v_lshlrev_b32 v{vA0}, 2, v{vLANE}")
            t_tab = self.poll_issue(vA0, S_DBG)
        a.pop(2)
        a.on = True
        if layer == 0:
            cq, tmp = WK + 96, WK + 64
            a(f"s_lshl_b32 s{sA}, s{sW}, 13")
            a(f"v_add_u32 v{vA0}, s{sA}, v{vTRQ}")
            a(f"v_mov_b32 v{cq}, 0")
            a(f"v_mov_b32 v{cq + 1}, 0")
            for j in range(8):
                t = self.tr(tmp + 4 * j, vA0, (j * 1024, j * 1024 + 256))
            a.wait(lg=t)
            for j in range(32):
                a(f"v_dot2c_f32_bf16 v{cq + (j & 1)}, s{sONES}, v{tmp + j}")
            self.colsum_write(CSPQ, (cq,))
        kvr, zr, ks = WK + 72, WK + 40, WK + 104
        a(f"v_and_b32 v{vU}, 15, v{vLANE}")
        a(f"v_lshl_add_u32 v{vBG}, v{vU}, 2, s{sR1}")
        a(f"v_lshrrev_b32 v{vT}, 4, v{vLANE}")
        a(f"v_mul_u32_u24 v{vT}, {KVP_SZ}, v{vT}")
        a(f"v_lshl_add_u32 v{vA1}, v{vU}, 4, v{vT}")
        kvp = (WS_KVP_ALT if self.slow else WS_KVP) + layer * 256 * KVP_SZ
        a(f"s_mul_i32 s{sD}, s{sC}, {16 * KVP_SZ}")
        a(f"s_add_u32 s{sD}, s{sD}, {kvp}")
        a(f"s_lshl_b32 s{sE}, s{sW}, 9")
        a(f"s_add_u32 s{sE}, s{sE}, s{sD}")
        self.ring_init()
        if layer == 0:
            self.w4_init()
        tg, tp = {}, {}
        if not check:
            a.bg.append((60, lambda: tp.setdefault(0, self.poll_issue(vBG))))

        def rd(kb):
            tg[kb] = self.tr(ring + (kb % 4) * 4, vTRQ, (kb * 1024, kb * 1024 + 256))
        for kb in range(3):
            rd(kb)
        for kb in range(32):
            if kb + 3 < 32:
                rd(kb + 3)
            a.wait(lg=tg[kb])
            self.mfma(V(acc, 16), V(ring + (kb % 4) * 4, 4), V(X0 + 4 * kb, 4), "0" if kb == 0 else None)
        a.flush()
        a.on = False
        if check:
            self.table_check(t_tab)
            tp[0] = self.poll_issue(vBG)

        a(f"v_lshrrev_b32 v{vT}, 5, v{vLANE}")
        a(f"v_mul_u32_u24 v{vT}, {KVP_SZ}, v{vT}")
        a(f"v_and_b32 v{vA0}, 31, v{vLANE}")
        a(f"v_lshl_add_u32 v{vA0}, v{vA0}, 4, v{vT}")
        a.drain(vm=False)
        a("s_barrier")
        self.stamp("qgemm")
        if layer == 0:
            self.prep_done()
            self.colsum_final(CSPQ, 1, CS1 + 256, WK + 64)
        cs, Qb, PB, tmp = WK + 16, WK + 32, WK + 56, WK + 32
        t = self.read_cs(2, cs)
        a.wait(lg=t)
        self.normalize(acc, cs, Qb)
        self.mfma(V(acc, 16), A(aPHI, 4), V(Qb, 4), "0")
        self.mfma(V(PB, 16), A(aPHI + 4, 4), V(Qb + 4, 4), "0")
        self.phq = WK + 16
        self.poll(vBG, 1, first=tp[0])
        self.stamp("S1")
        skip = a.label("zld")
        a(f"s_cmp_lg_u32 s{sW}, 0")
        a(f"s_cbranch_scc1 {skip}")
        for i in range(4):
            self.load(V(zr + 4 * i, 4), S_WS, vA1, f"s{sD}", 2048, counted=False)
            if i < 3:
                a(f"s_add_u32 s{sD}, s{sD}, {4 * KVP_SZ}")
        a(f"{skip}:")
        kt = {}

        def kv_item(p):
            def f():
                if p:
                    a(f"s_add_u32 s{sE}, s{sE}, {2 * KVP_SZ}")
                kt[p] = self.load(V(kvr + 4 * p, 4), S_WS, vA0, f"s{sE}", extra=" nt" if self.opt["nt"] & 8 else "")
            return 40, f
        wt = {}
        a.bg = [kv_item(p) for p in range(8)] + w2_late + [(0, lambda: wt.setdefault(0, a.vm))] + \
            self.ring_items(self.opt["pre_a"] if layer else 0)
        a.pop(4)
        a.on = True
        self.softmax_pair(acc, tmp, self.phq)
        self.softmax_pair(PB, tmp, self.phq + 8)
        for i in range(8):
            a(f"v_mov_b32 v{ks + i}, 0")
        a.flush()
        a.on = False
        self.stamp("qdone")
        skip = a.label("zsum")
        a(f"s_cmp_lg_u32 s{sW}, 0")
        a(f"s_cbranch_scc1 {skip}")
        a(f"v_bfe_u32 v{vT}, v{vLANE}, 2, 2")
        a(f"v_lshlrev_b32 v{vT}, 10, v{vT}")
        a(f"v_and_b32 v{vU}, 1, v{vLANE}")
        a(f"v_lshl_add_u32 v{vT}, v{vU}, 9, v{vT}")
        a(f"v_bfe_u32 v{vU}, v{vLANE}, 1, 1")
        a(f"v_lshl_add_u32 v{vT}, v{vU}, 3, v{vT}")
        a(f"v_add_u32 v{vT}, {ZAIMG + 256}, v{vT}")
        a(f"s_waitcnt vmcnt({a.vm - kt[0] + 1})")
        for i in (0, 2):
            a(f"v_pk_add_f32 {V(zr + i, 2)}, {V(zr + i, 2)}, {V(zr + 4 + i, 2)}")
            a(f"v_pk_add_f32 {V(zr + 8 + i, 2)}, {V(zr + 8 + i, 2)}, {V(zr + 12 + i, 2)}")
        for i in (0, 2):
            a(f"v_pk_add_f32 {V(zr + i, 2)}, {V(zr + i, 2)}, {V(zr + 8 + i, 2)}")
        for sw in ("v_permlane16_swap_b32", "v_permlane32_swap_b32"):
            for i in range(4):
                a(f"v_mov_b32 v{zr + 4 + i}, v{zr + i}")
            for i in range(4):
                a(f"{sw} v{zr + i}, v{zr + 4 + i}")
            for i in range(4):
                a(f"v_add_f32 v{zr + i}, v{zr + i}, v{zr + 4 + i}")
        a(f"v_cvt_pk_bf16_f32 v{zr}, v{zr}, v{zr + 1}")
        a(f"v_cvt_pk_bf16_f32 v{zr + 1}, v{zr + 2}, v{zr + 3}")
        a(f"ds_write_b64 v{vT}, {V(zr, 2)}")
        a(f"{skip}:")
        a(f"v_lshlrev_b32 v{vU}, 1, v{vLANE}")
        a(f"v_lshrrev_b32 v{vT}, 5, v{vLANE}")
        a(f"v_and_or_b32 v{vU}, v{vU}, 62, v{vT}")
        a(f"v_bfe_u32 v{vT}, v{vU}, 4, 1")
        a(f"v_lshlrev_b32 v{vT}, 11, v{vT}")
        a(f"v_and_b32 v{vU}, 47, v{vU}")
        a(f"v_lshl_add_u32 v{vT}, v{vU}, 4, v{vT}")
        a(f"s_lshl_b32 s{sA}, s{sKH}, 10")
        a(f"s_lshl_b32 s{sB}, s{sTH}, 3")
        a(f"s_add_u32 s{sA}, s{sA}, s{sB}")
        a(f"s_add_u32 s{sA}, s{sA}, {ZAIMG}")
        a(f"v_add_u32 v{vA0}, s{sA}, v{vT}")
        a(f"v_and_b32 v{vT}, 31, v{vLANE}")
        a(f"v_min_u32 v{vT}, 16, v{vT}")
        a(f"v_and_b32 v{vU}, 32, v{vLANE}")
        a(f"v_add_u32 v{vT}, v{vT}, v{vU}")
        a(f"v_lshlrev_b32 v{vT}, 4, v{vT}")
        a(f"v_add_u32 v{vA1}, {ZAIMG}, v{vT}")
        a(f"s_lshl_b32 s{sA}, s{sTT}, 15")
        a(f"s_lshl_b32 s{sB}, s{sC}, 11")
        a(f"s_add_u32 s{sA}, s{sA}, s{sB}")
        a(f"s_add_u32 s{sG}, s{sA}, {WS_OBUF[layer]}")
        for p in range(8):
            a.wait(vm=kt[p])
            for i in range(4):
                a(f"v_dot2c_f32_bf16 v{ks + 2 * i}, s{sLO}, v{kvr + 4 * p + i}")
                a(f"v_dot2c_f32_bf16 v{ks + 2 * i + 1}, s{sHI}, v{kvr + 4 * p + i}")
        for i in range(4):
            a(f"v_permlane32_swap_b32 v{ks + i}, v{ks + 4 + i}")
        for i in (0, 2):
            a(f"v_pk_add_f32 {V(ks + i, 2)}, {V(ks + i, 2)}, {V(ks + 4 + i, 2)}")
        a(f"v_cvt_pk_bf16_f32 v{ks}, v{ks}, v{ks + 1}")
        a(f"v_cvt_pk_bf16_f32 v{ks + 1}, v{ks + 2}, v{ks + 3}")
        a.ds(f"ds_write_b64 v{vA0}, {V(ks, 2)}")
        a.wait(vm=wt[0])
        a.drain(vm=False)
        a("s_barrier")
        self.stamp("kvsum")
        op, O = WK + 32, WK + 48
        for j in range(4):
            t = a.ds(f"ds_read_b128 {V(op + 4 * j, 4)}, v{vA1} offset:{1024 * j}")
        a.wait(lg=t)
        for h in range(2):
            self.mfma(V(O + 16 * h, 16), V(op + 8 * h, 4), V(self.phq + 8 * h, 4), "0")
            self.mfma(V(O + 16 * h, 16), V(op + 8 * h + 4, 4), V(self.phq + 8 * h + 4, 4))
        for h in range(2):
            o = O + 16 * h
            a(f"v_add_f32 v{o + 8}, 0x358637bd, v{o + 8}")
            a(f"v_rcp_f32 v{o + 8}, v{o + 8}")
            for i in range(0, 8, 2):
                a(f"v_pk_mul_f32 {V(o + i, 2)}, {V(o + i, 2)}, {V(o + 8, 2)} op_sel_hi:[1,0]")
            for i in range(4):
                a(f"v_cvt_pk_bf16_f32 v{o + 12 + i}, v{o + 2 * i}, v{o + 2 * i + 1}")
            self.store(V(o + 12, 4), S_WS, vL16, f"s{sG}", 1024 * h, sc1="first" if layer == 0 else None)
        self.w2_read(range(0, 5))
        self.signal(1 + 5 * layer)
        self.w2_read(range(5, 16))
        self.stamp("o")

    def res_addr(self):
        a = self.a
        a(f"s_lshl_b32 s{sE}, s{sCL}, 2")
        a(f"s_lshl_b32 s{sA}, s{sTH2}, 1")
        a(f"s_add_u32 s{sE}, s{sE}, s{sA}")
        a(f"s_add_u32 s{sE}, s{sE}, s{sTH}")
        a(f"s_lshl_b32 s{sF}, s{sE}, 12")
        a(f"s_lshl_b32 s{sA}, s{sCT}, 9")
        a(f"s_add_u32 s{sF}, s{sF}, s{sA}")
        a(f"s_lshl_b32 s{sA}, s{sKH}, 3")
        a(f"s_add_u32 s{sF}, s{sF}, s{sA}")
        a(f"s_lshl_b32 s{sE}, s{sE}, 15")
        a(f"s_lshl_b32 s{sA}, s{sCT}, 7")
        a(f"s_lshl_b32 s{sB}, s{sKH}, 6")
        a(f"s_add_u32 s{sA}, s{sA}, s{sB}")
        a(f"s_add_u32 s{sD}, s{sE}, s{sA}")
        a(f"s_lshl_b32 s{sA}, s{sA}, 5")
        a(f"s_add_u32 s{sE}, s{sE}, s{sA}")
        a(f"v_and_b32 v{vT}, 31, v{vLANE}")
        a(f"v_lshrrev_b32 v{vU}, 5, v{vLANE}")
        a(f"v_lshlrev_b32 v{vROW}, 10, v{vT}")
        a(f"v_lshl_add_u32 v{vROW}, v{vU}, 4, v{vROW}")
        a(f"v_lshlrev_b32 v{vT}, 4, v{vT}")
        a(f"v_lshl_add_u32 v{vBG}, v{vU}, 2, v{vT}")

    def res_load(self, dst, src):
        a = self.a
        if src is None:
            for j in range(2):
                t = self.load(V(dst + 4 * j, 4), S_AX, vROW, f"s{sD}", 32 * j, sc1=False)
        else:
            a(f"s_add_u32 s{sBG}, s{sE}, {src}")
            for j in range(2):
                t = self.load(V(dst + 4 * j, 4), S_WS, vL16, f"s{sBG}", 1024 * j)
        return t

    def res_finish(self, acc, res, dst, flag, sc1=None):
        a = self.a
        for i in range(8):
            a(f"v_dot2c_f32_bf16 v{acc + 2 * i}, s{sLO}, v{res + i}")
            a(f"v_dot2c_f32_bf16 v{acc + 2 * i + 1}, s{sHI}, v{res + i}")
        self.cvt16(acc, res)
        if dst is None:
            for j in range(2):
                self.store(V(res + 4 * j, 4), S_OUT, vROW, f"s{sD}", 32 * j, sc1=False)
            return
        a(f"s_add_u32 s{sA}, s{sE}, {dst}")
        for j in range(2):
            self.store(V(res + 4 * j, 4), S_WS, vL16, f"s{sA}", 1024 * j, sc1=sc1)
        a(f"v_mov_b32 v{acc}, 0")
        a(f"v_mov_b32 v{acc + 1}, 0")
        for i in range(8):
            a(f"v_dot2c_f32_bf16 v{acc}, s{sONES}, v{res + i}")
            a(f"v_dot2c_f32_bf16 v{acc + 1}, v{res + i}, v{res + i}")
        a(f"s_add_u32 s{sA}, s{sF}, {WS_ST}")
        a(f"v_permlane32_swap_b32 v{acc}, v{acc + 1}")
        a(f"v_add_f32 v{acc}, v{acc}, v{acc + 1}")
        self.store(V(acc), S_WS, vBG, f"s{sA}", width="dword", sc1=sc1)
        self.signal(flag)

    def p2(self, layer):
        a = self.a
        of, acc, res = WK, WK + 64, WK + 96
        self.res_addr()
        tr = self.res_load(res, None if layer == 0 else WS_A)
        a(f"s_lshl_b32 s{sA}, s{sTH2}, 1")
        a(f"s_add_u32 s{sA}, s{sA}, s{sTH}")
        a(f"s_lshl_b32 s{sG}, s{sCL}, 2")
        a(f"s_add_u32 s{sG}, s{sG}, s{sA}")
        a(f"s_lshl_b32 s{sA}, s{sG}, 6")
        a(f"s_lshl_b32 s{sB}, s{sKH}, 5")
        a(f"s_add_u32 s{sA}, s{sA}, s{sB}")
        if self.slow:
            a(f"s_add_u32 s{sA}, s{sA}, {WS_ALT}")
        a(f"v_and_b32 v{vU}, 7, v{vLANE}")
        a(f"v_lshl_add_u32 v{vU}, v{vU}, 2, s{sA}")
        a(f"s_lshl_b32 s{sG}, s{sG}, 15")
        a(f"s_lshl_b32 s{sB}, s{sKH}, 14")
        a(f"s_add_u32 s{sG}, s{sG}, s{sB}")
        a(f"s_add_u32 s{sH0}, s{sG}, {WS_OBUF[layer]}")
        a(f"s_xor_b32 s{sA}, s{sW}, 2")
        a(f"s_lshl_b32 s{sA}, s{sA}, 12")
        a(f"s_add_u32 s{sA}, s{sA}, {P2S}")
        a(f"v_add_u32 v{vA0}, s{sA}, v{vL16}")
        a(f"s_lshl_b32 s{sA}, s{sW}, 12")
        a(f"s_add_u32 s{sA}, s{sA}, {P2S}")
        a(f"v_add_u32 v{vA1}, s{sA}, v{vL16}")
        a.drain(vm=False)
        a("s_barrier")
        self.poll(vU, 1 + 5 * layer)
        if layer == 0:
            t_prep = self.prep_poll(WK + 104)
        self.stamp("S2")
        ot = {}

        def item(kb):
            def f():
                if kb and kb % 4 == 0:
                    a(f"s_add_u32 s{sH0}, s{sH0}, 4096")
                ot[kb] = self.load(V(of + 4 * kb, 4), S_WS, vL16, f"s{sH0}", (kb % 4) * 1024)
            return 60, f
        a.bg = [item(kb) for kb in range(16)]
        if layer == 0:
            a.bg.append((0, lambda: self.prep_wait(WK + 104, t_prep)))
        a.bg += self.ring_items(self.opt["pre_c" if layer else "pre_c0"], 60)
        a.pop(self.opt["lead"])
        a.on = True
        for kb in range(16):
            a.wait(vm=ot[kb])
            for nt in range(2):
                self.mfma(V(acc + 16 * nt, 16), V(X0 + (kb * 2 + nt) * 4, 4), V(of + 4 * kb, 4), "0" if kb == 0 else None)
        a.flush()
        a.on = False
        self.stamp("p2gemm")
        hi, done = a.label("khi"), a.label("kd")
        a(f"s_cmp_lg_u32 s{sKH}, 0")
        a(f"s_cbranch_scc1 {hi}")
        for q in range(4):
            a(f"ds_write_b128 v{vA0}, {V(acc + 16 + 4 * q, 4)} offset:{1024 * q}")
        a(f"s_branch {done}")
        a(f"{hi}:")
        for q in range(4):
            a(f"ds_write_b128 v{vA0}, {V(acc + 4 * q, 4)} offset:{1024 * q}")
        for i in range(0, 16, 2):
            a(f"v_pk_add_f32 {V(acc + i, 2)}, {V(acc + 16 + i, 2)}, 0")
        a(f"{done}:")
        a.drain(vm=False)
        a("s_barrier")
        for q in range(4):
            t = a.ds(f"ds_read_b128 {V(acc + 16 + 4 * q, 4)}, v{vA1} offset:{1024 * q}")
        a.wait(vm=tr, lg=t)
        for i in range(0, 16, 2):
            a(f"v_pk_add_f32 {V(acc + i, 2)}, {V(acc + i, 2)}, {V(acc + 16 + i, 2)}")
        self.res_finish(acc, res, WS_XMID[layer], 2 + 5 * layer, sc1="first" if layer == 0 else None)
        self.stamp("x1")

    def p3(self, layer):
        a = self.a
        BAR = self.opt["bar"]
        if layer == 0:
            skip = a.label("cs3")
            a(f"s_cmp_lg_u32 s{sW}, 0")
            a(f"s_cbranch_scc1 {skip}")
            a(f"s_mul_i32 s{sA}, s{sC}, 896")
            a(f"s_add_u32 s{sA}, s{sA}, {WS_CS3}")
            for k in range(8):
                self.load(V(WK + 4 * k, 4), S_WS, vL16, f"s{sA}", counted=False)
                a(f"s_add_u32 s{sA}, s{sA}, {112 * 128}")
            a("s_waitcnt vmcnt(0)")
            for w in (16, 8, 4):
                for i in range(0, w, 2):
                    a(f"v_pk_add_f32 {V(WK + i, 2)}, {V(WK + i, 2)}, {V(WK + w + i, 2)}")
            for i in range(4):
                a(f"v_cvt_pk_bf16_f32 v{WK + 4 + i}, v{WK + i}, v{WK + i}")
                a(f"v_and_b32 v{WK + 8 + i}, 0xffff0000, v{WK + 4 + i}")
                a(f"v_sub_f32 v{WK + i}, v{WK + i}, v{WK + 8 + i}")
                a(f"v_cvt_pk_bf16_f32 v{WK + i}, v{WK + 8 + i}, v{WK + i}")
            a(f"v_add_u32 v{vT}, {CS3}, v{vL16}")
            a("s_mov_b32 exec_hi, 0x00ffffff")
            a(f"ds_write_b128 v{vT}, {V(WK, 4)}")
            a("s_mov_b64 exec, -1")
            a("s_waitcnt lgkmcnt(0)")
            a(f"{skip}:")
        accs = [WK, WK + 16, WK + 32, WK + 48, WK + 64, WK + 80, WK]
        tmp = WK + 96
        xt = {}
        st_items = self.stats_items(WS_ST, tmp, xt, vBG, 0)
        x_items = self.x_items(WS_XMID[layer], xt, 0)
        a(f"v_add_u32 v{vA0}, {ZB}, v{vL16}")
        a(f"v_add_u32 v{vA1}, {ZB + 65536}, v{vL16}")
        a(f"s_mul_i32 s{sH1}, s{sTT}, {112 * 1024}")
        a(f"s_mul_i32 s{sA}, s{sC}, {7 * 1024}")
        a(f"s_add_u32 s{sH1}, s{sH1}, s{sA}")
        a(f"s_add_u32 s{sH1}, s{sH1}, {WS_H}")
        self.rows_poll_addr()
        seq = [(g, kb) for kb in range(32) for g in range(4)] + [(g, kb) for kb in range(32) for g in (4, 5)] + \
              [(6, kb) for kb in range(32)]
        rt = {}
        self.free_upto = -1

        def rd(f):
            s = f // 8
            if f % BAR == 0:
                last = s + BAR // 8 - 1
                while self.ring_next < 2 * last + 2:
                    self.ring_one()
                a.wait(vm=self.ring_tag[last])
                a("s_barrier")
                self.free_upto = s - 2
            off = RING_AT[s % NSLOT] - ZB + (f % 8) * 1024
            addr, off = (vA0, off) if off < 65536 else (vA1, off - 65536)
            rt[f] = a.ds(f"ds_read_b128 {A(aRING + (f % 4) * 4, 4)}, v{addr} offset:{off}")
        for f in range(4):
            rd(f)
        for _ in range(2 * self.opt["pre_d"]):
            self.ring_one()
        self.poll(vU, 2 + 5 * layer)
        self.stamp("S3")
        for _ in range(self.opt["lead3"]):
            x_items.pop(0)[1]()
        x_items = x_items[:6] + st_items + x_items[6:]

        ext, mu = tmp + 8, tmp + 4

        def epi(gs):
            l = []
            for g in gs:
                acc = accs[g]
                for i in range(8):
                    l.append(("v", f"v_mul_f32 v{acc + 8 + i}, v{vRHO}, v{acc + 8 + i}", None))
                for i in range(8):
                    l.append(("v", f"v_mul_f32 v{acc + i}, v{acc + i}, v{acc + 8 + i}", None))
                for i in range(4):
                    l.append(("v", f"v_cvt_pk_bf16_f32 v{acc + 8 + i}, v{acc + 2 * i}, v{acc + 2 * i + 1}", None))
                l.append(("st", g, None))
            return l

        def mean_operand():
            a(f"v_mul_f32 v{vRHO}, v{vRHO}, v{vRHO}")
            a(f"v_cvt_pk_bf16_f32 v{mu}, v{vNMU}, v{vNMU}")
            a(f"v_and_b32 v{vT}, 0xffff0000, v{mu}")
            a(f"v_sub_f32 v{vT}, v{vNMU}, v{vT}")
            a(f"v_cvt_pk_bf16_f32 v{mu + 1}, v{vT}, v{vT}")
            a(f"v_cmp_gt_u32 vcc, 32, v{vLANE}")
            a(f"v_mov_b32 v{mu + 2}, 0")
            a(f"v_mov_b32 v{mu + 3}, 0")
            a(f"v_cndmask_b32 v{mu}, 0, v{mu}, vcc")
            a(f"v_cndmask_b32 v{mu + 1}, 0, v{mu + 1}, vcc")
            for i in (2, 3, 6, 7):
                a(f"v_mov_b32 v{ext + i}, 0")
            self.natural_col(tmp)
            a(f"v_add_u32 v{tmp}, {CS3}, v{tmp}")
        ext_tag, h_tag = {}, {}

        def ext_read(g):
            ext_tag[g] = a.ds(f"ds_read2_b32 {V(ext + 4 * (g & 1), 2)}, v{tmp} offset0:{32 * g} offset1:{32 * g}")

        def run(item):
            k, x, key = item
            if k == "v":
                a(x)
            elif k == "st":
                if x == 4:
                    a(f"s_add_u32 s{sH1}, s{sH1}, 4096")
                h_tag[x] = self.store(V(accs[x] + 8, 4), S_WS, vL16, f"s{sH1}", (x % 4) * 1024,
                                      sc1=(x < 6 or None) if self.opt["hwt"] else "first" if layer == 0 else None)
            elif k == "call":
                x()
        tp = {}

        def sig_a():
            a(f"v_mov_b32 v{vT}, {3 + 5 * layer}")
            a(f"v_mov_b32 v{vROW}, s{sFLAG}")
            a.wait(vm=h_tag[3])
            a("s_mov_b64 exec, 1")
            self.store(V(vT), S_WS, vROW, 0, width="dword")
            a("s_mov_b64 exec, -1")
        pend = []
        for f, (g, kb) in enumerate(seq):
            if f == 131:
                assert not pend
                pend = epi((0, 1, 2, 3)) + [("v", l, None) for l in a.capture(self.p4_setup)]
            if f == 195:
                assert not pend
                pend = epi((4, 5))
                pend.insert(4, ("call", sig_a, None))
            if f in (16, 48, 96, 128, 192):
                self.stamp(f"p3f{f}")
            a.wait(vm=xt[kb] if g == 0 else None, lg=rt[f])
            self.mfma(V(accs[g], 16), A(aRING + (f % 4) * 4, 4), V(X0 + 4 * kb, 4), "0" if kb == 0 else None)
            if f + 4 < 224:
                rd(f + 4)
            if kb == 31:
                a.wait(lg=ext_tag[g])
                self.mfma(V(accs[g], 16), V(ext + 4 * (g & 1), 4), V(mu, 4))
                if g + 2 < 7:
                    ext_read(g + 2)
            if f == 120:
                assert not pend
                ext_read(0)
                ext_read(1)
            ring_ok = self.ring_next < 56 and self.ring_next // 2 - NSLOT <= self.free_upto
            if f % 2 == 0:
                if x_items and not (ring_ok and f % 4 == 2 and f >= self.opt["xfirst"]):
                    x_items.pop(0)[1]()
                elif ring_ok:
                    self.ring_one()
                elif layer == 0 and self.w4_next < 56:
                    self.w4_one()
            if f == 96:
                assert not x_items
                a.wait(vm=xt["st"])
                pend = [("v", l, None) for l in a.capture(lambda: self.sum_stats(tmp, packed=False))]
                pend += [("v", l, None) for l in a.capture(mean_operand)]
            if f == 129 and self.opt["hwt"]:
                a(f"v_and_b32 v{vU}, 7, v{vLANE}")
                a(f"v_lshlrev_b32 v{vU}, 7, v{vU}")
                a(f"s_add_u32 s{sBG}, s{sH1}, 6144")
                a.vmop(f"buffer_load_dword v{vP}, v{vU}, {S(S_WS)}, s{sBG} offen")
            if f == 216:
                tp["a"] = self.poll_issue(vU)
            for _ in range(3 if f < 128 else 2):
                if pend:
                    run(pend.pop(0))
        assert not pend, len(pend)
        while layer == 0 and self.w4_next < 56:
            self.w4_one()
        self.stamp("p3gemm")
        a("s_barrier")
        for it in epi((6,)):
            run(it)
        self.p4(layer, tp["a"], h_tag[6])

    def p4_setup(self):
        a = self.a
        self.res_addr()
        a(f"s_lshl_b32 s{sA}, s{sCL}, 8")
        a(f"s_lshl_b32 s{sB}, s{sTH2}, 7")
        a(f"s_add_u32 s{sA}, s{sA}, s{sB}")
        a(f"s_lshl_b32 s{sB}, s{sW}, 4")
        a(f"s_add_u32 s{sA}, s{sA}, s{sB}")
        if self.slow:
            a(f"s_add_u32 s{sA}, s{sA}, {WS_ALT}")
        a(f"v_and_b32 v{vT}, 3, v{vLANE}")
        a(f"v_bfe_u32 v{vU}, v{vLANE}, 2, 1")
        a(f"v_lshlrev_b32 v{vU}, 6, v{vU}")
        a(f"v_lshl_add_u32 v{vU}, v{vT}, 2, v{vU}")
        a(f"v_add_u32 v{vU}, s{sA}, v{vU}")
        a(f"s_lshl_b32 s{sA}, s{sCL}, 2")
        a(f"s_lshl_b32 s{sB}, s{sTH2}, 1")
        a(f"s_add_u32 s{sA}, s{sA}, s{sB}")
        a(f"s_mul_i32 s{sH2}, s{sA}, {112 * 1024}")
        a(f"s_mul_i32 s{sB}, s{sW}, {28 * 1024}")
        a(f"s_add_u32 s{sH2}, s{sH2}, s{sB}")
        a(f"s_add_u32 s{sH2}, s{sH2}, {WS_H}")
        a(f"s_add_u32 s{sH3}, s{sH2}, {112 * 1024}")

    def p4(self, layer, t_poll_a, t_last_h):
        a = self.a
        acc, res = X0, WK + 96
        slots = [X0 + 64 + 8 * i for i in range(8)] + [WK + 16 + 8 * i for i in range(10)]
        NH = len(slots)
        order = [7 * p + g for g in range(4) for p in range(4)] + [7 * p + g for g in (4, 5, 6) for p in range(4)]
        ht = {}

        def ld(n):
            i, th = divmod(n, 2)
            a(f"s_add_u32 s{sA}, s{sH2 + th}, {order[i] * 1024}")
            ht[n] = self.load(V(slots[i % NH] + 4 * th, 4), S_WS, vL16, f"s{sA}")
        self.poll(vU, 3 + 5 * layer, first=t_poll_a)
        for n in range(4):
            ld(n)
        self.signal(4 + 5 * layer, after=t_last_h)
        self.stamp("h")
        lead = 2 * self.opt["lead4"]
        for n in range(4, lead):
            ld(n)
        nl, tp, tr = lead, None, None
        for i in range(28):
            for th in range(2):
                a.wait(vm=ht[2 * i + th])
                for nt in range(2):
                    self.mfma(V(acc + 16 * (2 * nt + th), 16), A((order[i] * 2 + nt) * 4, 4),
                              V(slots[i % NH] + 4 * th, 4), "0" if i == 0 else None)
                    if nt == 0:
                        if nl == 24:
                            tp = self.poll_issue(vU)
                        if nl == 32:
                            self.poll(vU, 4 + 5 * layer, first=tp)
                        if nl < 56:
                            ld(nl)
                            nl += 1
                        elif tr is None:
                            tr = self.res_load(res, WS_XMID[layer])
        self.stamp("p4gemm")
        if layer == 1:
            a(f"v_and_b32 v{vT}, 31, v{vLANE}")
            a(f"v_lshrrev_b32 v{vU}, 5, v{vLANE}")
            a(f"v_lshlrev_b32 v{vROW}, 10, v{vT}")
            a(f"v_lshl_add_u32 v{vROW}, v{vU}, 4, v{vROW}")
        own = WK
        self.scatter(acc, 16, own, P4S, 4096)
        a(f"s_mul_i32 s{sA}, s{sW}, 12288")
        a(f"s_add_u32 s{sA}, s{sA}, {P4S}")
        a(f"v_add_u32 v{vA0}, s{sA}, v{vL16}")
        a.drain(vm=False)
        a("s_barrier")
        ts = []
        for j in range(12):
            ts.append(a.ds(f"ds_read_b128 {V(acc + 4 * j, 4)}, v{vA0} offset:{1024 * j}"))
        for s in range(3):
            a.wait(lg=ts[4 * s + 3])
            for i in range(0, 16, 2):
                a(f"v_pk_add_f32 {V(own + i, 2)}, {V(own + i, 2)}, {V(acc + 16 * s + i, 2)}")
        a.wait(vm=tr)
        if layer == 0:
            self.res_finish(own, res, WS_A, 5)
            a("s_barrier")
        else:
            self.res_finish(own, res, None, None)
        self.stamp("x2")

    def body(self):
        for layer in range(self.opt["layers"]):
            acc = self.p1_start_l0() if layer == 0 else self.p1_start_l1()
            self.e1_kv(layer, *acc)
            self.s1_window(layer)
            self.p2(layer)
            self.p3(layer)
            if layer == 0 and self.opt["amp2"] == 1 and not self.slow:
                self.a("s_memrealtime s[12:13]")
                self.a("s_memtime s[18:19]")
                self.a.drain(vm=False)

    def build(self):
        a = self.a
        self.slow = False
        self.prologue()
        self.stamp("start")
        if self.diag or self.opt["amp"]:
            a("s_memrealtime s[6:7]")
            a("s_memtime s[14:15]")
        self.body()
        if self.opt["amp"]:
            a("s_waitcnt vmcnt(0)")
            a("s_memtime s[16:17]")
            a("s_memrealtime s[8:9]")
            a("s_waitcnt lgkmcnt(0)")
            a(f"s_cmp_lg_u32 s2, {self.opt['amp']}")
            a("s_cbranch_scc1 L_end")
            a(("s_sub_u32 s10, s8, s6", "s_sub_u32 s10, s8, s12", "s_sub_u32 s10, s6, s12")[self.opt["amp2"]])
            a("s_mul_i32 s10, s10, 20")
            if self.opt["ampc"]:
                a("s_sub_u32 s10, s16, s18" if self.opt["amp2"] else "s_sub_u32 s10, s16, s14")
            a("L_amp:")
            a("s_sleep 8")
            a("s_memrealtime s[6:7]")
            a("s_waitcnt lgkmcnt(0)")
            a("s_sub_u32 s11, s6, s8")
            a("s_cmp_lt_u32 s11, s10")
            a("s_cbranch_scc1 L_amp")
        if self.diag:
            a("s_memrealtime s[8:9]")
            a.drain(vm=False)
            a(f"v_writelane_b32 v{vDIAG}, s6, 61")
            a(f"v_writelane_b32 v{vDIAG}, s8, 62")
            a(f"v_writelane_b32 v{vDIAG}, s{sTO}, 63")
            a(f"s_lshl_b32 s{sA}, s{sCL}, 4")
            a(f"s_add_u32 s{sA}, s{sA}, s{sC}")
            a(f"s_lshl_b32 s{sA}, s{sA}, 2")
            a(f"s_add_u32 s{sA}, s{sA}, s{sW}")
            a(f"s_lshl_b32 s{sA}, s{sA}, 8")
            a(f"s_add_u32 s{sA}, s{sA}, {WS_SIZE - 0x40000}")
            a(f"v_lshlrev_b32 v{vT}, 2, v{vLANE}")
            self.store(V(vDIAG), S_WS, vT, f"s{sA}", width="dword")
        a("L_end:")
        a("s_endpgm")
        self.slow = True
        a("L_slow:")
        a.drain()
        a("s_barrier")
        a(f"s_lshr_b32 s{sCL}, s2, 4")
        a(f"s_and_b32 s{sC}, s2, 15")
        self.body()
        a("s_endpgm")
        lines, n = fix_hazards(a.lines)
        if self.opt["align"]:
            lines = align8(lines)
        head = HEADER.format(lds=LDS_SIZE, name=NAME)
        return head + "\n".join(lines) + "\n" + TAIL.format(name=NAME), n

HEADER = """; Two interleaved (Hedgehog linear attention, bilinear GLU) blocks in one persistent launch: 256 workgroups, one per CU.
; Work split: 16 clusters of 16 workgroups, one cluster per 128 token rows.  Phases per layer:
;   P1 k,v,q = LN(x) Wqkv (2 heads per workgroup), feature maps, partial phi_k^T [v 1]  -> exchange over the 16 clusters
; LayerNorm is applied after the product: LN(x) W = rstd * (x W - mean * colsum(W)).
; Hand-offs inside a cluster: when the table in d_debug (every workgroup publishes the XCD it really runs on) shows that each
; cluster sits on one XCD, they stay in that XCD's L2 (plain stores, L1-bypassing loads); under any other placement every
; workgroup jumps to L_slow, a copy that writes all hand-offs through to memory.  Hand-offs between clusters always write through.
; @launch grid=(256,1,1) block=(256,1,1) lds={lds}
.amdgcn_target "amdgcn-amd-amdhsa--gfx950"
.text
.globl {name}_kernel
.p2align 8
.type {name}_kernel,@function
{name}_kernel:
"""
TAIL = """.section .rodata,"a"
.p2align 6
.amdhsa_kernel {name}_kernel
  .amdhsa_next_free_vgpr 512
  .amdhsa_next_free_sgpr 102
  .amdhsa_accum_offset 256
  .amdhsa_group_segment_fixed_size 0
  .amdhsa_kernarg_size 88
  .amdhsa_user_sgpr_count 2
  .amdhsa_user_sgpr_kernarg_segment_ptr 1
  .amdhsa_system_sgpr_workgroup_id_x 1
.end_amdhsa_kernel
"""

if __name__ == "__main__":
    out = sys.argv[1]
    flags = sys.argv[2:]
    opt = {f.split("=")[0]: int(f.split("=")[1]) for f in flags if "=" in f}
    g = Gen(diag="diag" in flags, force_slow="slow" in flags, opt=opt)
    text, n = g.build()
    open(out, "w").write(text)
    if g.diag:
        open(out + ".stamps", "w").write("\n".join(g.stamps))
    print(f"{out}: {len(text)} bytes, {text.count(chr(10))} lines, {n} hazard nops")
```

```python
import sys
from asmlib import Asm, fix_hazards, align8

NAME = "interleave_layers__linear_kernel_hedgehog__glu_gated_bilinear__prompt"

WS_FLAG = 0x0
WS_S1F = 0x1000
WS_PREP = 0x3000
WS_ALT = 0x4000
WS_CS3 = 0x20000
WS_ST = 0x40000
WS_KVP = 0x100000
WS_KVP_ALT = 0x240000
KVP_SZ = 2304
WS_A = 0x400000
WS_B = 0x600000
WS_OBUF = (WS_A, WS_B)
WS_XMID = (WS_B, WS_A)
WS_H = 0xA00000
WS_W3 = 0x1200000
WS_W4 = 0x1600000
WS_SIZE = 0x1800000

W1KV = 0
PERS = 65536
CS1 = PERS
CS3 = PERS + 512
ZB = PERS + 2048
ZQ = ZB
ZW2 = ZB + 30720
ZS = ZB + 32768
ZAIMG = ZB + 24576
XS = ZB
PREP_G = ZB + 65536
PREP_U = PREP_G + 8192
PREP_D = PREP_U + 8192
PHI_IMG = ZB + 90112
CSP = PHI_IMG + 1024
CSPQ = PERS + 1408
NSLOT = 11
RING_AT = [ZB + 8192 * i for i in (0, 1, 2, 4, 5, 6, 7, 8, 9, 10, 3)]
P2S = ZB + 73728
P4S = ZB
LDS_SIZE = 163840

sTM = 4
S_AX, S_WQ, S_WS, S_DBG, S_PHI, S_WO, S_WG, S_WU, S_WD, S_OUT = 28, 32, 36, 40, 44, 48, 52, 56, 60, 64
sW, sCL, sC, sTT, sCT, sTH2, sKH, sTH = 68, 69, 70, 71, 72, 73, 74, 75
sXCC = 76
sA, sB, sD, sE, sF, sG = 77, 78, 79, 80, 81, 82
sFLAG = 83
sLOG2E = 84
sONES, sLO, sHI = 86, 87, 88
sH0, sH1, sH2, sH3 = 89, 90, 92, 93
sTO = 91
sBG = 94
sQ0, sQ1, sR0, sR1, sW3, sW3N, sW4 = 95, 96, 97, 98, 99, 100, 101

vLANE, vL16, vTR0, vTR1, vTRQ, vBG, vP, vT = 0, 1, 2, 3, 4, 5, 6, 7
vNMU, vRHO = 8, 9
vCS, vU, vA0, vA1, vROW, vDIAG = 10, 11, 12, 13, 14, 15
X0 = 16
WK = 144
aI, aPHI, aRING = 224, 232, 240


def V(a, n=1):
    return f"v{a}" if n == 1 else f"v[{a}:{a + n - 1}]"


def A(a, n=1):
    return f"a{a}" if n == 1 else f"a[{a}:{a + n - 1}]"


def S(a, n=4):
    return f"s[{a}:{a + n - 1}]"


class PacedAsm(Asm):
    def __init__(self):
        super().__init__()
        self.bg, self.on, self.acc, self.busy = [], False, 0, False

    def __call__(self, text):
        super().__call__(text)
        if self.on and not self.busy and text.startswith("v_"):
            mn = text.split()[0]
            self.acc += 32 if "mfma" in mn else 8 if mn[2:5] in ("exp", "rcp", "rsq", "per") else 4
            if self.bg and self.acc >= self.bg[0][0]:
                self.pop()

    def pop(self, n=1):
        for _ in range(n):
            if self.bg:
                self.busy = True
                self.bg.pop(0)[1]()
                self.busy = False
                self.acc = 0

    def flush(self):
        self.pop(len(self.bg))

    def capture(self, fn):
        n, on = len(self.lines), self.on
        self.on = False
        fn()
        self.on = on
        got = self.lines[n:]
        del self.lines[n:]
        return got


class Gen:
    def __init__(self, diag=False, force_slow=False, opt=None):
        self.a = PacedAsm()
        self.diag, self.force_slow = diag, force_slow
        self.nstamp, self.stamps = 0, []
        self.opt = dict(pre_a=3, pre_c0=8, t_first=2, gx=60, gw=60, xfirst=12, keep=4, late_r=1, hwt=1, pre_d=0, nt=0, keep0=8, keep1=20, align=1, pre_c=5, layers=2, bar=16, lead=12, lead3=10, lead4=6, prepat=0, wt0=1, amp=0, amp2=0, ampc=0, ampat=0, stf=0)
        self.opt.update(opt or {})

    def stamp(self, name):
        if not self.slow and self.opt["ampat"]:
            self.nstamp += 1
            if self.nstamp - 1 == self.opt["ampat"]:
                self.a("s_memtime s[18:19]")
                self.a.drain(vm=False)
                print("amplified checkpoint:", name)
        if not self.diag or self.slow:
            return
        a = self.a
        on, a.on = a.on, False
        a(f"s_memtime s[{sTM}:{sTM + 1}]")
        a.drain(vm=False)
        a(f"v_writelane_b32 v{vDIAG}, s{sTM}, {self.nstamp}")
        a.on = on
        self.stamps.append(name)
        self.nstamp += 1

    def mfma(self, d, x, y, c=None):
        self.a(f"v_mfma_f32_32x32x16_bf16 {d}, {x}, {y}, {c if c is not None else d}")

    def dma(self, srd, voff, soff, imm=0, counted=True, extra=""):
        o = f" offset:{imm}" if imm else ""
        return self.a.vmop(f"buffer_load_dwordx4 v{voff}, {S(srd)}, {soff} offen{o}{extra} lds", counted)

    def load(self, dst, srd, voff, soff, imm=0, sc1=True, counted=True, extra=""):
        o = (f" offset:{imm}" if imm else "") + extra
        return self.a.vmop(f"buffer_load_dwordx4 {dst}, v{voff}, {S(srd)}, {soff} offen{o}{' sc1' if sc1 else ''}", counted)

    def store(self, src, srd, voff, soff, imm=0, sc1=None, width="dwordx4", counted=True):
        if sc1 is None:
            sc1 = self.slow
        if sc1 == "first":
            sc1 = self.slow or bool(self.opt["wt0"])
        o = f" offset:{imm}" if imm else ""
        fl = " sc1" if sc1 else ""
        if not sc1 and width == "dwordx4":
            fl = ("", " nt", " sc1", " sc0")[self.opt["stf"]]
        return self.a.vmop(f"buffer_store_{width} {src}, v{voff}, {S(srd)}, {soff} offen{o}{fl}", counted)

    def dma_items(self, n, srd, voff, src, src_step, lds, lds0, gap, tags=None, key=None):
        a = self.a

        def item(i):
            def f():
                a(f"s_add_u32 m0, s{lds}, {lds0 + i * 1024}")
                a(f"s_add_u32 s{sBG}, s{src}, {i * src_step}")
                t = self.dma(srd, voff, f"s{sBG}", extra=" nt" if self.opt["nt"] & 4 else "")
                if tags is not None:
                    tags[key] = t
            return gap, f
        return [item(i) for i in range(n)]

    def tr(self, dst, addr, off):
        self.a.ds(f"ds_read_b64_tr_b16 {V(dst, 2)}, v{addr} offset:{off[0]}")
        return self.a.ds(f"ds_read_b64_tr_b16 {V(dst + 2, 2)}, v{addr} offset:{off[1]}")

    def flag_store(self, value, sreg=sFLAG, sc1=None):
        a = self.a
        a("s_mov_b64 exec, 1")
        self.store(V(vT), S_WS, vA1, 0, sc1=sc1, width="dword")
        a("s_mov_b64 exec, -1")

    def signal(self, value, sreg=sFLAG, sc1=None, after=None):
        a = self.a
        a(f"v_mov_b32 v{vT}, {value}")
        a(f"v_mov_b32 v{vA1}, s{sreg}")
        if after is None:
            a.drain(lg=False)
        else:
            a.wait(vm=after)
        self.flag_store(value, sreg, sc1)

    def spin(self, lp, done):
        a = self.a
        a(f"s_cbranch_vccz {done}")
        a(f"s_add_u32 s{sTO}, s{sTO}, 1")
        a(f"s_bitcmp0_b32 s{sTO}, 20")
        a(f"s_cbranch_scc1 {lp}")
        a(f"{done}:")

    def poll_issue(self, addr, srd=S_WS):
        return self.a.vmop(f"buffer_load_dword v{vP}, v{addr}, {S(srd)}, 0 offen sc1")

    def poll(self, addr, test, first=None, srd=S_WS):
        a = self.a
        on, a.on = a.on, False
        if not callable(test):
            value = test
            test = lambda: a(f"v_cmp_gt_u32 vcc, {value}, v{vP}")
        lp, done = a.label("poll"), a.label("go")
        if first is not None:
            a.wait(vm=first)
            test()
            a(f"s_cbranch_vccz {done}")
        a(f"{lp}:")
        a.vmop(f"buffer_load_dword v{vP}, v{addr}, {S(srd)}, 0 offen sc1", counted=first is None)
        if first is None:
            a.drain(lg=False)
        else:
            a("s_waitcnt vmcnt(0)")
        test()
        self.spin(lp, done)
        a.on = on

    def half_reduce2(self, x, y, op):
        a = self.a
        a(f"v_permlane32_swap_b32 v{x}, v{y}")
        a(f"{op} v{x}, v{x}, v{y}")
        a(f"v_mov_b32 v{y}, v{x}")
        a(f"v_permlane32_swap_b32 v{x}, v{y}")

    def finish_stats(self, s, q):
        a = self.a
        self.half_reduce2(s, q, "v_add_f32")
        a(f"v_mul_f32 v{vNMU}, {-1.0 / 512}, v{s}")
        a(f"v_mul_f32 v{q}, {1.0 / 512}, v{q}")
        a(f"v_fma_f32 v{q}, -v{vNMU}, v{vNMU}, v{q}")
        a(f"v_max_f32 v{q}, 0, v{q}")
        a(f"v_add_f32 v{q}, 0x3727c5ac, v{q}")
        a(f"v_rsq_f32 v{vRHO}, v{q}")

    def stats_items(self, base, dst, tags, voff, gap):
        a = self.a
        a(f"s_lshl_b32 s{sR0}, s{sTT}, 12")
        a(f"s_add_u32 s{sR0}, s{sR0}, {base}")
        a(f"v_and_b32 v{vT}, 31, v{vLANE}")
        a(f"v_lshlrev_b32 v{vT}, 4, v{vT}")
        a(f"v_lshrrev_b32 v{voff}, 5, v{vLANE}")
        a(f"v_lshl_add_u32 v{voff}, v{voff}, 11, v{vT}")

        def item(i):
            def f():
                tags["st"] = self.load(V(dst + 4 * i, 4), S_WS, voff, f"s{sR0}", 512 * i)
            return gap, f
        return [item(i) for i in range(4)]

    def sum_stats(self, src, packed=True):
        a = self.a
        for w in (8, 4, 2):
            for i in range(0, w, 2):
                if packed:
                    a(f"v_pk_add_f32 {V(src + i, 2)}, {V(src + i, 2)}, {V(src + w + i, 2)}")
                else:
                    a(f"v_add_f32 v{src + i}, v{src + i}, v{src + w + i}")
                    a(f"v_add_f32 v{src + i + 1}, v{src + i + 1}, v{src + w + i + 1}")
        self.finish_stats(src, src + 1)

    def normalize(self, acc, cs, dst):
        a = self.a
        for i in range(0, 16, 2):
            a(f"v_pk_fma_f32 {V(acc + i, 2)}, {V(cs + i, 2)}, {V(vNMU, 2)}, {V(acc + i, 2)} op_sel_hi:[1,0,1]")
        for i in range(0, 16, 2):
            a(f"v_pk_mul_f32 {V(acc + i, 2)}, {V(acc + i, 2)}, {V(vNMU, 2)} op_sel:[0,1] op_sel_hi:[1,1]")
        self.cvt16(acc, dst)

    def cvt16(self, src, dst):
        for i in range(8):
            self.a(f"v_cvt_pk_bf16_f32 v{dst + i}, v{src + 2 * i}, v{src + 2 * i + 1}")

    def read_cs(self, tile, dst):
        for j, o in enumerate((0, 16, 64, 80)):
            t = self.a.ds(f"ds_read_b128 {V(dst + 4 * j, 4)}, v{vCS} offset:{tile * 128 + o}")
        return t

    def softmax_pair(self, p, tmp, dst):
        a = self.a
        m0, m1 = tmp, tmp + 2
        for g, m in ((p, m0), (p + 8, m1)):
            a(f"v_max3_f32 v{m}, v{g}, v{g + 1}, v{g + 2}")
            a(f"v_max3_f32 v{m + 1}, v{g + 3}, v{g + 4}, v{g + 5}")
            a(f"v_max3_f32 v{m}, v{g + 6}, v{g + 7}, v{m}")
            a(f"v_max_f32 v{m}, v{m}, v{m + 1}")
        self.half_reduce2(m0, m1, "v_max_f32")
        for m in (m0, m1):
            a(f"v_mul_f32 v{m}, 0xbfb8aa3b, v{m}")
        for g, m in ((p, m0), (p + 8, m1)):
            for i in range(0, 8, 2):
                a(f"v_pk_fma_f32 {V(g + i, 2)}, {V(g + i, 2)}, {S(sLOG2E, 2)}, {V(m, 2)} op_sel_hi:[1,1,0]")
        for i in range(16):
            a(f"v_exp_f32 v{p + i}, v{p + i}")
        for g, m in ((p, m0), (p + 8, m1)):
            a(f"v_pk_add_f32 {V(m, 2)}, {V(g, 2)}, {V(g + 2, 2)}")
            a(f"v_pk_add_f32 {V(tmp + 4, 2)}, {V(g + 4, 2)}, {V(g + 6, 2)}")
            a(f"v_pk_add_f32 {V(m, 2)}, {V(m, 2)}, {V(tmp + 4, 2)}")
            a(f"v_add_f32 v{m}, v{m}, v{m + 1}")
        self.half_reduce2(m0, m1, "v_add_f32")
        a(f"v_rcp_f32 v{m0}, v{m0}")
        a(f"v_rcp_f32 v{m1}, v{m1}")
        for g, m in ((p, m0), (p + 8, m1)):
            for i in range(0, 8, 2):
                a(f"v_pk_mul_f32 {V(g + i, 2)}, {V(g + i, 2)}, {V(m, 2)} op_sel_hi:[1,0]")
        self.cvt16(p, dst)

    def natural_col(self, dst):
        a = self.a
        a(f"v_and_b32 v{vT}, 19, v{vLANE}")
        a(f"v_bfe_u32 v{dst}, v{vLANE}, 2, 1")
        a(f"v_lshl_add_u32 v{vT}, v{dst}, 3, v{vT}")
        a(f"v_bfe_u32 v{dst}, v{vLANE}, 3, 1")
        a(f"v_lshl_add_u32 v{vT}, v{dst}, 2, v{vT}")
        a(f"v_lshlrev_b32 v{dst}, 2, v{vT}")

    def fold_halves(self, acc):
        a = self.a
        a(f"v_add_f32 v{acc}, v{acc}, v{acc + 1}")
        a(f"v_mov_b32 v{acc + 1}, v{acc}")
        a(f"v_permlane32_swap_b32 v{acc}, v{acc + 1}")
        a(f"v_add_f32 v{acc}, v{acc}, v{acc + 1}")

    def colsum_write(self, base, accs):
        a = self.a
        self.natural_col(vU)
        a(f"s_mul_i32 s{sA}, s{sW}, {128 * len(accs)}")
        a(f"s_add_u32 s{sA}, s{sA}, {base}")
        a(f"v_add_u32 v{vU}, s{sA}, v{vU}")
        for tile, acc in enumerate(accs):
            self.fold_halves(acc)
            a.ds(f"ds_write_b32 v{vU}, v{acc} offset:{tile * 128}")

    def colsum_final(self, base, ntile, dst, tmp):
        a = self.a
        a(f"v_lshlrev_b32 v{vT}, 2, v{vLANE}")
        if ntile == 1:
            a(f"v_and_b32 v{vT}, 127, v{vT}")
        a(f"v_add_u32 v{vU}, {base}, v{vT}")
        for w in range(4):
            t = a.ds(f"ds_read_b32 v{tmp + w}, v{vU} offset:{128 * ntile * w}")
        a(f"v_add_u32 v{vU}, {dst}, v{vT}")
        a.wait(lg=t)
        a(f"v_add_f32 v{tmp}, v{tmp}, v{tmp + 1}")
        a(f"v_add_f32 v{tmp + 2}, v{tmp + 2}, v{tmp + 3}")
        a(f"v_add_f32 v{tmp}, v{tmp}, v{tmp + 2}")
        return a.ds(f"ds_write_b32 v{vU}, v{tmp}")

    def prologue(self):
        a = self.a
        if self.opt["amp2"] == 2:
            a("s_memrealtime s[12:13]")
        a("s_cmp_ge_u32 s2, 256")
        a("s_cbranch_scc1 L_end")
        a("s_getpc_b64 s[4:5]")
        for srd, off in ((S_AX, 0), (S_WQ, 8), (S_WS, 80), (S_WG, 40), (S_WU, 48), (S_WD, 56), (S_DBG, 72), (S_PHI, 16),
                         (S_WO, 24), (S_OUT, 64)):
            a(f"s_load_dwordx2 s[{srd}:{srd + 1}], s[0:1], {off}")
        a(f"v_lshrrev_b32 v{vU}, 6, v0")
        a(f"v_and_b32 v{vT}, 3, v0")
        a(f"v_lshl_add_u32 v{vT}, v{vU}, 2, v{vT}")
        a(f"s_lshr_b32 s{sG}, s2, 3")
        a(f"s_lshl_b32 s{sA}, s{sG}, 11")
        a(f"v_lshl_add_u32 v{vT}, v{vT}, 7, s{sA}")
        a.vmop(f"global_load_dword v255, v{vT}, s[4:5]")
        a(f"v_readfirstlane_b32 s{sW}, v{vU}")
        a(f"s_getreg_b32 s{sXCC}, hwreg(HW_REG_XCC_ID, 0, 4)")
        a(f"v_and_b32 v{vLANE}, 63, v0")
        a(f"v_lshlrev_b32 v{vL16}, 4, v{vLANE}")
        for srd, size in ((S_AX, 2 << 20), (S_WQ, 512 * 1536 * 2), (S_WS, WS_SIZE), (S_WG, 512 * 1792 * 2),
                          (S_WU, 512 * 1792 * 2), (S_WD, 1792 * 512 * 2), (S_DBG, 256), (S_PHI, 16384),
                          (S_WO, 512 * 512 * 2), (S_OUT, 2 << 20)):
            a(f"s_mov_b32 s{srd + 2}, {size}")
            a(f"s_mov_b32 s{srd + 3}, 0x20000")
        if self.diag:
            a(f"v_mov_b32 v{vDIAG}, 0")
        a(f"s_mov_b32 s{sTO}, 0")
        a(f"s_and_b32 s{sD}, s{sXCC}, 7")
        a(f"s_lshl_b32 s{sCL}, s{sD}, 1")
        a(f"s_lshr_b32 s{sA}, s2, 7")
        a(f"s_add_u32 s{sCL}, s{sCL}, s{sA}")
        a(f"s_bfe_u32 s{sC}, s2, 0x40003")
        a(f"s_lshl_b32 s{sE}, s{sG}, 2")
        a(f"s_add_u32 s{sE}, s{sE}, s{sW}")
        a(f"s_lshl_b32 s{sA}, s{sD}, 18")
        a(f"s_lshl_b32 s{sB}, s{sE}, 11")
        a(f"s_add_u32 s{sH2}, s{sA}, s{sB}")
        a(f"s_mul_i32 s{sH3}, s{sE}, 3072")
        a(f"v_and_b32 v{vT}, 1, v{vLANE}")
        a(f"v_bfe_u32 v{vU}, v{vLANE}, 1, 1")
        a(f"v_lshlrev_b32 v{vT}, 7, v{vT}")
        a(f"v_lshl_add_u32 v250, v{vU}, 10, v{vT}")
        a(f"v_and_b32 v{vT}, 15, v{vLANE}")
        a(f"v_lshlrev_b32 v251, 7, v{vT}")
        a("s_waitcnt lgkmcnt(0)")
        for r in range(self.opt["t_first"]):
            for _, f in self.touch_items(r):
                f()

    def clear_flags(self):
        a = self.a
        skip = a.label("clr")
        a(f"s_cmp_lg_u32 s{sW}, 3")
        a(f"s_cbranch_scc1 {skip}")
        a(f"s_lshl_b32 s{sA}, s{sCL}, 8")
        a(f"s_lshl_b32 s{sB}, s{sC}, 2")
        a(f"s_add_u32 s{sA}, s{sA}, s{sB}")
        a(f"s_lshl_b32 s{sB}, s{sC}, 8")
        a(f"s_lshl_b32 s{sD}, s{sCL}, 2")
        a(f"s_add_u32 s{sB}, s{sB}, s{sD}")
        a(f"s_lshr_b32 s{sD}, s2, 4")
        a(f"s_and_b32 s{sF}, s2, 15")
        a(f"s_lshl_b32 s{sG}, s{sD}, 8")
        a(f"s_lshl_b32 s{sBG}, s{sF}, 2")
        a(f"s_add_u32 s{sG}, s{sG}, s{sBG}")
        a(f"s_lshl_b32 s{sF}, s{sF}, 8")
        a(f"s_lshl_b32 s{sD}, s{sD}, 2")
        a(f"s_add_u32 s{sF}, s{sF}, s{sD}")
        a(f"s_lshl_b32 s{sD}, s2, 2")
        a(f"v_mov_b32 v{vU}, s{sB}")
        a(f"v_writelane_b32 v{vU}, s{sA}, 0")
        a(f"v_writelane_b32 v{vU}, s{sD}, 3")
        a(f"v_writelane_b32 v{vU}, s{sG}, 4")
        a(f"v_writelane_b32 v{vU}, s{sF}, 5")
        a(f"v_writelane_b32 v{vU}, s{sF}, 6")
        a(f"v_lshl_add_u32 v{vU}, v{vLANE}, 12, v{vU}")
        a(f"v_mov_b32 v{vT}, 0")
        a("s_mov_b64 exec, 0x7f")
        for w in range(4):
            self.store(V(vT), S_WS, vU, 0, 64 * w, sc1=True, width="dword", counted=False)
            if w == 0:
                a("s_mov_b64 exec, 0x77")
        a("s_mov_b64 exec, -1")
        a(f"{skip}:")

    def touch_items(self, r):
        a = self.a

        def w():
            a(f"s_add_u32 s{sBG}, s{sH3}, {128 * r * 3072 + 1024}")
            a.vmop(f"buffer_load_dword v253, v251, {S(S_WQ)}, s{sBG} offen")
        return [(40, w), (40, lambda: a.vmop(f"buffer_load_dword v254, v250, {S(S_AX)}, s{sH2} offen offset:{256 * r}"))]

    def late_touch_items(self, va, vb, dst):
        a = self.a
        a(f"s_lshr_b32 s{sQ1}, s2, 3")
        a(f"s_lshl_b32 s{sQ1}, s{sQ1}, 2")
        a(f"s_add_u32 s{sQ1}, s{sQ1}, s{sW}")
        a(f"s_mul_i32 s{sQ0}, s{sQ1}, {4 * 3072}")
        a(f"s_lshl_b32 s{sQ1}, s{sQ1}, 12")
        a(f"v_and_b32 v{vT}, 7, v{vLANE}")
        a(f"v_lshlrev_b32 v{vT}, 7, v{vT}")
        a(f"v_bfe_u32 v{va}, v{vLANE}, 3, 2")
        a(f"v_lshl_add_u32 v{vb}, v{va}, 10, v{vT}")
        a(f"v_mul_u32_u24 v{va}, 3072, v{va}")
        a(f"v_add_u32 v{va}, v{va}, v{vT}")
        return [(72, lambda: a.vmop(f"buffer_load_dword v{dst}, v{va}, {S(S_WQ)}, s{sQ0} offen")),
                (72, lambda: a.vmop(f"buffer_load_dword v{dst}, v{vb}, {S(S_WO)}, s{sQ1} offen"))]

    def slot_scalars(self):
        a = self.a
        a(f"s_lshl_b32 s{sTT}, s{sCL}, 2")
        a(f"s_add_u32 s{sTT}, s{sTT}, s{sW}")
        a(f"s_and_b32 s{sCT}, s{sC}, 7")
        a(f"s_lshr_b32 s{sTH2}, s{sC}, 3")
        a(f"s_lshr_b32 s{sKH}, s{sW}, 1")
        a(f"s_and_b32 s{sTH}, s{sW}, 1")

    def lane_consts(self):
        a = self.a
        a(f"v_bfe_u32 v{vT}, v{vLANE}, 2, 2")
        a(f"v_lshrrev_b32 v{vU}, 5, v{vLANE}")
        a(f"v_lshl_add_u32 v{vA0}, v{vU}, 3, v{vT}")
        a(f"v_and_b32 v{vA1}, 1, v{vLANE}")
        a(f"v_lshlrev_b32 v{vA1}, 4, v{vA1}")
        a(f"v_bfe_u32 v{vP}, v{vLANE}, 1, 1")
        a(f"v_lshl_add_u32 v{vA1}, v{vP}, 3, v{vA1}")
        a(f"v_bfe_u32 v{vP}, v{vLANE}, 4, 1")
        a(f"v_lshl_add_u32 v{vA1}, v{vP}, 5, v{vA1}")
        a(f"v_lshl_add_u32 v{vTRQ}, v{vA0}, 6, v{vA1}")
        a(f"v_add_u32 v{vTRQ}, {ZQ}, v{vTRQ}")
        a(f"v_lshl_add_u32 v{vTR0}, v{vA0}, 7, v{vA1}")
        a(f"v_lshrrev_b32 v{vT}, 1, v{vT}")
        a(f"v_lshl_add_u32 v{vTR0}, v{vT}, 6, v{vTR0}")
        a(f"v_xor_b32 v{vTR1}, 64, v{vTR0}")
        a(f"v_lshlrev_b32 v{vCS}, 5, v{vU}")
        a(f"v_add_u32 v{vCS}, {PERS}, v{vCS}")
        a(f"s_lshl_b32 s{sA}, s{sTT}, 6")
        a(f"s_lshl_b32 s{sB}, s{sC}, 2")
        a(f"s_add_u32 s{sFLAG}, s{sA}, s{sB}")
        if self.slow:
            a(f"s_add_u32 s{sFLAG}, s{sFLAG}, {WS_ALT}")
        a(f"s_mov_b32 s{sLOG2E}, 0x3fb8aa3b")
        a(f"s_mov_b32 s{sLOG2E + 1}, 0x3fb8aa3b")
        a(f"s_mov_b32 s{sONES}, 0x3f803f80")
        a(f"s_mov_b32 s{sLO}, 0x3f80")
        a(f"s_mov_b32 s{sHI}, 0x3f800000")
        a(f"v_bfe_u32 v{vT}, v{vLANE}, 2, 1")
        a(f"v_cmp_eq_u32 vcc, v{vT}, v{vU}")
        a(f"v_and_b32 v{vT}, 1, v{vLANE}")
        a(f"v_lshlrev_b32 v{vT}, 4, v{vT}")
        a(f"v_mov_b32 v{vA0}, 0x3f80")
        a(f"v_lshlrev_b32 v{vA0}, v{vT}, v{vA0}")
        a(f"v_cndmask_b32 v{vA0}, 0, v{vA0}, vcc")
        a(f"v_bfe_u32 v{vT}, v{vLANE}, 1, 1")
        a(f"v_bfe_u32 v{vA1}, v{vLANE}, 3, 2")
        a(f"v_lshl_add_u32 v{vT}, v{vA1}, 1, v{vT}")
        for r in range(8):
            a(f"v_cmp_eq_u32 vcc, {r}, v{vT}")
            a(f"v_cndmask_b32 v{vA1}, 0, v{vA0}, vcc")
            a(f"v_accvgpr_write_b32 a{aI + r}, v{vA1}")

    def w1q_items(self):
        a = self.a
        a(f"v_lshrrev_b32 v{vT}, 2, v{vLANE}")
        a(f"v_mul_u32_u24 v{vT}, 3072, v{vT}")
        a(f"v_and_b32 v{vBG}, 3, v{vLANE}")
        a(f"v_lshl_add_u32 v{vBG}, v{vBG}, 4, v{vT}")
        a(f"s_mul_i32 s{sQ0}, s{sW}, {128 * 3072}")
        a(f"s_lshl_b32 s{sB}, s{sC}, 6")
        a(f"s_add_u32 s{sQ0}, s{sQ0}, s{sB}")
        a(f"s_lshl_b32 s{sQ1}, s{sW}, 13")
        return self.dma_items(8, S_WQ, vBG, sQ0, 16 * 3072, sQ1, ZQ, 140)

    def swz_voff(self, dst, stride, lo, hi):
        a = self.a
        a(f"v_lshrrev_b32 v{vT}, 3, v{vLANE}")
        a(f"v_mul_u32_u24 v{vT}, {stride}, v{vT}")
        a(f"v_and_b32 v{dst}, 3, v{vLANE}")
        a(f"v_lshl_add_u32 v{vT}, v{dst}, 4, v{vT}")
        a(f"v_lshrrev_b32 v{dst}, 2, v{vLANE}")
        a(f"v_lshrrev_b32 v{vU}, 4, v{vLANE}")
        a(f"v_xor_b32 v{dst}, v{dst}, v{vU}")
        a(f"v_and_b32 v{dst}, 1, v{dst}")
        a(f"v_mul_u32_u24 v{dst}, {hi - lo}, v{dst}")
        if lo:
            a(f"v_add_u32 v{vT}, {lo}, v{vT}")
        a(f"v_add_u32 v{dst}, v{dst}, v{vT}")

    def w2_items(self):
        a = self.a
        self.swz_voff(vROW, 1024, 0, 64)
        a(f"s_lshl_b32 s{sH3}, s{sW}, 14")
        a(f"s_lshl_b32 s{sA}, s{sW}, 17")
        a(f"s_lshl_b32 s{sB}, s{sCT}, 7")
        a(f"s_add_u32 s{sH2}, s{sA}, s{sB}")
        a(f"s_sub_u32 s{sA}, s{sH2}, 16384")
        a(f"s_and_b32 s{sR0}, s{sA}, 0x7ffff")
        late = self.dma_items(2, S_WO, vROW, sR0, 8192, sH3, ZW2, 72)
        return self.dma_items(14, S_WO, vROW, sH2, 8192, sH3, ZW2 + 2048, 60), late

    def w2_read(self, kbs):
        a = self.a
        a(f"s_lshl_b32 s{sA}, s{sKH}, 15")
        a(f"s_add_u32 s{sA}, s{sA}, {ZW2 + 2048}")
        a(f"s_mul_i32 s{sB}, s{sKH}, {-32768 & 0xffffffff}")
        a(f"s_add_u32 s{sB}, s{sB}, {ZW2 + 32768}")
        a(f"v_add_u32 v{vT}, s{sA}, v{vTR0}")
        a(f"v_add_u32 v{vU}, s{sA}, v{vTR1}")
        for kb in kbs:
            if kb == 15:
                a(f"v_add_u32 v{vT}, s{sB}, v{vTR0}")
                a(f"v_add_u32 v{vU}, s{sB}, v{vTR1}")
            o = kb * 2048 if kb < 15 else 0
            for nt in range(2):
                t = self.tr(X0 + (kb * 2 + nt) * 4, (vT, vU)[nt], (o, o + 512))
        return t

    def ring_init(self):
        a = self.a
        self.ring_next, self.ring_tag = 0, {}
        a(f"s_lshl_b32 s{sW3N}, s{sW}, 11")
        a(f"s_mul_i32 s{sW3}, s{sC}, {224 * 1024}")
        a(f"s_add_u32 s{sW3}, s{sW3}, s{sW3N}")
        a(f"s_add_u32 s{sW3}, s{sW3}, {WS_W3}")

    def ring_one(self):
        a = self.a
        s, h = divmod(self.ring_next, 2)
        a(f"s_add_u32 m0, s{sW3N}, {RING_AT[s % NSLOT] + 1024 * h}")
        a(f"s_add_u32 s{sBG}, s{sW3}, {s * 8192 + 1024 * h}")
        self.ring_tag[s] = self.dma(S_WS, vL16, f"s{sBG}", extra=" nt" if self.opt["nt"] & 1 and not self.opt["keep0"] <= s < self.opt["keep1"] else "")
        self.ring_next += 1

    def ring_items(self, stages, gap=72):
        return [(gap, self.ring_one) for _ in range(2 * stages)]

    def w4_init(self):
        a = self.a
        self.w4_next = 0
        a(f"s_mul_i32 s{sW4}, s{sCT}, {224 * 1024}")
        a(f"s_mul_i32 s{sB}, s{sW}, {56 * 1024}")
        a(f"s_add_u32 s{sW4}, s{sW4}, s{sB}")
        a(f"s_add_u32 s{sW4}, s{sW4}, {WS_W4}")

    def w4_one(self):
        f = self.w4_next
        if f and f % 4 == 0:
            self.a(f"s_add_u32 s{sW4}, s{sW4}, 4096")
        self.load(A(4 * f, 4), S_WS, vL16, f"s{sW4}", (f % 4) * 1024, sc1=False, extra=" nt" if self.opt["nt"] & 2 else "")
        self.w4_next += 1

    def publish(self):
        a = self.a
        skip = a.label("pub")
        a(f"s_cmp_lg_u32 s{sW}, 3")
        a(f"s_cbranch_scc1 {skip}")
        a(f"s_min_u32 s{sD}, s{sXCC}, 14")
        a(f"s_add_u32 s{sD}, s{sD}, 1")
        a(f"s_and_b32 s{sA}, s2, 3")
        a(f"s_lshl_b32 s{sA}, s{sA}, 3")
        a(f"s_lshl_b32 s{sA}, s{sD}, s{sA}")
        a(f"s_and_b32 s{sB}, s2, 0xfc")
        a(f"v_mov_b32 v{vT}, s{sA}")
        a(f"v_mov_b32 v{vU}, s{sB}")
        a("s_mov_b64 exec, 1")
        a.vmop(f"buffer_atomic_or v{vT}, v{vU}, {S(S_DBG)}, 0 offen sc1", counted=False)
        a("s_mov_b64 exec, -1")
        a(f"{skip}:")

    def prep_done(self):
        a = self.a
        skip = a.label("pd")
        a(f"s_cmp_lg_u32 s{sW}, 3")
        a(f"s_cbranch_scc1 {skip}")
        a(f"s_lshl_b32 s{sA}, s2, 2")
        a(f"s_add_u32 s{sA}, s{sA}, {WS_PREP}")
        a(f"v_mov_b32 v{vT}, 1")
        a(f"v_mov_b32 v{vU}, s{sA}")
        a("s_mov_b64 exec, 1")
        self.store(V(vT), S_WS, vU, 0, sc1=True, width="dword", counted=False)
        a("s_mov_b64 exec, -1")
        a(f"{skip}:")

    def prep_wait(self, dst, first):
        a = self.a
        lp, done = a.label("pw"), a.label("pwok")

        def test():
            a(f"v_min_u32 v{dst}, v{dst}, v{dst + 1}")
            a(f"v_min3_u32 v{dst}, v{dst}, v{dst + 2}, v{dst + 3}")
            a(f"v_cmp_eq_u32 vcc, 0, v{dst}")
        a.wait(vm=first)
        test()
        a(f"s_cbranch_vccz {done}")
        a(f"{lp}:")
        self.prep_poll(dst, counted=False)
        a("s_waitcnt vmcnt(0)")
        test()
        self.spin(lp, done)

    def prep_poll(self, dst, counted=True):
        self.a(f"s_mov_b32 s{sBG}, {WS_PREP}")
        return self.load(V(dst, 4), S_WS, vL16, f"s{sBG}", counted=counted)

    def table_check(self, first):
        a = self.a

        def test():
            a(f"v_add_u32 v{vU}, 0x7f7f7f7f, v{vP}")
            a(f"v_and_b32 v{vU}, 0x80808080, v{vU}")
            a(f"v_cmp_ne_u32 vcc, 0x80808080, v{vU}")
        a(f"v_lshlrev_b32 v{vA0}, 2, v{vLANE}")
        self.poll(vA0, test, first=first, srd=S_DBG)
        a(f"v_mov_b32 v{vU}, 0")
        for b in range(4):
            a(f"v_bfe_u32 v{vT}, v{vP}, {8 * b}, 4")
            a(f"v_lshlrev_b32 v{vT}, v{vT}, 1")
            a(f"v_or_b32 v{vU}, v{vU}, v{vT}")
        a(f"v_or_b32_dpp v{vU}, v{vU}, v{vU} quad_perm:[1,0,3,2] row_mask:0xf bank_mask:0xf")
        a(f"v_cmp_ne_u32 vcc, 0x1fe, v{vU}")
        a("s_branch L_slow" if self.force_slow else "s_cbranch_vccnz L_slow")

    def prep_items(self):
        a = self.a
        va, vb = WK + 78, WK + 79
        a(f"v_lshrrev_b32 v{vT}, 3, v{vLANE}")
        a(f"v_and_b32 v{vU}, 7, v{vLANE}")
        a(f"v_lshlrev_b32 v{vU}, 4, v{vU}")
        a(f"v_lshl_add_u32 v{vb}, v{vT}, 10, v{vU}")
        a(f"v_mul_u32_u24 v{vT}, 3584, v{vT}")
        a(f"v_add_u32 v{va}, v{vT}, v{vU}")
        a(f"s_min_u32 s{sF}, s2, 223")
        a(f"s_and_b32 s{sA}, s{sF}, 7")
        a(f"s_lshl_b32 s{sA}, s{sA}, 2")
        a(f"s_add_u32 s{sA}, s{sA}, s{sW}")
        a(f"s_mul_i32 s{sA}, s{sA}, {16 * 3584}")
        a(f"s_lshr_b32 s{sB}, s{sF}, 3")
        a(f"s_lshl_b32 s{sB}, s{sB}, 7")
        a(f"s_add_u32 s{sW3}, s{sA}, s{sB}")
        a(f"s_lshl_b32 s{sW3N}, s{sW}, 11")
        a(f"s_lshl_b32 s{sA}, s{sF}, 2")
        a(f"s_add_u32 s{sA}, s{sA}, s{sW}")
        a(f"s_and_b32 s{sB}, s{sA}, 7")
        a(f"s_lshl_b32 s{sB}, s{sB}, 7")
        a(f"s_lshr_b32 s{sA}, s{sA}, 3")
        a(f"s_lshl_b32 s{sA}, s{sA}, 14")
        a(f"s_add_u32 s{sW4}, s{sA}, s{sB}")
        return [self.dma_items(2, S_WG, va, sW3, 8 * 3584, sW3N, PREP_G, 60),
                self.dma_items(2, S_WU, va, sW3, 8 * 3584, sW3N, PREP_U, 60),
                self.dma_items(2, S_WD, vb, sW4, 8192, sW3N, PREP_D, 60)]

    def prep_setup(self):
        a = self.a
        a(f"s_lshr_b32 s{sA}, s2, 3")
        a(f"s_lshl_b32 s{sA}, s{sA}, 2")
        a(f"s_add_u32 s{sA}, s{sA}, s{sW}")
        a(f"s_mul_i32 s{sB}, s{sA}, 9363")
        a(f"s_lshr_b32 s{sB}, s{sB}, 16")
        a(f"s_mul_i32 s{sD}, s{sB}, 7")
        a(f"s_sub_u32 s{sD}, s{sA}, s{sD}")
        a(f"s_mul_i32 s{sB}, s{sB}, {224 * 1024}")
        a(f"s_add_u32 s{sB}, s{sB}, {WS_W3}")
        a(f"s_and_b32 s{sF}, s2, 7")
        a("s_mov_b32 s11, 4096")
        a(f"s_cmp_ge_u32 s{sD}, 4")
        a("s_cselect_b32 s11, 2048, s11")
        a(f"s_cselect_b32 s{sG}, {124 * 1024}, 0")
        a(f"s_cmp_ge_u32 s{sD}, 6")
        a("s_cselect_b32 s11, 1024, s11")
        a(f"s_cselect_b32 s{sG}, {186 * 1024}, s{sG}")
        a(f"s_lshl_b32 s{sD}, s{sD}, 10")
        a(f"s_add_u32 s{sB}, s{sB}, s{sD}")
        a(f"s_add_u32 s{sB}, s{sB}, s{sG}")
        a(f"s_mul_i32 s{sD}, s{sF}, s11")
        a(f"s_lshl_b32 s{sD}, s{sD}, 2")
        a(f"s_add_u32 s10, s{sB}, s{sD}")
        a(f"s_mul_i32 s{sF}, s{sF}, 112")
        a(f"s_add_u32 s{sF}, s{sF}, s{sA}")
        a(f"s_lshl_b32 s{sF}, s{sF}, 7")
        a(f"s_add_u32 s12, s{sF}, {WS_CS3}")
        a(f"s_lshl_b32 s{sA}, s2, 2")
        a(f"s_add_u32 s{sA}, s{sA}, s{sW}")
        a(f"s_and_b32 s{sD}, s{sA}, 7")
        a(f"s_mul_i32 s{sD}, s{sD}, {224 * 1024}")
        a(f"s_lshr_b32 s{sA}, s{sA}, 3")
        a(f"s_lshl_b32 s{sA}, s{sA}, 11")
        a(f"s_add_u32 s{sA}, s{sA}, s{sD}")
        a(f"s_add_u32 s13, s{sA}, {WS_W4}")

    def prep_write(self, tmp):
        a = self.a
        va, vb, vc = vA0, vA1, vU
        on, a.on = a.on, False
        skip = a.label("noprepw")
        a("s_cmp_ge_u32 s2, 224")
        a(f"s_cbranch_scc1 {skip}")
        a(f"v_and_b32 v{va}, 0xffffffbf, v{vTR0}")
        a(f"s_lshl_b32 s{sA}, s{sW}, 11")
        a(f"s_add_u32 s{sA}, s{sA}, {PREP_D}")
        a(f"v_add_u32 v{vb}, s{sA}, v{va}")
        a(f"v_and_b32 v{vT}, 32, v{va}")
        a(f"v_and_b32 v{va}, 0xffffffdf, v{va}")
        a(f"v_lshl_add_u32 v{va}, v{vT}, 8, v{va}")
        a(f"s_lshl_b32 s{sA}, s{sW}, 5")
        a(f"s_add_u32 s{sA}, s{sA}, {PREP_G}")
        a(f"v_add_u32 v{va}, s{sA}, v{va}")
        for j in range(4):
            a(f"ds_read_b64_tr_b16 {V(tmp + 4 * j, 2)}, v{va} offset:{j * 2048}")
            a(f"ds_read_b64_tr_b16 {V(tmp + 4 * j + 2, 2)}, v{va} offset:{j * 2048 + 512}")
        for j in range(2):
            a(f"ds_read_b64_tr_b16 {V(tmp + 16 + 4 * j, 2)}, v{vb} offset:{j * 64}")
            a(f"ds_read_b64_tr_b16 {V(tmp + 18 + 4 * j, 2)}, v{vb} offset:{j * 64 + 512}")
        acc = tmp + 24
        self.natural_col(vc)
        a(f"v_mov_b32 v{acc}, 0")
        a(f"v_mov_b32 v{acc + 1}, 0")
        a("s_waitcnt lgkmcnt(0)")
        a("s_barrier")
        for j in range(4):
            self.store(V(tmp + 4 * j, 4), S_WS, vL16, "s10", sc1=True, counted=False)
            if j < 3:
                a("s_add_u32 s10, s10, s11")
            for i in range(4):
                a(f"v_dot2c_f32_bf16 v{acc + (i & 1)}, s{sONES}, v{tmp + 4 * j + i}")
        for j in range(2):
            self.store(V(tmp + 16 + 4 * j, 4), S_WS, vL16, "s13", 1024 * j, sc1=True, counted=False)
        self.fold_halves(acc)
        self.store(V(acc), S_WS, vc, "s12", sc1=True, width="dword", counted=False)
        done = a.label("prepd")
        a(f"s_branch {done}")
        a(f"{skip}:")
        a("s_barrier")
        a(f"{done}:")
        a.on = on

    def p1_start_l0(self):
        a = self.a
        first = not self.slow
        self.slot_scalars()
        xa, wv = WK, WK + 10
        a(f"v_lshrrev_b32 v{vT}, 3, v{vLANE}")
        a(f"v_lshrrev_b32 v{vU}, 4, v{vLANE}")
        a(f"v_xor_b32 v{vU}, v{vU}, v{vLANE}")
        a(f"v_and_b32 v{vU}, 7, v{vU}")
        a(f"v_lshlrev_b32 v{vU}, 4, v{vU}")
        a(f"v_lshl_add_u32 v{xa}, v{vT}, 10, v{vU}")
        a(f"v_xor_b32 v{xa + 1}, 64, v{xa}")
        a(f"s_lshl_b32 s{sH0}, s{sTT}, 15")
        a(f"s_lshl_b32 s{sH1}, s{sW}, 14")
        a(f"s_add_u32 s{sH1}, s{sH1}, {XS}")
        self.swz_voff(wv, 3072, 1024, 2048)
        a(f"s_mul_i32 s{sR0}, s{sW}, {32 * 3072}")
        a(f"s_lshl_b32 s{sB}, s{sC}, 6")
        a(f"s_add_u32 s{sR0}, s{sR0}, s{sB}")
        a(f"s_lshl_b32 s{sR1}, s{sW}, 12")
        tg, done_items = {}, [0] * 4

        def range_items(r):
            def xi(s, i):
                def f():
                    a(f"s_add_u32 m0, s{sH1}, {(s % 4) * 4096 + i * 1024}")
                    a(f"s_add_u32 s{sBG}, s{sH0}, {i * 8192 + s * 128}")
                    tg["x", s] = self.dma(S_AX, xa + (i & 1), f"s{sBG}")
                    done_items[r] += 1
                return self.opt["gx"], f

            def wi(i):
                def f():
                    a(f"s_add_u32 m0, s{sR1}, {r * 16384 + i * 1024}")
                    a(f"s_add_u32 s{sBG}, s{sR0}, {(128 * r + 8 * i) * 3072}")
                    tg["w", r] = self.dma(S_WQ, wv, f"s{sBG}")
                    done_items[r] += 1
                return self.opt["gw"], f
            return [xi(2 * r, i) for i in range(4)] + [xi(2 * r + 1, i) for i in range(4)] + [wi(i) for i in range(4)]
        a(f"s_mov_b32 m0, {PHI_IMG}")
        a(f"s_lshl_b32 s{sA}, s{sC}, 10")
        self.dma(S_PHI, vL16, f"s{sA}")
        tch = self.touch_items if first else (lambda r: [])
        r0, r1 = range_items(0), range_items(1)
        if self.opt["t_first"] == 1:
            a.bg = r0[:8] + tch(1) + r0[8:] + tch(2) + r1[:8] + tch(3) + r1[8:]
        else:
            a.bg = r0 + tch(2) + r1 + tch(3)
        a.pop(6)
        if first:
            self.clear_flags()
        late = self.late_touch_items(vBG, vROW, vP) if first else []
        prep = self.prep_items() if first else [[], [], []]
        a.on = True
        self.lane_consts()
        ra = WK + 2
        a(f"v_and_b32 v{vT}, 31, v{vLANE}")
        a(f"v_bfe_u32 v{vU}, v{vLANE}, 1, 3")
        a(f"v_lshrrev_b32 v{vP}, 5, v{vLANE}")
        a(f"v_xor_b32 v{vU}, v{vU}, v{vP}")
        a(f"v_lshlrev_b32 v{vU}, 4, v{vU}")
        a(f"v_lshl_add_u32 v{vU}, v{vT}, 7, v{vU}")
        for j in range(4):
            a(f"v_xor_b32 v{ra + j}, {32 * j}, v{vU}")
            a(f"v_add_u32 v{ra + j}, s{sH1}, v{ra + j}")
        ss, sq, ck, cv, ca = WK + 6, WK + 8, WK + 12, WK + 14, WK + 76
        for r in (ss, ss + 1, sq, sq + 1, ck, ck + 1, cv, cv + 1):
            a(f"v_mov_b32 v{r}, 0")
        a(f"v_add_u32 v{ca}, s{sR1}, v{vTR0}")
        a(f"v_add_u32 v{ca + 1}, s{sR1}, v{vTR1}")
        if first:
            self.prep_setup()
        a.pop(len(a.bg) - self.opt["keep"])
        self.stamp("issued")
        accK, accV, ring, tmp = WK + 16, WK + 32, WK + 48, WK + 80
        def xread(r):
            while done_items[r] < 8:
                a.pop()
            a.wait(vm=tg["x", 2 * r + 1])
            return [f"ds_read_b128 {V(X0 + (4 * s + j) * 4, 4)}, v{ra + j} offset:{(s % 4) * 4096}"
                    for s in (2 * r, 2 * r + 1) for j in range(4)]
        for l in xread(0):
            a.ds(l)
        for r in range(4):
            while done_items[r] < 12:
                a.pop()
            a.wait(vm=tg["w", r])
            for j in range(2):
                self.tr(tmp + 8 * j, ca, (r * 16384 + j * 2048, r * 16384 + j * 2048 + 512))
                t = self.tr(tmp + 8 * j + 4, ca + 1, (r * 16384 + j * 2048, r * 16384 + j * 2048 + 512))
            a("s_barrier")
            a.wait(lg=t - 8)
            if r < 2:
                a.bg += range_items(r + 2)
            if r == self.opt["late_r"]:
                a.bg += late + sum(prep, [])
            pre = self.gemm_kv_head(8 * r, ring)
            for x in range(X0 + 32 * r, X0 + 32 * r + 32):
                a(f"v_dot2c_f32_bf16 v{ss + (x & 1)}, s{sONES}, v{x}")
                a(f"v_dot2c_f32_bf16 v{sq + (x & 1)}, v{x}, v{x}")
            a.wait(lg=t)
            for j in range(16):
                a(f"v_dot2c_f32_bf16 v{(cv if j & 4 else ck) + (j & 1)}, s{sONES}, v{tmp + j}")
            self.stamp(f"range{r}")
            self.gemm_kv(range(8 * r, 8 * r + 8), None, accK, accV, ring, pre=pre,
                         hook=(8 * r + 5, (lambda r=r: xread(r + 1))) if r < 3 else None)
            if r == 0:
                self.phi_operands(tmp)
        rest, a.bg = a.bg, []
        a.on = False
        self.colsum_write(CSP, (ck, cv))
        a(f"v_add_f32 v{ss}, v{ss}, v{ss + 1}")
        a(f"v_add_f32 v{sq}, v{sq}, v{sq + 1}")
        self.finish_stats(ss, sq)
        a.drain(vm=False)
        a("s_barrier")
        if first:
            self.publish()
        self.colsum_final(CSP, 2, CS1, tmp)
        a.bg = rest
        a.flush()
        a.bg = self.w1q_items()
        self.stamp("kvgemm")
        return accK, accV

    def out_touch_items(self):
        a = self.a
        va = WK + 110
        self.res_addr()
        a(f"s_lshl_b32 s15, s{sTT}, 15")
        a(f"s_lshl_b32 s{sB}, s{sC}, 11")
        a(f"s_add_u32 s15, s15, s{sB}")
        a(f"s_add_u32 s15, s15, {WS_A}")
        a(f"s_add_u32 s16, s{sE}, {WS_B}")
        a(f"s_sub_u32 s16, s16, s15")
        a(f"s_add_u32 s17, s{sF}, {WS_ST}")
        a(f"s_sub_u32 s17, s17, s15")
        a(f"v_and_b32 v{vT}, 15, v{vLANE}")
        a(f"v_lshlrev_b32 v{vT}, 7, v{vT}")
        a(f"v_mov_b32 v{va}, s17")
        a(f"v_and_b32 v{vU}, 0x1ff, v{vT}")
        a(f"v_add_u32 v{va}, v{va}, v{vU}")
        a(f"v_add_u32 v{vU}, s16, v{vT}")
        a(f"v_cmp_gt_u32 vcc, 48, v{vLANE}")
        a(f"v_cndmask_b32 v{va}, v{va}, v{vU}, vcc")
        a(f"v_cmp_gt_u32 vcc, 16, v{vLANE}")
        a(f"v_cndmask_b32 v{va}, v{va}, v{vT}, vcc")
        a(f"v_add_u32 v{va}, s15, v{va}")
        return [(72, lambda: a.vmop(f"buffer_load_dword v{va}, v{va}, {S(S_WS)}, 0 offen"))]

    def phi_operands(self, tmp):
        a = self.a
        a(f"v_bfe_u32 v{vT}, v{vLANE}, 2, 2")
        a(f"v_lshrrev_b32 v{vU}, 5, v{vLANE}")
        a(f"v_lshl_add_u32 v{vT}, v{vU}, 3, v{vT}")
        a(f"v_and_b32 v{vU}, 3, v{vLANE}")
        a(f"v_lshlrev_b32 v{vU}, 3, v{vU}")
        a(f"v_lshl_add_u32 v{vT}, v{vT}, 5, v{vU}")
        a(f"v_add_u32 v{vT}, {PHI_IMG}, v{vT}")
        for h in range(2):
            t = self.tr(tmp + 4 * h, vT, (512 * h, 512 * h + 128))
        a(f"v_bfe_u32 v{vU}, v{vLANE}, 4, 1")
        a(f"v_mul_u32_u24 v{vU}, 0x8000, v{vU}")
        a(f"v_lshl_or_b32 v{vU}, v{vU}, 16, v{vU}")
        a.wait(lg=t)
        for r in range(8):
            a(f"v_xor_b32 v{tmp + r}, v{vU}, v{tmp + r}")
            a(f"v_accvgpr_write_b32 a{aPHI + r}, v{tmp + r}")

    def p1_start_l1(self):
        a = self.a
        xt = {}
        later = self.stats_items(WS_ST, WK + 80, xt, vA0, 60) + self.w1q_items()
        self.rows_poll_addr()
        self.poll(vU, 5)
        self.stamp("S5")
        xi = self.x_items(WS_A, xt, 60)
        a.bg = xi[:20] + later[:4] + xi[20:] + later[4:]
        a.pop(self.opt["lead"])
        a.on = True
        self.gemm_kv(range(32), xt, WK + 16, WK + 32, WK + 48,
                     extra=(22, a.capture(lambda: self.sum_stats(WK + 80, packed=False))))
        self.stamp("kvgemm")
        return WK + 16, WK + 32

    def rows_poll_addr(self):
        a = self.a
        a(f"s_lshl_b32 s{sA}, s{sCL}, 8")
        a(f"s_lshl_b32 s{sB}, s{sTH}, 6")
        a(f"s_add_u32 s{sA}, s{sA}, s{sB}")
        a(f"s_lshl_b32 s{sB}, s{sKH}, 5")
        a(f"s_add_u32 s{sA}, s{sA}, s{sB}")
        if self.slow:
            a(f"s_add_u32 s{sA}, s{sA}, {WS_ALT}")
        a(f"v_and_b32 v{vT}, 7, v{vLANE}")
        a(f"v_bfe_u32 v{vU}, v{vLANE}, 3, 1")
        a(f"v_lshlrev_b32 v{vU}, 7, v{vU}")
        a(f"v_lshl_add_u32 v{vU}, v{vT}, 2, v{vU}")
        a(f"v_add_u32 v{vU}, s{sA}, v{vU}")

    def x_items(self, base, tags, gap):
        a = self.a
        a(f"s_lshl_b32 s{sH0}, s{sTT}, 15")
        a(f"s_add_u32 s{sH0}, s{sH0}, {base}")

        def item(kb):
            def f():
                if kb and kb % 4 == 0:
                    a(f"s_add_u32 s{sH0}, s{sH0}, 4096")
                tags[kb] = self.load(V(X0 + 4 * kb, 4), S_WS, vL16, f"s{sH0}", (kb % 4) * 1024)
            return gap, f
        return [item(kb) for kb in range(32)]

    def kv_read(self, kb, ring):
        r = ring + (kb % 3) * 8
        self.tr(r, vTR0, (kb * 2048, kb * 2048 + 512))
        return self.tr(r + 4, vTR1, (kb * 2048, kb * 2048 + 512))

    def gemm_kv_head(self, kb, ring):
        return {kb: self.kv_read(kb, ring), kb + 1: self.kv_read(kb + 1, ring)}

    def gemm_kv(self, kbs, xt, accK, accV, ring, extra=None, pre=None, hook=None):
        a = self.a
        tg = pre or self.gemm_kv_head(kbs[0], ring)
        more = []
        for kb in kbs:
            if kb + 2 <= kbs[-1]:
                tg[kb + 2] = self.kv_read(kb + 2, ring)
            a.wait(vm=xt[kb] if xt is not None else None, lg=tg[kb])
            r = ring + (kb % 3) * 8
            x = V(X0 + 4 * kb, 4)
            for acc, w in ((accK, r), (accV, r + 4)):
                self.mfma(V(acc, 16), V(w, 4), x, "0" if kb == 0 else None)
                if hook and kb == hook[0] and acc == accV:
                    more = hook[1]()
                for _ in range(2):
                    if extra and kb >= extra[0] and extra[1]:
                        Asm.__call__(a, extra[1].pop(0))
                    if more and kb > hook[0]:
                        a.ds(more.pop(0))
        assert not (extra and extra[1]) and not more

    def e1_kv(self, layer, accK, accV):
        a = self.a
        a.on = True
        cs, Kb, Vb, PB, VB, tmp = WK + 48, WK + 80, WK + 88, WK + 96, WK, WK + 48
        tk = self.read_cs(0, cs)
        tv = self.read_cs(1, cs + 16)
        a.wait(lg=tk)
        self.normalize(accK, cs, Kb)
        PA = accK
        self.mfma(V(PA, 16), A(aPHI, 4), V(Kb, 4), "0")
        self.mfma(V(PB, 16), A(aPHI + 4, 4), V(Kb + 4, 4), "0")
        a.wait(lg=tv)
        self.normalize(accV, cs + 16, Vb)
        VA = accV
        self.mfma(V(VA, 16), V(Vb, 4), A(aI, 4), "0")
        self.mfma(V(VB, 16), V(Vb + 4, 4), A(aI + 4, 4), "0")
        phA, phB = tmp + 8, tmp + 16
        self.softmax_pair(PA, tmp, phA)
        VAb, VBb = Kb, Vb
        self.cvt16(VA, VAb)
        TA = VA
        self.mfma(V(TA, 16), V(phA, 4), A(aI, 4), "0")
        self.mfma(V(TA, 16), V(phA + 4, 4), A(aI + 4, 4))
        self.cvt16(VB, VBb)
        self.softmax_pair(PB, tmp, phB)
        TB = VB
        self.mfma(V(TB, 16), V(phB, 4), A(aI, 4), "0")
        self.mfma(V(TB, 16), V(phB + 4, 4), A(aI + 4, 4))
        KV = PA

        def zsum(T):
            for w in (8, 4, 2):
                for i in range(0, w, 2):
                    a(f"v_pk_add_f32 {V(T + i, 2)}, {V(T + i, 2)}, {V(T + w + i, 2)}")
            a(f"v_add_f32 v{T}, v{T}, v{T + 1}")
        self.cvt16(TA, phA)
        self.mfma(V(KV, 16), V(phA, 4), V(VAb, 4), "0")
        self.mfma(V(KV, 16), V(phA + 4, 4), V(VAb + 4, 4))
        zsum(TA)
        self.cvt16(TB, phB)
        self.mfma(V(KV, 16), V(phB, 4), V(VBb, 4))
        self.mfma(V(KV, 16), V(phB + 4, 4), V(VBb + 4, 4))
        zsum(TB)
        a.flush()
        a.on = False
        a(f"v_permlane32_swap_b32 v{TA}, v{TB}")
        a(f"v_add_f32 v{TA}, v{TA}, v{TB}")
        a(f"s_lshl_b32 s{sA}, s{sW}, 8")
        a(f"s_add_u32 s{sA}, s{sA}, {ZS + 12288}")
        a(f"v_lshl_add_u32 v{vU}, v{vLANE}, 2, s{sA}")
        a.ds(f"ds_write_b32 v{vU}, v{TA}")
        own = tmp
        self.scatter(KV, 4, own, ZS, 1024)
        a(f"s_mul_i32 s{sA}, s{sW}, 3072")
        a(f"s_add_u32 s{sA}, s{sA}, {ZS}")
        a(f"v_add_u32 v{vU}, s{sA}, v{vL16}")
        a(f"v_lshlrev_b32 v{vT}, 2, v{vLANE}")
        a(f"v_add_u32 v{vA0}, {ZS + 12288}, v{vT}")
        kvp = (WS_KVP_ALT if self.slow else WS_KVP) + layer * 256 * KVP_SZ
        a(f"s_lshl_b32 s{sA}, s{sC}, 4")
        a(f"s_add_u32 s{sA}, s{sA}, s{sCL}")
        a(f"s_mul_i32 s{sA}, s{sA}, {KVP_SZ}")
        a(f"s_add_u32 s{sA}, s{sA}, {kvp}")
        a(f"s_lshl_b32 s{sB}, s{sW}, 9")
        a(f"s_add_u32 s{sB}, s{sB}, s{sA}")
        a(f"s_lshl_b32 s{sD}, s{sC}, 8")
        a(f"s_lshl_b32 s{sE}, s{sW}, 6")
        a(f"s_add_u32 s{sD}, s{sD}, s{sE}")
        a(f"s_add_u32 s{sR1}, s{sD}, {WS_S1F + layer * 4096 + (WS_ALT if self.slow else 0)}")
        a(f"s_lshl_b32 s{sE}, s{sCL}, 2")
        a(f"s_add_u32 s{sD}, s{sR1}, s{sE}")
        a.drain(vm=False)
        a("s_barrier")
        for j in range(3):
            t = a.ds(f"ds_read_b128 {V(own + 4 + 4 * j, 4)}, v{vU} offset:{1024 * j}")
        for j in range(4):
            tz = a.ds(f"ds_read_b32 v{own + 16 + j}, v{vA0} offset:{256 * j}")
        a(f"v_lshlrev_b32 v{vU}, 3, v{vLANE}")
        a.wait(lg=t)
        for i in (0, 2):
            a(f"v_pk_add_f32 {V(own + i, 2)}, {V(own + i, 2)}, {V(own + 4 + i, 2)}")
            a(f"v_pk_add_f32 {V(own + 8 + i, 2)}, {V(own + 8 + i, 2)}, {V(own + 12 + i, 2)}")
        for i in (0, 2):
            a(f"v_pk_add_f32 {V(own + i, 2)}, {V(own + i, 2)}, {V(own + 8 + i, 2)}")
        a(f"v_cvt_pk_bf16_f32 v{own}, v{own}, v{own + 1}")
        a(f"v_cvt_pk_bf16_f32 v{own + 1}, v{own + 2}, v{own + 3}")
        self.store(V(own, 2), S_WS, vU, f"s{sB}", sc1=True, width="dwordx2")
        a.wait(lg=tz)
        skip = a.label("noz")
        a(f"s_cmp_lg_u32 s{sW}, 0")
        a(f"s_cbranch_scc1 {skip}")
        a(f"v_pk_add_f32 {V(own + 16, 2)}, {V(own + 16, 2)}, {V(own + 18, 2)}")
        a(f"v_add_f32 v{own + 16}, v{own + 16}, v{own + 17}")
        self.store(V(own + 16), S_WS, vT, f"s{sA}", 2048, sc1=True, width="dword", counted=False)
        a(f"{skip}:")
        self.stamp("e1")
        self.signal(1, sreg=sD, sc1=True)
        self.stamp("kvdrain")

    def scatter(self, src, n, own, base, piece):
        a = self.a
        lab, done = [a.label("sc") for _ in range(4)], a.label("scd")
        a(f"v_add_u32 v{vU}, {base}, v{vL16}")
        a(f"s_cmp_ge_u32 s{sW}, 2")
        a(f"s_cbranch_scc1 {lab[2]}")
        for w in range(4):
            a(f"{lab[w]}:")
            if w % 2 == 0:
                a(f"s_cmp_eq_u32 s{sW}, {w + 1}")
                a(f"s_cbranch_scc1 {lab[w + 1]}")
            for q in range(4):
                if q != w:
                    for j in range(n // 4):
                        a(f"ds_write_b128 v{vU}, {V(src + n * q + 4 * j, 4)} "
                          f"offset:{(3 * q + ((w - q - 1) & 3)) * piece + 1024 * j}")
            for i in range(0, n, 2):
                a(f"v_pk_add_f32 {V(own + i, 2)}, {V(src + n * w + i, 2)}, 0")
            if w < 3:
                a(f"s_branch {done}")
        a(f"{done}:")

    def s1_window(self, layer):
        a = self.a
        acc, ring = WK, WK + 16
        check = layer == 0 and not self.slow
        if check and not self.opt["wt0"]:
            self.out_touch_items()[0][1]()
        a.bg, w2_late = self.w2_items()
        a("s_barrier")
        if check:
            self.prep_write(WK + 16)
            a(f"v_lshlrev_b32 v{vA0}, 2, v{vLANE}")
            t_tab = self.poll_issue(vA0, S_DBG)
        a.pop(2)
        a.on = True
        if layer == 0:
            cq, tmp = WK + 96, WK + 64
            a(f"s_lshl_b32 s{sA}, s{sW}, 13")
            a(f"v_add_u32 v{vA0}, s{sA}, v{vTRQ}")
            a(f"v_mov_b32 v{cq}, 0")
            a(f"v_mov_b32 v{cq + 1}, 0")
            for j in range(8):
                t = self.tr(tmp + 4 * j, vA0, (j * 1024, j * 1024 + 256))
            a.wait(lg=t)
            for j in range(32):
                a(f"v_dot2c_f32_bf16 v{cq + (j & 1)}, s{sONES}, v{tmp + j}")
            self.colsum_write(CSPQ, (cq,))
        kvr, zr, ks = WK + 72, WK + 40, WK + 104
        a(f"v_and_b32 v{vU}, 15, v{vLANE}")
        a(f"v_lshl_add_u32 v{vBG}, v{vU}, 2, s{sR1}")
        a(f"v_lshrrev_b32 v{vT}, 4, v{vLANE}")
        a(f"v_mul_u32_u24 v{vT}, {KVP_SZ}, v{vT}")
        a(f"v_lshl_add_u32 v{vA1}, v{vU}, 4, v{vT}")
        kvp = (WS_KVP_ALT if self.slow else WS_KVP) + layer * 256 * KVP_SZ
        a(f"s_mul_i32 s{sD}, s{sC}, {16 * KVP_SZ}")
        a(f"s_add_u32 s{sD}, s{sD}, {kvp}")
        a(f"s_lshl_b32 s{sE}, s{sW}, 9")
        a(f"s_add_u32 s{sE}, s{sE}, s{sD}")
        self.ring_init()
        if layer == 0:
            self.w4_init()
        tg, tp = {}, {}
        if not check:
            a.bg.append((60, lambda: tp.setdefault(0, self.poll_issue(vBG))))

        def rd(kb):
            tg[kb] = self.tr(ring + (kb % 4) * 4, vTRQ, (kb * 1024, kb * 1024 + 256))
        for kb in range(3):
            rd(kb)
        for kb in range(32):
            if kb + 3 < 32:
                rd(kb + 3)
            a.wait(lg=tg[kb])
            self.mfma(V(acc, 16), V(ring + (kb % 4) * 4, 4), V(X0 + 4 * kb, 4), "0" if kb == 0 else None)
        a.flush()
        a.on = False
        if check:
            self.table_check(t_tab)
            tp[0] = self.poll_issue(vBG)

        a(f"v_lshrrev_b32 v{vT}, 5, v{vLANE}")
        a(f"v_mul_u32_u24 v{vT}, {KVP_SZ}, v{vT}")
        a(f"v_and_b32 v{vA0}, 31, v{vLANE}")
        a(f"v_lshl_add_u32 v{vA0}, v{vA0}, 4, v{vT}")
        a.drain(vm=False)
        a("s_barrier")
        self.stamp("qgemm")
        if layer == 0:
            self.prep_done()
            self.colsum_final(CSPQ, 1, CS1 + 256, WK + 64)
        cs, Qb, PB, tmp = WK + 16, WK + 32, WK + 56, WK + 32
        t = self.read_cs(2, cs)
        a.wait(lg=t)
        self.normalize(acc, cs, Qb)
        self.mfma(V(acc, 16), A(aPHI, 4), V(Qb, 4), "0")
        self.mfma(V(PB, 16), A(aPHI + 4, 4), V(Qb + 4, 4), "0")
        self.phq = WK + 16
        self.poll(vBG, 1, first=tp[0])
        self.stamp("S1")
        skip = a.label("zld")
        a(f"s_cmp_lg_u32 s{sW}, 0")
        a(f"s_cbranch_scc1 {skip}")
        for i in range(4):
            self.load(V(zr + 4 * i, 4), S_WS, vA1, f"s{sD}", 2048, counted=False)
            if i < 3:
                a(f"s_add_u32 s{sD}, s{sD}, {4 * KVP_SZ}")
        a(f"{skip}:")
        kt = {}

        def kv_item(p):
            def f():
                if p:
                    a(f"s_add_u32 s{sE}, s{sE}, {2 * KVP_SZ}")
                kt[p] = self.load(V(kvr + 4 * p, 4), S_WS, vA0, f"s{sE}", extra=" nt" if self.opt["nt"] & 8 else "")
            return 40, f
        wt = {}
        a.bg = [kv_item(p) for p in range(8)] + w2_late + [(0, lambda: wt.setdefault(0, a.vm))] + \
            self.ring_items(self.opt["pre_a"] if layer else 0)
        a.pop(4)
        a.on = True
        self.softmax_pair(acc, tmp, self.phq)
        self.softmax_pair(PB, tmp, self.phq + 8)
        for i in range(8):
            a(f"v_mov_b32 v{ks + i}, 0")
        a.flush()
        a.on = False
        self.stamp("qdone")
        skip = a.label("zsum")
        a(f"s_cmp_lg_u32 s{sW}, 0")
        a(f"s_cbranch_scc1 {skip}")
        a(f"v_bfe_u32 v{vT}, v{vLANE}, 2, 2")
        a(f"v_lshlrev_b32 v{vT}, 10, v{vT}")
        a(f"v_and_b32 v{vU}, 1, v{vLANE}")
        a(f"v_lshl_add_u32 v{vT}, v{vU}, 9, v{vT}")
        a(f"v_bfe_u32 v{vU}, v{vLANE}, 1, 1")
        a(f"v_lshl_add_u32 v{vT}, v{vU}, 3, v{vT}")
        a(f"v_add_u32 v{vT}, {ZAIMG + 256}, v{vT}")
        a(f"s_waitcnt vmcnt({a.vm - kt[0] + 1})")
        for i in (0, 2):
            a(f"v_pk_add_f32 {V(zr + i, 2)}, {V(zr + i, 2)}, {V(zr + 4 + i, 2)}")
            a(f"v_pk_add_f32 {V(zr + 8 + i, 2)}, {V(zr + 8 + i, 2)}, {V(zr + 12 + i, 2)}")
        for i in (0, 2):
            a(f"v_pk_add_f32 {V(zr + i, 2)}, {V(zr + i, 2)}, {V(zr + 8 + i, 2)}")
        for sw in ("v_permlane16_swap_b32", "v_permlane32_swap_b32"):
            for i in range(4):
                a(f"v_mov_b32 v{zr + 4 + i}, v{zr + i}")
            for i in range(4):
                a(f"{sw} v{zr + i}, v{zr + 4 + i}")
            for i in range(4):
                a(f"v_add_f32 v{zr + i}, v{zr + i}, v{zr + 4 + i}")
        a(f"v_cvt_pk_bf16_f32 v{zr}, v{zr}, v{zr + 1}")
        a(f"v_cvt_pk_bf16_f32 v{zr + 1}, v{zr + 2}, v{zr + 3}")
        a(f"ds_write_b64 v{vT}, {V(zr, 2)}")
        a(f"{skip}:")
        a(f"v_lshlrev_b32 v{vU}, 1, v{vLANE}")
        a(f"v_lshrrev_b32 v{vT}, 5, v{vLANE}")
        a(f"v_and_or_b32 v{vU}, v{vU}, 62, v{vT}")
        a(f"v_bfe_u32 v{vT}, v{vU}, 4, 1")
        a(f"v_lshlrev_b32 v{vT}, 11, v{vT}")
        a(f"v_and_b32 v{vU}, 47, v{vU}")
        a(f"v_lshl_add_u32 v{vT}, v{vU}, 4, v{vT}")
        a(f"s_lshl_b32 s{sA}, s{sKH}, 10")
        a(f"s_lshl_b32 s{sB}, s{sTH}, 3")
        a(f"s_add_u32 s{sA}, s{sA}, s{sB}")
        a(f"s_add_u32 s{sA}, s{sA}, {ZAIMG}")
        a(f"v_add_u32 v{vA0}, s{sA}, v{vT}")
        a(f"v_and_b32 v{vT}, 31, v{vLANE}")
        a(f"v_min_u32 v{vT}, 16, v{vT}")
        a(f"v_and_b32 v{vU}, 32, v{vLANE}")
        a(f"v_add_u32 v{vT}, v{vT}, v{vU}")
        a(f"v_lshlrev_b32 v{vT}, 4, v{vT}")
        a(f"v_add_u32 v{vA1}, {ZAIMG}, v{vT}")
        a(f"s_lshl_b32 s{sA}, s{sTT}, 15")
        a(f"s_lshl_b32 s{sB}, s{sC}, 11")
        a(f"s_add_u32 s{sA}, s{sA}, s{sB}")
        a(f"s_add_u32 s{sG}, s{sA}, {WS_OBUF[layer]}")
        for p in range(8):
            a.wait(vm=kt[p])
            for i in range(4):
                a(f"v_dot2c_f32_bf16 v{ks + 2 * i}, s{sLO}, v{kvr + 4 * p + i}")
                a(f"v_dot2c_f32_bf16 v{ks + 2 * i + 1}, s{sHI}, v{kvr + 4 * p + i}")
        for i in range(4):
            a(f"v_permlane32_swap_b32 v{ks + i}, v{ks + 4 + i}")
        for i in (0, 2):
            a(f"v_pk_add_f32 {V(ks + i, 2)}, {V(ks + i, 2)}, {V(ks + 4 + i, 2)}")
        a(f"v_cvt_pk_bf16_f32 v{ks}, v{ks}, v{ks + 1}")
        a(f"v_cvt_pk_bf16_f32 v{ks + 1}, v{ks + 2}, v{ks + 3}")
        a.ds(f"ds_write_b64 v{vA0}, {V(ks, 2)}")
        a.wait(vm=wt[0])
        a.drain(vm=False)
        a("s_barrier")
        self.stamp("kvsum")
        op, O = WK + 32, WK + 48
        for j in range(4):
            t = a.ds(f"ds_read_b128 {V(op + 4 * j, 4)}, v{vA1} offset:{1024 * j}")
        a.wait(lg=t)
        for h in range(2):
            self.mfma(V(O + 16 * h, 16), V(op + 8 * h, 4), V(self.phq + 8 * h, 4), "0")
            self.mfma(V(O + 16 * h, 16), V(op + 8 * h + 4, 4), V(self.phq + 8 * h + 4, 4))
        for h in range(2):
            o = O + 16 * h
            a(f"v_add_f32 v{o + 8}, 0x358637bd, v{o + 8}")
            a(f"v_rcp_f32 v{o + 8}, v{o + 8}")
            for i in range(0, 8, 2):
                a(f"v_pk_mul_f32 {V(o + i, 2)}, {V(o + i, 2)}, {V(o + 8, 2)} op_sel_hi:[1,0]")
            for i in range(4):
                a(f"v_cvt_pk_bf16_f32 v{o + 12 + i}, v{o + 2 * i}, v{o + 2 * i + 1}")
            self.store(V(o + 12, 4), S_WS, vL16, f"s{sG}", 1024 * h, sc1="first" if layer == 0 else None)
        self.w2_read(range(0, 5))
        self.signal(1 + 5 * layer)
        self.w2_read(range(5, 16))
        self.stamp("o")

    def res_addr(self):
        a = self.a
        a(f"s_lshl_b32 s{sE}, s{sCL}, 2")
        a(f"s_lshl_b32 s{sA}, s{sTH2}, 1")
        a(f"s_add_u32 s{sE}, s{sE}, s{sA}")
        a(f"s_add_u32 s{sE}, s{sE}, s{sTH}")
        a(f"s_lshl_b32 s{sF}, s{sE}, 12")
        a(f"s_lshl_b32 s{sA}, s{sCT}, 9")
        a(f"s_add_u32 s{sF}, s{sF}, s{sA}")
        a(f"s_lshl_b32 s{sA}, s{sKH}, 3")
        a(f"s_add_u32 s{sF}, s{sF}, s{sA}")
        a(f"s_lshl_b32 s{sE}, s{sE}, 15")
        a(f"s_lshl_b32 s{sA}, s{sCT}, 7")
        a(f"s_lshl_b32 s{sB}, s{sKH}, 6")
        a(f"s_add_u32 s{sA}, s{sA}, s{sB}")
        a(f"s_add_u32 s{sD}, s{sE}, s{sA}")
        a(f"s_lshl_b32 s{sA}, s{sA}, 5")
        a(f"s_add_u32 s{sE}, s{sE}, s{sA}")
        a(f"v_and_b32 v{vT}, 31, v{vLANE}")
        a(f"v_lshrrev_b32 v{vU}, 5, v{vLANE}")
        a(f"v_lshlrev_b32 v{vROW}, 10, v{vT}")
        a(f"v_lshl_add_u32 v{vROW}, v{vU}, 4, v{vROW}")
        a(f"v_lshlrev_b32 v{vT}, 4, v{vT}")
        a(f"v_lshl_add_u32 v{vBG}, v{vU}, 2, v{vT}")

    def res_load(self, dst, src):
        a = self.a
        if src is None:
            for j in range(2):
                t = self.load(V(dst + 4 * j, 4), S_AX, vROW, f"s{sD}", 32 * j, sc1=False)
        else:
            a(f"s_add_u32 s{sBG}, s{sE}, {src}")
            for j in range(2):
                t = self.load(V(dst + 4 * j, 4), S_WS, vL16, f"s{sBG}", 1024 * j)
        return t

    def res_finish(self, acc, res, dst, flag, sc1=None):
        a = self.a
        for i in range(8):
            a(f"v_dot2c_f32_bf16 v{acc + 2 * i}, s{sLO}, v{res + i}")
            a(f"v_dot2c_f32_bf16 v{acc + 2 * i + 1}, s{sHI}, v{res + i}")
        self.cvt16(acc, res)
        if dst is None:
            for j in range(2):
                self.store(V(res + 4 * j, 4), S_OUT, vROW, f"s{sD}", 32 * j, sc1=False)
            return
        a(f"s_add_u32 s{sA}, s{sE}, {dst}")
        for j in range(2):
            self.store(V(res + 4 * j, 4), S_WS, vL16, f"s{sA}", 1024 * j, sc1=sc1)
        a(f"v_mov_b32 v{acc}, 0")
        a(f"v_mov_b32 v{acc + 1}, 0")
        for i in range(8):
            a(f"v_dot2c_f32_bf16 v{acc}, s{sONES}, v{res + i}")
            a(f"v_dot2c_f32_bf16 v{acc + 1}, v{res + i}, v{res + i}")
        a(f"s_add_u32 s{sA}, s{sF}, {WS_ST}")
        a(f"v_permlane32_swap_b32 v{acc}, v{acc + 1}")
        a(f"v_add_f32 v{acc}, v{acc}, v{acc + 1}")
        self.store(V(acc), S_WS, vBG, f"s{sA}", width="dword", sc1=sc1)
        self.signal(flag)

    def p2(self, layer):
        a = self.a
        of, acc, res = WK, WK + 64, WK + 96
        self.res_addr()
        tr = self.res_load(res, None if layer == 0 else WS_A)
        a(f"s_lshl_b32 s{sA}, s{sTH2}, 1")
        a(f"s_add_u32 s{sA}, s{sA}, s{sTH}")
        a(f"s_lshl_b32 s{sG}, s{sCL}, 2")
        a(f"s_add_u32 s{sG}, s{sG}, s{sA}")
        a(f"s_lshl_b32 s{sA}, s{sG}, 6")
        a(f"s_lshl_b32 s{sB}, s{sKH}, 5")
        a(f"s_add_u32 s{sA}, s{sA}, s{sB}")
        if self.slow:
            a(f"s_add_u32 s{sA}, s{sA}, {WS_ALT}")
        a(f"v_and_b32 v{vU}, 7, v{vLANE}")
        a(f"v_lshl_add_u32 v{vU}, v{vU}, 2, s{sA}")
        a(f"s_lshl_b32 s{sG}, s{sG}, 15")
        a(f"s_lshl_b32 s{sB}, s{sKH}, 14")
        a(f"s_add_u32 s{sG}, s{sG}, s{sB}")
        a(f"s_add_u32 s{sH0}, s{sG}, {WS_OBUF[layer]}")
        a(f"s_xor_b32 s{sA}, s{sW}, 2")
        a(f"s_lshl_b32 s{sA}, s{sA}, 12")
        a(f"s_add_u32 s{sA}, s{sA}, {P2S}")
        a(f"v_add_u32 v{vA0}, s{sA}, v{vL16}")
        a(f"s_lshl_b32 s{sA}, s{sW}, 12")
        a(f"s_add_u32 s{sA}, s{sA}, {P2S}")
        a(f"v_add_u32 v{vA1}, s{sA}, v{vL16}")
        a.drain(vm=False)
        a("s_barrier")
        self.poll(vU, 1 + 5 * layer)
        if layer == 0:
            t_prep = self.prep_poll(WK + 104)
        self.stamp("S2")
        ot = {}

        def item(kb):
            def f():
                if kb and kb % 4 == 0:
                    a(f"s_add_u32 s{sH0}, s{sH0}, 4096")
                ot[kb] = self.load(V(of + 4 * kb, 4), S_WS, vL16, f"s{sH0}", (kb % 4) * 1024)
            return 60, f
        a.bg = [item(kb) for kb in range(16)]
        if layer == 0:
            a.bg.append((0, lambda: self.prep_wait(WK + 104, t_prep)))
        a.bg += self.ring_items(self.opt["pre_c" if layer else "pre_c0"], 60)
        a.pop(self.opt["lead"])
        a.on = True
        for kb in range(16):
            a.wait(vm=ot[kb])
            for nt in range(2):
                self.mfma(V(acc + 16 * nt, 16), V(X0 + (kb * 2 + nt) * 4, 4), V(of + 4 * kb, 4), "0" if kb == 0 else None)
        a.flush()
        a.on = False
        self.stamp("p2gemm")
        hi, done = a.label("khi"), a.label("kd")
        a(f"s_cmp_lg_u32 s{sKH}, 0")
        a(f"s_cbranch_scc1 {hi}")
        for q in range(4):
            a(f"ds_write_b128 v{vA0}, {V(acc + 16 + 4 * q, 4)} offset:{1024 * q}")
        a(f"s_branch {done}")
        a(f"{hi}:")
        for q in range(4):
            a(f"ds_write_b128 v{vA0}, {V(acc + 4 * q, 4)} offset:{1024 * q}")
        for i in range(0, 16, 2):
            a(f"v_pk_add_f32 {V(acc + i, 2)}, {V(acc + 16 + i, 2)}, 0")
        a(f"{done}:")
        a.drain(vm=False)
        a("s_barrier")
        for q in range(4):
            t = a.ds(f"ds_read_b128 {V(acc + 16 + 4 * q, 4)}, v{vA1} offset:{1024 * q}")
        a.wait(vm=tr, lg=t)
        for i in range(0, 16, 2):
            a(f"v_pk_add_f32 {V(acc + i, 2)}, {V(acc + i, 2)}, {V(acc + 16 + i, 2)}")
        self.res_finish(acc, res, WS_XMID[layer], 2 + 5 * layer, sc1="first" if layer == 0 else None)
        self.stamp("x1")

    def p3(self, layer):
        a = self.a
        BAR = self.opt["bar"]
        if layer == 0:
            skip = a.label("cs3")
            a(f"s_cmp_lg_u32 s{sW}, 0")
            a(f"s_cbranch_scc1 {skip}")
            a(f"s_mul_i32 s{sA}, s{sC}, 896")
            a(f"s_add_u32 s{sA}, s{sA}, {WS_CS3}")
            for k in range(8):
                self.load(V(WK + 4 * k, 4), S_WS, vL16, f"s{sA}", counted=False)
                a(f"s_add_u32 s{sA}, s{sA}, {112 * 128}")
            a("s_waitcnt vmcnt(0)")
            for w in (16, 8, 4):
                for i in range(0, w, 2):
                    a(f"v_pk_add_f32 {V(WK + i, 2)}, {V(WK + i, 2)}, {V(WK + w + i, 2)}")
            for i in range(4):
                a(f"v_cvt_pk_bf16_f32 v{WK + 4 + i}, v{WK + i}, v{WK + i}")
                a(f"v_and_b32 v{WK + 8 + i}, 0xffff0000, v{WK + 4 + i}")
                a(f"v_sub_f32 v{WK + i}, v{WK + i}, v{WK + 8 + i}")
                a(f"v_cvt_pk_bf16_f32 v{WK + i}, v{WK + 8 + i}, v{WK + i}")
            a(f"v_add_u32 v{vT}, {CS3}, v{vL16}")
            a("s_mov_b32 exec_hi, 0x00ffffff")
            a(f"ds_write_b128 v{vT}, {V(WK, 4)}")
            a("s_mov_b64 exec, -1")
            a("s_waitcnt lgkmcnt(0)")
            a(f"{skip}:")
        accs = [WK, WK + 16, WK + 32, WK + 48, WK + 64, WK + 80, WK]
        tmp = WK + 96
        xt = {}
        st_items = self.stats_items(WS_ST, tmp, xt, vBG, 0)
        x_items = self.x_items(WS_XMID[layer], xt, 0)
        a(f"v_add_u32 v{vA0}, {ZB}, v{vL16}")
        a(f"v_add_u32 v{vA1}, {ZB + 65536}, v{vL16}")
        a(f"s_mul_i32 s{sH1}, s{sTT}, {112 * 1024}")
        a(f"s_mul_i32 s{sA}, s{sC}, {7 * 1024}")
        a(f"s_add_u32 s{sH1}, s{sH1}, s{sA}")
        a(f"s_add_u32 s{sH1}, s{sH1}, {WS_H}")
        self.rows_poll_addr()
        seq = [(g, kb) for kb in range(32) for g in range(4)] + [(g, kb) for kb in range(32) for g in (4, 5)] + \
              [(6, kb) for kb in range(32)]
        rt = {}
        self.free_upto = -1

        def rd(f):
            s = f // 8
            if f % BAR == 0:
                last = s + BAR // 8 - 1
                while self.ring_next < 2 * last + 2:
                    self.ring_one()
                a.wait(vm=self.ring_tag[last])
                a("s_barrier")
                self.free_upto = s - 2
            off = RING_AT[s % NSLOT] - ZB + (f % 8) * 1024
            addr, off = (vA0, off) if off < 65536 else (vA1, off - 65536)
            rt[f] = a.ds(f"ds_read_b128 {A(aRING + (f % 4) * 4, 4)}, v{addr} offset:{off}")
        for f in range(4):
            rd(f)
        for _ in range(2 * self.opt["pre_d"]):
            self.ring_one()
        self.poll(vU, 2 + 5 * layer)
        self.stamp("S3")
        for _ in range(self.opt["lead3"]):
            x_items.pop(0)[1]()
        x_items = x_items[:6] + st_items + x_items[6:]

        ext, mu = tmp + 8, tmp + 4

        def epi(gs):
            l = []
            for g in gs:
                acc = accs[g]
                for i in range(8):
                    l.append(("v", f"v_mul_f32 v{acc + 8 + i}, v{vRHO}, v{acc + 8 + i}", None))
                for i in range(8):
                    l.append(("v", f"v_mul_f32 v{acc + i}, v{acc + i}, v{acc + 8 + i}", None))
                for i in range(4):
                    l.append(("v", f"v_cvt_pk_bf16_f32 v{acc + 8 + i}, v{acc + 2 * i}, v{acc + 2 * i + 1}", None))
                l.append(("st", g, None))
            return l

        def mean_operand():
            a(f"v_mul_f32 v{vRHO}, v{vRHO}, v{vRHO}")
            a(f"v_cvt_pk_bf16_f32 v{mu}, v{vNMU}, v{vNMU}")
            a(f"v_and_b32 v{vT}, 0xffff0000, v{mu}")
            a(f"v_sub_f32 v{vT}, v{vNMU}, v{vT}")
            a(f"v_cvt_pk_bf16_f32 v{mu + 1}, v{vT}, v{vT}")
            a(f"v_cmp_gt_u32 vcc, 32, v{vLANE}")
            a(f"v_mov_b32 v{mu + 2}, 0")
            a(f"v_mov_b32 v{mu + 3}, 0")
            a(f"v_cndmask_b32 v{mu}, 0, v{mu}, vcc")
            a(f"v_cndmask_b32 v{mu + 1}, 0, v{mu + 1}, vcc")
            for i in (2, 3, 6, 7):
                a(f"v_mov_b32 v{ext + i}, 0")
            self.natural_col(tmp)
            a(f"v_add_u32 v{tmp}, {CS3}, v{tmp}")
        ext_tag, h_tag = {}, {}

        def ext_read(g):
            ext_tag[g] = a.ds(f"ds_read2_b32 {V(ext + 4 * (g & 1), 2)}, v{tmp} offset0:{32 * g} offset1:{32 * g}")

        def run(item):
            k, x, key = item
            if k == "v":
                a(x)
            elif k == "st":
                if x == 4:
                    a(f"s_add_u32 s{sH1}, s{sH1}, 4096")
                h_tag[x] = self.store(V(accs[x] + 8, 4), S_WS, vL16, f"s{sH1}", (x % 4) * 1024,
                                      sc1=(x < 6 or None) if self.opt["hwt"] else "first" if layer == 0 else None)
            elif k == "call":
                x()
        tp = {}

        def sig_a():
            a(f"v_mov_b32 v{vT}, {3 + 5 * layer}")
            a(f"v_mov_b32 v{vROW}, s{sFLAG}")
            a.wait(vm=h_tag[3])
            a("s_mov_b64 exec, 1")
            self.store(V(vT), S_WS, vROW, 0, width="dword")
            a("s_mov_b64 exec, -1")
        pend = []
        for f, (g, kb) in enumerate(seq):
            if f == 131:
                assert not pend
                pend = epi((0, 1, 2, 3)) + [("v", l, None) for l in a.capture(self.p4_setup)]
            if f == 195:
                assert not pend
                pend = epi((4, 5))
                pend.insert(4, ("call", sig_a, None))
            if f in (16, 48, 96, 128, 192):
                self.stamp(f"p3f{f}")
            a.wait(vm=xt[kb] if g == 0 else None, lg=rt[f])
            self.mfma(V(accs[g], 16), A(aRING + (f % 4) * 4, 4), V(X0 + 4 * kb, 4), "0" if kb == 0 else None)
            if f + 4 < 224:
                rd(f + 4)
            if kb == 31:
                a.wait(lg=ext_tag[g])
                self.mfma(V(accs[g], 16), V(ext + 4 * (g & 1), 4), V(mu, 4))
                if g + 2 < 7:
                    ext_read(g + 2)
            if f == 120:
                assert not pend
                ext_read(0)
                ext_read(1)
            ring_ok = self.ring_next < 56 and self.ring_next // 2 - NSLOT <= self.free_upto
            if f % 2 == 0:
                if x_items and not (ring_ok and f % 4 == 2 and f >= self.opt["xfirst"]):
                    x_items.pop(0)[1]()
                elif ring_ok:
                    self.ring_one()
                elif layer == 0 and self.w4_next < 56:
                    self.w4_one()
            if f == 96:
                assert not x_items
                a.wait(vm=xt["st"])
                pend = [("v", l, None) for l in a.capture(lambda: self.sum_stats(tmp, packed=False))]
                pend += [("v", l, None) for l in a.capture(mean_operand)]
            if f == 129 and self.opt["hwt"]:
                a(f"v_and_b32 v{vU}, 7, v{vLANE}")
                a(f"v_lshlrev_b32 v{vU}, 7, v{vU}")
                a(f"s_add_u32 s{sBG}, s{sH1}, 6144")
                a.vmop(f"buffer_load_dword v{vP}, v{vU}, {S(S_WS)}, s{sBG} offen")
            if f == 216:
                tp["a"] = self.poll_issue(vU)
            for _ in range(3 if f < 128 else 2):
                if pend:
                    run(pend.pop(0))
        assert not pend, len(pend)
        while layer == 0 and self.w4_next < 56:
            self.w4_one()
        self.stamp("p3gemm")
        a("s_barrier")
        for it in epi((6,)):
            run(it)
        self.p4(layer, tp["a"], h_tag[6])

    def p4_setup(self):
        a = self.a
        self.res_addr()
        a(f"s_lshl_b32 s{sA}, s{sCL}, 8")
        a(f"s_lshl_b32 s{sB}, s{sTH2}, 7")
        a(f"s_add_u32 s{sA}, s{sA}, s{sB}")
        a(f"s_lshl_b32 s{sB}, s{sW}, 4")
        a(f"s_add_u32 s{sA}, s{sA}, s{sB}")
        if self.slow:
            a(f"s_add_u32 s{sA}, s{sA}, {WS_ALT}")
        a(f"v_and_b32 v{vT}, 3, v{vLANE}")
        a(f"v_bfe_u32 v{vU}, v{vLANE}, 2, 1")
        a(f"v_lshlrev_b32 v{vU}, 6, v{vU}")
        a(f"v_lshl_add_u32 v{vU}, v{vT}, 2, v{vU}")
        a(f"v_add_u32 v{vU}, s{sA}, v{vU}")
        a(f"s_lshl_b32 s{sA}, s{sCL}, 2")
        a(f"s_lshl_b32 s{sB}, s{sTH2}, 1")
        a(f"s_add_u32 s{sA}, s{sA}, s{sB}")
        a(f"s_mul_i32 s{sH2}, s{sA}, {112 * 1024}")
        a(f"s_mul_i32 s{sB}, s{sW}, {28 * 1024}")
        a(f"s_add_u32 s{sH2}, s{sH2}, s{sB}")
        a(f"s_add_u32 s{sH2}, s{sH2}, {WS_H}")
        a(f"s_add_u32 s{sH3}, s{sH2}, {112 * 1024}")

    def p4(self, layer, t_poll_a, t_last_h):
        a = self.a
        acc, res = X0, WK + 96
        slots = [X0 + 64 + 8 * i for i in range(8)] + [WK + 16 + 8 * i for i in range(10)]
        NH = len(slots)
        order = [7 * p + g for g in range(4) for p in range(4)] + [7 * p + g for g in (4, 5, 6) for p in range(4)]
        ht = {}

        def ld(n):
            i, th = divmod(n, 2)
            a(f"s_add_u32 s{sA}, s{sH2 + th}, {order[i] * 1024}")
            ht[n] = self.load(V(slots[i % NH] + 4 * th, 4), S_WS, vL16, f"s{sA}")
        self.poll(vU, 3 + 5 * layer, first=t_poll_a)
        for n in range(4):
            ld(n)
        self.signal(4 + 5 * layer, after=t_last_h)
        self.stamp("h")
        lead = 2 * self.opt["lead4"]
        for n in range(4, lead):
            ld(n)
        nl, tp, tr = lead, None, None
        for i in range(28):
            for th in range(2):
                a.wait(vm=ht[2 * i + th])
                for nt in range(2):
                    self.mfma(V(acc + 16 * (2 * nt + th), 16), A((order[i] * 2 + nt) * 4, 4),
                              V(slots[i % NH] + 4 * th, 4), "0" if i == 0 else None)
                    if nt == 0:
                        if nl == 24:
                            tp = self.poll_issue(vU)
                        if nl == 32:
                            self.poll(vU, 4 + 5 * layer, first=tp)
                        if nl < 56:
                            ld(nl)
                            nl += 1
                        elif tr is None:
                            tr = self.res_load(res, WS_XMID[layer])
        self.stamp("p4gemm")
        if layer == 1:
            a(f"v_and_b32 v{vT}, 31, v{vLANE}")
            a(f"v_lshrrev_b32 v{vU}, 5, v{vLANE}")
            a(f"v_lshlrev_b32 v{vROW}, 10, v{vT}")
            a(f"v_lshl_add_u32 v{vROW}, v{vU}, 4, v{vROW}")
        own = WK
        self.scatter(acc, 16, own, P4S, 4096)
        a(f"s_mul_i32 s{sA}, s{sW}, 12288")
        a(f"s_add_u32 s{sA}, s{sA}, {P4S}")
        a(f"v_add_u32 v{vA0}, s{sA}, v{vL16}")
        a.drain(vm=False)
        a("s_barrier")
        ts = []
        for j in range(12):
            ts.append(a.ds(f"ds_read_b128 {V(acc + 4 * j, 4)}, v{vA0} offset:{1024 * j}"))
        for s in range(3):
            a.wait(lg=ts[4 * s + 3])
            for i in range(0, 16, 2):
                a(f"v_pk_add_f32 {V(own + i, 2)}, {V(own + i, 2)}, {V(acc + 16 * s + i, 2)}")
        a.wait(vm=tr)
        if layer == 0:
            self.res_finish(own, res, WS_A, 5)
            a("s_barrier")
        else:
            self.res_finish(own, res, None, None)
        self.stamp("x2")

    def body(self):
        for layer in range(self.opt["layers"]):
            acc = self.p1_start_l0() if layer == 0 else self.p1_start_l1()
            self.e1_kv(layer, *acc)
            self.s1_window(layer)
            self.p2(layer)
            self.p3(layer)
            if layer == 0 and self.opt["amp2"] == 1 and not self.slow:
                self.a("s_memrealtime s[12:13]")
                self.a("s_memtime s[18:19]")
                self.a.drain(vm=False)

    def build(self):
        a = self.a
        self.slow = False
        self.prologue()
        self.stamp("start")
        if self.diag or self.opt["amp"]:
            a("s_memrealtime s[6:7]")
            a("s_memtime s[14:15]")
        self.body()
        if self.opt["amp"]:
            a("s_waitcnt vmcnt(0)")
            a("s_memtime s[16:17]")
            a("s_memrealtime s[8:9]")
            a("s_waitcnt lgkmcnt(0)")
            a(f"s_cmp_lg_u32 s2, {self.opt['amp']}")
            a("s_cbranch_scc1 L_end")
            a(("s_sub_u32 s10, s8, s6", "s_sub_u32 s10, s8, s12", "s_sub_u32 s10, s6, s12")[self.opt["amp2"]])
            a("s_mul_i32 s10, s10, 20")
            if self.opt["ampat"]:
                a("s_sub_u32 s10, s18, s14")
            elif self.opt["ampc"]:
                a("s_sub_u32 s10, s16, s18" if self.opt["amp2"] else "s_sub_u32 s10, s16, s14")
            a("L_amp:")
            a("s_sleep 8")
            a("s_memrealtime s[6:7]")
            a("s_waitcnt lgkmcnt(0)")
            a("s_sub_u32 s11, s6, s8")
            a("s_cmp_lt_u32 s11, s10")
            a("s_cbranch_scc1 L_amp")
        if self.diag:
            a("s_memrealtime s[8:9]")
            a.drain(vm=False)
            a(f"v_writelane_b32 v{vDIAG}, s6, 61")
            a(f"v_writelane_b32 v{vDIAG}, s8, 62")
            a(f"v_writelane_b32 v{vDIAG}, s{sTO}, 63")
            a(f"s_lshl_b32 s{sA}, s{sCL}, 4")
            a(f"s_add_u32 s{sA}, s{sA}, s{sC}")
            a(f"s_lshl_b32 s{sA}, s{sA}, 2")
            a(f"s_add_u32 s{sA}, s{sA}, s{sW}")
            a(f"s_lshl_b32 s{sA}, s{sA}, 8")
            a(f"s_add_u32 s{sA}, s{sA}, {WS_SIZE - 0x40000}")
            a(f"v_lshlrev_b32 v{vT}, 2, v{vLANE}")
            self.store(V(vDIAG), S_WS, vT, f"s{sA}", width="dword")
        a("L_end:")
        a("s_endpgm")
        self.slow = True
        a("L_slow:")
        a.drain()
        a("s_barrier")
        a(f"s_lshr_b32 s{sCL}, s2, 4")
        a(f"s_and_b32 s{sC}, s2, 15")
        self.body()
        a("s_endpgm")
        lines, n = fix_hazards(a.lines)
        if self.opt["align"]:
            lines = align8(lines)
        head = HEADER.format(lds=LDS_SIZE, name=NAME)
        return head + "\n".join(lines) + "\n" + TAIL.format(name=NAME), n

HEADER = """; Two interleaved (Hedgehog linear attention, bilinear GLU) blocks in one persistent launch: 256 workgroups, one per CU.
; Work split: 16 clusters of 16 workgroups, one cluster per 128 token rows.  Phases per layer:
;   P1 k,v,q = LN(x) Wqkv (2 heads per workgroup), feature maps, partial phi_k^T [v 1]  -> exchange over the 16 clusters
; LayerNorm is applied after the product: LN(x) W = rstd * (x W - mean * colsum(W)).
; Hand-offs inside a cluster: when the table in d_debug (every workgroup publishes the XCD it really runs on) shows that each
; cluster sits on one XCD, they stay in that XCD's L2 (plain stores, L1-bypassing loads); under any other placement every
; workgroup jumps to L_slow, a copy that writes all hand-offs through to memory.  Hand-offs between clusters always write through.
; @launch grid=(256,1,1) block=(256,1,1) lds={lds}
.amdgcn_target "amdgcn-amd-amdhsa--gfx950"
.text
.globl {name}_kernel
.p2align 8
.type {name}_kernel,@function
{name}_kernel:
"""
TAIL = """.section .rodata,"a"
.p2align 6
.amdhsa_kernel {name}_kernel
  .amdhsa_next_free_vgpr 512
  .amdhsa_next_free_sgpr 102
  .amdhsa_accum_offset 256
  .amdhsa_group_segment_fixed_size 0
  .amdhsa_kernarg_size 88
  .amdhsa_user_sgpr_count 2
  .amdhsa_user_sgpr_kernarg_segment_ptr 1
  .amdhsa_system_sgpr_workgroup_id_x 1
.end_amdhsa_kernel
"""

if __name__ == "__main__":
    out = sys.argv[1]
    flags = sys.argv[2:]
    opt = {f.split("=")[0]: int(f.split("=")[1]) for f in flags if "=" in f}
    g = Gen(diag="diag" in flags, force_slow="slow" in flags, opt=opt)
    text, n = g.build()
    open(out, "w").write(text)
    if g.diag:
        open(out + ".stamps", "w").write("\n".join(g.stamps))
    print(f"{out}: {len(text)} bytes, {text.count(chr(10))} lines, {n} hazard nops")
```

```python
import sys
from asmlib import Asm, fix_hazards, align8

NAME = "interleave_layers__linear_kernel_hedgehog__glu_gated_bilinear__prompt"

WS_FLAG = 0x0
WS_S1F = 0x1000
WS_PREP = 0x3000
WS_ALT = 0x4000
WS_CS3 = 0x20000
WS_ST = 0x40000
WS_KVP = 0x100000
WS_KVP_ALT = 0x240000
KVP_SZ = 2304
WS_A = 0x400000
WS_B = 0x600000
WS_OBUF = (WS_A, WS_B)
WS_XMID = (WS_B, WS_A)
WS_H = 0xA00000
WS_W3 = 0x1200000
WS_W4 = 0x1600000
WS_SIZE = 0x1800000

W1KV = 0
PERS = 65536
CS1 = PERS
CS3 = PERS + 512
ZB = PERS + 2048
ZQ = ZB
ZW2 = ZB + 30720
ZS = ZB + 32768
ZAIMG = ZB + 24576
XS = ZB
PREP_G = ZB + 65536
PREP_U = PREP_G + 8192
PREP_D = PREP_U + 8192
PHI_IMG = ZB + 90112
CSP = PHI_IMG + 1024
CSPQ = PERS + 1408
NSLOT = 11
RING_AT = [ZB + 8192 * i for i in (0, 1, 2, 4, 5, 6, 7, 8, 9, 10, 3)]
P2S = ZB + 73728
P4S = ZB
LDS_SIZE = 163840

sTM = 4
S_AX, S_WQ, S_WS, S_DBG, S_PHI, S_WO, S_WG, S_WU, S_WD, S_OUT = 28, 32, 36, 40, 44, 48, 52, 56, 60, 64
sW, sCL, sC, sTT, sCT, sTH2, sKH, sTH = 68, 69, 70, 71, 72, 73, 74, 75
sXCC = 76
sA, sB, sD, sE, sF, sG = 77, 78, 79, 80, 81, 82
sFLAG = 83
sLOG2E = 84
sONES, sLO, sHI = 86, 87, 88
sH0, sH1, sH2, sH3 = 89, 90, 92, 93
sTO = 91
sBG = 94
sQ0, sQ1, sR0, sR1, sW3, sW3N, sW4 = 95, 96, 97, 98, 99, 100, 101
sKV, sKVW, sKVF = 20, 21, 22

vLANE, vL16, vTR0, vTR1, vTRQ, vBG, vP, vT = 0, 1, 2, 3, 4, 5, 6, 7
vNMU, vRHO = 8, 9
vCS, vU, vA0, vA1, vROW, vDIAG = 10, 11, 12, 13, 14, 15
X0 = 16
WK = 144
aI, aPHI, aRING = 224, 232, 240


def V(a, n=1):
    return f"v{a}" if n == 1 else f"v[{a}:{a + n - 1}]"


def A(a, n=1):
    return f"a{a}" if n == 1 else f"a[{a}:{a + n - 1}]"


def S(a, n=4):
    return f"s[{a}:{a + n - 1}]"


class PacedAsm(Asm):
    def __init__(self):
        super().__init__()
        self.bg, self.on, self.acc, self.busy = [], False, 0, False

    def __call__(self, text):
        super().__call__(text)
        if self.on and not self.busy and text.startswith("v_"):
            mn = text.split()[0]
            self.acc += 32 if "mfma" in mn else 8 if mn[2:5] in ("exp", "rcp", "rsq", "per") else 4
            if self.bg and self.acc >= self.bg[0][0]:
                self.pop()

    def pop(self, n=1):
        for _ in range(n):
            if self.bg:
                self.busy = True
                self.bg.pop(0)[1]()
                self.busy = False
                self.acc = 0

    def flush(self):
        self.pop(len(self.bg))

    def capture(self, fn):
        n, on = len(self.lines), self.on
        self.on = False
        fn()
        self.on = on
        got = self.lines[n:]
        del self.lines[n:]
        return got


class Gen:
    def __init__(self, diag=False, force_slow=False, opt=None):
        self.a = PacedAsm()
        self.diag, self.force_slow = diag, force_slow
        self.nstamp, self.stamps = 0, []
        self.opt = dict(pre_a=3, pre_c0=6, t_first=2, gx=60, gw=60, xfirst=12, xburst=6, xmin=8, vm16=7, vm16a=8, vmend=224, edf=0, siga=204, polla=219, pollb=12, g0=5, fine=0, e1bg=1, keep=4, pg=0, late=1, gp=250, gl=300, kvsleep=4, hwt=0, w4rest=1, pre_d=0, nt=0, keep0=8, keep1=20, align=1, pre_c=5, layers=2, bar=16, lead=12, lead3=4, lead4=6, prepat=0, wt0=1, amp=0, amp2=0, ampc=0, ampat=0, stf=0)
        self.opt.update(opt or {})

    def stamp(self, name):
        if not self.slow and self.opt["ampat"]:
            self.nstamp += 1
            if self.nstamp - 1 == self.opt["ampat"]:
                self.a("s_memtime s[18:19]")
                self.a.drain(vm=False)
                print("amplified checkpoint:", name)
        if not self.diag or self.slow:
            return
        a = self.a
        on, a.on = a.on, False
        a(f"s_memtime s[{sTM}:{sTM + 1}]")
        a.drain(vm=False)
        a(f"v_writelane_b32 v{vDIAG}, s{sTM}, {self.nstamp}")
        a.on = on
        self.stamps.append(name)
        self.nstamp += 1

    def mfma(self, d, x, y, c=None):
        self.a(f"v_mfma_f32_32x32x16_bf16 {d}, {x}, {y}, {c if c is not None else d}")

    def dma(self, srd, voff, soff, imm=0, counted=True, extra=""):
        o = f" offset:{imm}" if imm else ""
        return self.a.vmop(f"buffer_load_dwordx4 v{voff}, {S(srd)}, {soff} offen{o}{extra} lds", counted)

    def load(self, dst, srd, voff, soff, imm=0, sc1=True, counted=True, extra=""):
        o = (f" offset:{imm}" if imm else "") + extra
        return self.a.vmop(f"buffer_load_dwordx4 {dst}, v{voff}, {S(srd)}, {soff} offen{o}{' sc1' if sc1 else ''}", counted)

    def store(self, src, srd, voff, soff, imm=0, sc1=None, width="dwordx4", counted=True):
        if sc1 is None:
            sc1 = self.slow
        if sc1 == "first":
            sc1 = self.slow or bool(self.opt["wt0"])
        o = f" offset:{imm}" if imm else ""
        fl = " sc1" if sc1 else ""
        if not sc1 and width == "dwordx4":
            fl = ("", " nt", " sc1", " sc0")[self.opt["stf"]]
        return self.a.vmop(f"buffer_store_{width} {src}, v{voff}, {S(srd)}, {soff} offen{o}{fl}", counted)

    def dma_items(self, n, srd, voff, src, src_step, lds, lds0, gap, tags=None, key=None):
        a = self.a

        def item(i):
            def f():
                a(f"s_add_u32 m0, s{lds}, {lds0 + i * 1024}")
                a(f"s_add_u32 s{sBG}, s{src}, {i * src_step}")
                t = self.dma(srd, voff, f"s{sBG}", extra=" nt" if self.opt["nt"] & 4 else "")
                if tags is not None:
                    tags[key] = t
            return gap, f
        return [item(i) for i in range(n)]

    def tr(self, dst, addr, off):
        self.a.ds(f"ds_read_b64_tr_b16 {V(dst, 2)}, v{addr} offset:{off[0]}")
        return self.a.ds(f"ds_read_b64_tr_b16 {V(dst + 2, 2)}, v{addr} offset:{off[1]}")

    def flag_store(self, value, sreg=sFLAG, sc1=None):
        a = self.a
        a("s_mov_b64 exec, 1")
        self.store(V(vT), S_WS, vA1, 0, sc1=sc1, width="dword")
        a("s_mov_b64 exec, -1")

    def signal(self, value, sreg=sFLAG, sc1=None, after=None):
        a = self.a
        a(f"v_mov_b32 v{vT}, {value}")
        a(f"v_mov_b32 v{vA1}, s{sreg}")
        if after is None:
            a.drain(lg=False)
        else:
            a.wait(vm=after)
        self.flag_store(value, sreg, sc1)

    def spin(self, lp, done):
        a = self.a
        a(f"s_cbranch_vccz {done}")
        a(f"s_add_u32 s{sTO}, s{sTO}, 1")
        a(f"s_bitcmp0_b32 s{sTO}, 20")
        a(f"s_cbranch_scc1 {lp}")
        a(f"{done}:")

    def poll_issue(self, addr, srd=S_WS, dst=vP):
        return self.a.vmop(f"buffer_load_dword v{dst}, v{addr}, {S(srd)}, 0 offen sc1")

    def poll(self, addr, test, first=None, srd=S_WS, dst=vP, sleep=0):
        a = self.a
        on, a.on = a.on, False
        if not callable(test):
            value = test
            test = lambda: a(f"v_cmp_gt_u32 vcc, {value}, v{vP}")
        lp, done = a.label("poll"), a.label("go")
        if first is not None:
            a.wait(vm=first)
            test()
            a(f"s_cbranch_vccz {done}")
        a(f"{lp}:")
        if sleep:
            a(f"s_sleep {sleep}")
        a.vmop(f"buffer_load_dword v{dst}, v{addr}, {S(srd)}, 0 offen sc1", counted=first is None)
        if first is None:
            a.drain(lg=False)
        else:
            a("s_waitcnt vmcnt(0)")
        test()
        self.spin(lp, done)
        a.on = on

    def half_reduce2(self, x, y, op):
        a = self.a
        a(f"v_permlane32_swap_b32 v{x}, v{y}")
        a(f"{op} v{x}, v{x}, v{y}")
        a(f"v_mov_b32 v{y}, v{x}")
        a(f"v_permlane32_swap_b32 v{x}, v{y}")

    def finish_stats(self, s, q):
        a = self.a
        self.half_reduce2(s, q, "v_add_f32")
        a(f"v_mul_f32 v{vNMU}, {-1.0 / 512}, v{s}")
        a(f"v_mul_f32 v{q}, {1.0 / 512}, v{q}")
        a(f"v_fma_f32 v{q}, -v{vNMU}, v{vNMU}, v{q}")
        a(f"v_max_f32 v{q}, 0, v{q}")
        a(f"v_add_f32 v{q}, 0x3727c5ac, v{q}")
        a(f"v_rsq_f32 v{vRHO}, v{q}")

    def stats_items(self, base, dst, tags, voff, gap):
        a = self.a
        a(f"s_lshl_b32 s{sR0}, s{sTT}, 12")
        a(f"s_add_u32 s{sR0}, s{sR0}, {base}")
        a(f"v_and_b32 v{vT}, 31, v{vLANE}")
        a(f"v_lshlrev_b32 v{vT}, 4, v{vT}")
        a(f"v_lshrrev_b32 v{voff}, 5, v{vLANE}")
        a(f"v_lshl_add_u32 v{voff}, v{voff}, 11, v{vT}")

        def item(i):
            def f():
                tags["st"] = self.load(V(dst + 4 * i, 4), S_WS, voff, f"s{sR0}", 512 * i)
            return gap, f
        return [item(i) for i in range(4)]

    def sum_stats(self, src, packed=True):
        a = self.a
        for w in (8, 4, 2):
            for i in range(0, w, 2):
                if packed:
                    a(f"v_pk_add_f32 {V(src + i, 2)}, {V(src + i, 2)}, {V(src + w + i, 2)}")
                else:
                    a(f"v_add_f32 v{src + i}, v{src + i}, v{src + w + i}")
                    a(f"v_add_f32 v{src + i + 1}, v{src + i + 1}, v{src + w + i + 1}")
        self.finish_stats(src, src + 1)

    def normalize(self, acc, cs):
        a = self.a
        for i in range(0, 16, 2):
            a(f"v_pk_fma_f32 {V(acc + i, 2)}, {V(cs + i, 2)}, {V(vNMU, 2)}, {V(acc + i, 2)} op_sel_hi:[1,0,1]")
        for i in range(0, 16, 2):
            a(f"v_pk_mul_f32 {V(acc + i, 2)}, {V(acc + i, 2)}, {V(vNMU, 2)} op_sel:[0,1] op_sel_hi:[1,1]")

    def cvt16(self, src, dst):
        for i in range(8):
            self.a(f"v_cvt_pk_bf16_f32 v{dst + i}, v{src + 2 * i}, v{src + 2 * i + 1}")

    def read_cs(self, tile, dst):
        for j, o in enumerate((0, 16, 64, 80)):
            t = self.a.ds(f"ds_read_b128 {V(dst + 4 * j, 4)}, v{vCS} offset:{tile * 128 + o}")
        return t

    def softmax4(self, pa, pb, tmp, da, db):
        a = self.a
        G = [(pa, tmp), (pa + 8, tmp + 2), (pb, tmp + 4), (pb + 8, tmp + 6)]

        def reduce(op):
            for step in range(4):
                for x, y in ((tmp, tmp + 2), (tmp + 4, tmp + 6)):
                    a((f"v_permlane32_swap_b32 v{x}, v{y}", f"{op} v{x}, v{x}, v{y}", f"v_mov_b32 v{y}, v{x}",
                       f"v_permlane32_swap_b32 v{x}, v{y}")[step])
        for g, m in G:
            a(f"v_max3_f32 v{m}, v{g}, v{g + 1}, v{g + 2}")
            a(f"v_max3_f32 v{m + 1}, v{g + 3}, v{g + 4}, v{g + 5}")
            a(f"v_max3_f32 v{m}, v{g + 6}, v{g + 7}, v{m}")
            a(f"v_max_f32 v{m}, v{m}, v{m + 1}")
        reduce("v_max_f32")
        for g, m in G:
            a(f"v_mul_f32 v{m}, 0xbfb8aa3b, v{m}")
        for g, m in G:
            for i in range(0, 8, 2):
                a(f"v_pk_fma_f32 {V(g + i, 2)}, {V(g + i, 2)}, {S(sLOG2E, 2)}, {V(m, 2)} op_sel_hi:[1,1,0]")
        for g, m in G:
            for i in range(8):
                a(f"v_exp_f32 v{g + i}, v{g + i}")
        for g, m in G:
            a(f"v_pk_add_f32 {V(m, 2)}, {V(g, 2)}, {V(g + 2, 2)}")
            a(f"v_pk_add_f32 {V(tmp + 8, 2)}, {V(g + 4, 2)}, {V(g + 6, 2)}")
            a(f"v_pk_add_f32 {V(m, 2)}, {V(m, 2)}, {V(tmp + 8, 2)}")
            a(f"v_add_f32 v{m}, v{m}, v{m + 1}")
        reduce("v_add_f32")
        for g, m in G:
            a(f"v_rcp_f32 v{m}, v{m}")
        for g, m in G:
            for i in range(0, 8, 2):
                a(f"v_pk_mul_f32 {V(g + i, 2)}, {V(g + i, 2)}, {V(m, 2)} op_sel_hi:[1,0]")
        self.cvt16(pa, da)
        self.cvt16(pb, db)

    def natural_col(self, dst):
        a = self.a
        a(f"v_and_b32 v{vT}, 19, v{vLANE}")
        a(f"v_bfe_u32 v{dst}, v{vLANE}, 2, 1")
        a(f"v_lshl_add_u32 v{vT}, v{dst}, 3, v{vT}")
        a(f"v_bfe_u32 v{dst}, v{vLANE}, 3, 1")
        a(f"v_lshl_add_u32 v{vT}, v{dst}, 2, v{vT}")
        a(f"v_lshlrev_b32 v{dst}, 2, v{vT}")

    def fold_halves(self, acc):
        a = self.a
        a(f"v_add_f32 v{acc}, v{acc}, v{acc + 1}")
        a(f"v_mov_b32 v{acc + 1}, v{acc}")
        a(f"v_permlane32_swap_b32 v{acc}, v{acc + 1}")
        a(f"v_add_f32 v{acc}, v{acc}, v{acc + 1}")

    def colsum_write(self, base, accs, store=True):
        a = self.a
        self.natural_col(vU)
        a(f"s_mul_i32 s{sA}, s{sW}, {128 * len(accs)}")
        a(f"s_add_u32 s{sA}, s{sA}, {base}")
        a(f"v_add_u32 v{vU}, s{sA}, v{vU}")
        for acc in accs:
            self.fold_halves(acc)
        if store:
            self.colsum_store(accs)

    def colsum_store(self, accs):
        for tile, acc in enumerate(accs):
            self.a.ds(f"ds_write_b32 v{vU}, v{acc} offset:{tile * 128}")

    def colsum_final(self, base, ntile, dst, tmp):
        a = self.a
        a(f"v_lshlrev_b32 v{vT}, 2, v{vLANE}")
        if ntile == 1:
            a(f"v_and_b32 v{vT}, 127, v{vT}")
        a(f"v_add_u32 v{vU}, {base}, v{vT}")
        for w in range(4):
            t = a.ds(f"ds_read_b32 v{tmp + w}, v{vU} offset:{128 * ntile * w}")
        a(f"v_add_u32 v{vU}, {dst}, v{vT}")
        a.wait(lg=t)
        a(f"v_add_f32 v{tmp}, v{tmp}, v{tmp + 1}")
        a(f"v_add_f32 v{tmp + 2}, v{tmp + 2}, v{tmp + 3}")
        a(f"v_add_f32 v{tmp}, v{tmp}, v{tmp + 2}")
        return a.ds(f"ds_write_b32 v{vU}, v{tmp}")

    def prologue(self):
        a = self.a
        if self.opt["amp2"] == 2:
            a("s_memrealtime s[12:13]")
        a("s_cmp_ge_u32 s2, 256")
        a("s_cbranch_scc1 L_end")
        a("s_getpc_b64 s[4:5]")
        for srd, off in ((S_AX, 0), (S_WQ, 8), (S_WS, 80), (S_WG, 40), (S_WU, 48), (S_WD, 56), (S_DBG, 72), (S_PHI, 16),
                         (S_WO, 24), (S_OUT, 64)):
            a(f"s_load_dwordx2 s[{srd}:{srd + 1}], s[0:1], {off}")
        a(f"v_lshrrev_b32 v{vU}, 6, v0")
        a(f"v_and_b32 v{vT}, 3, v0")
        a(f"v_lshl_add_u32 v{vT}, v{vU}, 2, v{vT}")
        a(f"s_lshr_b32 s{sG}, s2, 3")
        a(f"s_lshl_b32 s{sA}, s{sG}, 11")
        a(f"v_lshl_add_u32 v{vT}, v{vT}, 7, s{sA}")
        a.vmop(f"global_load_dword v255, v{vT}, s[4:5]")
        a(f"v_readfirstlane_b32 s{sW}, v{vU}")
        a(f"s_getreg_b32 s{sXCC}, hwreg(HW_REG_XCC_ID, 0, 4)")
        a(f"v_and_b32 v{vLANE}, 63, v0")
        a(f"v_lshlrev_b32 v{vL16}, 4, v{vLANE}")
        for srd, size in ((S_AX, 2 << 20), (S_WQ, 512 * 1536 * 2), (S_WS, WS_SIZE), (S_WG, 512 * 1792 * 2),
                          (S_WU, 512 * 1792 * 2), (S_WD, 1792 * 512 * 2), (S_DBG, 256), (S_PHI, 16384),
                          (S_WO, 512 * 512 * 2), (S_OUT, 2 << 20)):
            a(f"s_mov_b32 s{srd + 2}, {size}")
            a(f"s_mov_b32 s{srd + 3}, 0x20000")
        if self.diag:
            a(f"v_mov_b32 v{vDIAG}, 0")
        a(f"s_mov_b32 s{sTO}, 0")
        a(f"s_and_b32 s{sD}, s{sXCC}, 7")
        a(f"s_lshl_b32 s{sCL}, s{sD}, 1")
        a(f"s_lshr_b32 s{sA}, s2, 7")
        a(f"s_add_u32 s{sCL}, s{sCL}, s{sA}")
        a(f"s_bfe_u32 s{sC}, s2, 0x40003")
        a(f"s_lshl_b32 s{sE}, s{sG}, 2")
        a(f"s_add_u32 s{sE}, s{sE}, s{sW}")
        a(f"s_lshl_b32 s{sA}, s{sD}, 18")
        a(f"s_lshl_b32 s{sB}, s{sE}, 11")
        a(f"s_add_u32 s{sH2}, s{sA}, s{sB}")
        a(f"s_mul_i32 s{sH3}, s{sE}, 3072")
        a(f"v_and_b32 v{vT}, 1, v{vLANE}")
        a(f"v_bfe_u32 v{vU}, v{vLANE}, 1, 1")
        a(f"v_lshlrev_b32 v{vT}, 7, v{vT}")
        a(f"v_lshl_add_u32 v250, v{vU}, 10, v{vT}")
        a(f"v_and_b32 v{vT}, 15, v{vLANE}")
        a(f"v_lshlrev_b32 v251, 7, v{vT}")
        a("s_waitcnt lgkmcnt(0)")
        for r in range(self.opt["t_first"]):
            for _, f in self.touch_items(r):
                f()

    def clear_flags(self):
        a = self.a
        skip = a.label("clr")
        a(f"s_cmp_lg_u32 s{sW}, 3")
        a(f"s_cbranch_scc1 {skip}")
        a(f"s_lshl_b32 s{sA}, s{sCL}, 8")
        a(f"s_lshl_b32 s{sB}, s{sC}, 2")
        a(f"s_add_u32 s{sA}, s{sA}, s{sB}")
        a(f"s_lshl_b32 s{sB}, s{sC}, 8")
        a(f"s_lshl_b32 s{sD}, s{sCL}, 2")
        a(f"s_add_u32 s{sB}, s{sB}, s{sD}")
        a(f"s_lshr_b32 s{sD}, s2, 4")
        a(f"s_and_b32 s{sF}, s2, 15")
        a(f"s_lshl_b32 s{sG}, s{sD}, 8")
        a(f"s_lshl_b32 s{sBG}, s{sF}, 2")
        a(f"s_add_u32 s{sG}, s{sG}, s{sBG}")
        a(f"s_lshl_b32 s{sF}, s{sF}, 8")
        a(f"s_lshl_b32 s{sD}, s{sD}, 2")
        a(f"s_add_u32 s{sF}, s{sF}, s{sD}")
        a(f"s_lshl_b32 s{sD}, s2, 2")
        a(f"v_mov_b32 v{vU}, s{sB}")
        a(f"v_writelane_b32 v{vU}, s{sA}, 0")
        a(f"v_writelane_b32 v{vU}, s{sD}, 3")
        a(f"v_writelane_b32 v{vU}, s{sG}, 4")
        a(f"v_writelane_b32 v{vU}, s{sF}, 5")
        a(f"v_writelane_b32 v{vU}, s{sF}, 6")
        a(f"v_lshl_add_u32 v{vU}, v{vLANE}, 12, v{vU}")
        a(f"v_mov_b32 v{vT}, 0")
        a("s_mov_b64 exec, 0x7f")
        for w in range(4):
            self.store(V(vT), S_WS, vU, 0, 64 * w, sc1=True, width="dword", counted=False)
            if w == 0:
                a("s_mov_b64 exec, 0x77")
        a("s_mov_b64 exec, -1")
        a(f"{skip}:")

    def touch_items(self, r):
        a = self.a

        def w():
            a(f"s_add_u32 s{sBG}, s{sH3}, {128 * r * 3072 + 1024}")
            a.vmop(f"buffer_load_dword v253, v251, {S(S_WQ)}, s{sBG} offen")
        return [(40, w), (40, lambda: a.vmop(f"buffer_load_dword v254, v250, {S(S_AX)}, s{sH2} offen offset:{256 * r}"))]

    def late_touch_items(self, va, vb, dst):
        a = self.a
        a(f"s_lshr_b32 s{sQ1}, s2, 3")
        a(f"s_lshl_b32 s{sQ1}, s{sQ1}, 2")
        a(f"s_add_u32 s{sQ1}, s{sQ1}, s{sW}")
        a(f"s_mul_i32 s{sQ0}, s{sQ1}, {4 * 3072}")
        a(f"s_lshl_b32 s{sQ1}, s{sQ1}, 12")
        a(f"v_and_b32 v{vT}, 7, v{vLANE}")
        a(f"v_lshlrev_b32 v{vT}, 7, v{vT}")
        a(f"v_bfe_u32 v{va}, v{vLANE}, 3, 2")
        a(f"v_lshl_add_u32 v{vb}, v{va}, 10, v{vT}")
        a(f"v_mul_u32_u24 v{va}, 3072, v{va}")
        a(f"v_add_u32 v{va}, v{va}, v{vT}")
        g = self.opt["gl"]
        return [(g, lambda: a.vmop(f"buffer_load_dword v{dst}, v{va}, {S(S_WQ)}, s{sQ0} offen")),
                (g, lambda: a.vmop(f"buffer_load_dword v{dst}, v{vb}, {S(S_WO)}, s{sQ1} offen"))]

    def slot_scalars(self):
        a = self.a
        a(f"s_lshl_b32 s{sTT}, s{sCL}, 2")
        a(f"s_add_u32 s{sTT}, s{sTT}, s{sW}")
        a(f"s_and_b32 s{sCT}, s{sC}, 7")
        a(f"s_lshr_b32 s{sTH2}, s{sC}, 3")
        a(f"s_lshr_b32 s{sKH}, s{sW}, 1")
        a(f"s_and_b32 s{sTH}, s{sW}, 1")

    def lane_consts(self):
        a = self.a
        a(f"v_bfe_u32 v{vT}, v{vLANE}, 2, 2")
        a(f"v_lshrrev_b32 v{vU}, 5, v{vLANE}")
        a(f"v_lshl_add_u32 v{vA0}, v{vU}, 3, v{vT}")
        a(f"v_and_b32 v{vA1}, 1, v{vLANE}")
        a(f"v_lshlrev_b32 v{vA1}, 4, v{vA1}")
        a(f"v_bfe_u32 v{vP}, v{vLANE}, 1, 1")
        a(f"v_lshl_add_u32 v{vA1}, v{vP}, 3, v{vA1}")
        a(f"v_bfe_u32 v{vP}, v{vLANE}, 4, 1")
        a(f"v_lshl_add_u32 v{vA1}, v{vP}, 5, v{vA1}")
        a(f"v_lshl_add_u32 v{vTRQ}, v{vA0}, 6, v{vA1}")
        a(f"v_add_u32 v{vTRQ}, {ZQ}, v{vTRQ}")
        a(f"v_lshl_add_u32 v{vTR0}, v{vA0}, 7, v{vA1}")
        a(f"v_lshrrev_b32 v{vT}, 1, v{vT}")
        a(f"v_lshl_add_u32 v{vTR0}, v{vT}, 6, v{vTR0}")
        a(f"v_xor_b32 v{vTR1}, 64, v{vTR0}")
        a(f"v_lshlrev_b32 v{vCS}, 5, v{vU}")
        a(f"v_add_u32 v{vCS}, {PERS}, v{vCS}")
        a(f"s_lshl_b32 s{sA}, s{sTT}, 6")
        a(f"s_lshl_b32 s{sB}, s{sC}, 2")
        a(f"s_add_u32 s{sFLAG}, s{sA}, s{sB}")
        if self.slow:
            a(f"s_add_u32 s{sFLAG}, s{sFLAG}, {WS_ALT}")
        a(f"s_mov_b32 s{sLOG2E}, 0x3fb8aa3b")
        a(f"s_mov_b32 s{sLOG2E + 1}, 0x3fb8aa3b")
        a(f"s_mov_b32 s{sONES}, 0x3f803f80")
        a(f"s_mov_b32 s{sLO}, 0x3f80")
        a(f"s_mov_b32 s{sHI}, 0x3f800000")
        a(f"v_bfe_u32 v{vT}, v{vLANE}, 2, 1")
        a(f"v_cmp_eq_u32 vcc, v{vT}, v{vU}")
        a(f"v_and_b32 v{vT}, 1, v{vLANE}")
        a(f"v_lshlrev_b32 v{vT}, 4, v{vT}")
        a(f"v_mov_b32 v{vA0}, 0x3f80")
        a(f"v_lshlrev_b32 v{vA0}, v{vT}, v{vA0}")
        a(f"v_cndmask_b32 v{vA0}, 0, v{vA0}, vcc")
        a(f"v_bfe_u32 v{vT}, v{vLANE}, 1, 1")
        a(f"v_bfe_u32 v{vA1}, v{vLANE}, 3, 2")
        a(f"v_lshl_add_u32 v{vT}, v{vA1}, 1, v{vT}")
        for r in range(8):
            a(f"v_cmp_eq_u32 vcc, {r}, v{vT}")
            a(f"v_cndmask_b32 v{vA1}, 0, v{vA0}, vcc")
            a(f"v_accvgpr_write_b32 a{aI + r}, v{vA1}")

    def w1q_items(self):
        a = self.a
        a(f"v_lshrrev_b32 v{vT}, 2, v{vLANE}")
        a(f"v_mul_u32_u24 v{vT}, 3072, v{vT}")
        a(f"v_and_b32 v{vBG}, 3, v{vLANE}")
        a(f"v_lshl_add_u32 v{vBG}, v{vBG}, 4, v{vT}")
        a(f"s_mul_i32 s{sQ0}, s{sW}, {128 * 3072}")
        a(f"s_lshl_b32 s{sB}, s{sC}, 6")
        a(f"s_add_u32 s{sQ0}, s{sQ0}, s{sB}")
        a(f"s_lshl_b32 s{sQ1}, s{sW}, 13")
        return self.dma_items(8, S_WQ, vBG, sQ0, 16 * 3072, sQ1, ZQ, 140)

    def swz_voff(self, dst, stride, lo, hi):
        a = self.a
        a(f"v_lshrrev_b32 v{vT}, 3, v{vLANE}")
        a(f"v_mul_u32_u24 v{vT}, {stride}, v{vT}")
        a(f"v_and_b32 v{dst}, 3, v{vLANE}")
        a(f"v_lshl_add_u32 v{vT}, v{dst}, 4, v{vT}")
        a(f"v_lshrrev_b32 v{dst}, 2, v{vLANE}")
        a(f"v_lshrrev_b32 v{vU}, 4, v{vLANE}")
        a(f"v_xor_b32 v{dst}, v{dst}, v{vU}")
        a(f"v_and_b32 v{dst}, 1, v{dst}")
        a(f"v_mul_u32_u24 v{dst}, {hi - lo}, v{dst}")
        if lo:
            a(f"v_add_u32 v{vT}, {lo}, v{vT}")
        a(f"v_add_u32 v{dst}, v{dst}, v{vT}")

    def w2_items(self):
        a = self.a
        self.swz_voff(vROW, 1024, 0, 64)
        a(f"s_lshl_b32 s{sH3}, s{sW}, 14")
        a(f"s_lshl_b32 s{sA}, s{sW}, 17")
        a(f"s_lshl_b32 s{sB}, s{sCT}, 7")
        a(f"s_add_u32 s{sH2}, s{sA}, s{sB}")
        a(f"s_sub_u32 s{sA}, s{sH2}, 16384")
        a(f"s_and_b32 s{sR0}, s{sA}, 0x7ffff")
        late = self.dma_items(2, S_WO, vROW, sR0, 8192, sH3, ZW2, 72)
        return self.dma_items(14, S_WO, vROW, sH2, 8192, sH3, ZW2 + 2048, 60), late

    def w2_read(self, kbs):
        a = self.a
        a(f"s_lshl_b32 s{sA}, s{sKH}, 15")
        a(f"s_add_u32 s{sA}, s{sA}, {ZW2 + 2048}")
        a(f"s_mul_i32 s{sB}, s{sKH}, {-32768 & 0xffffffff}")
        a(f"s_add_u32 s{sB}, s{sB}, {ZW2 + 32768}")
        a(f"v_add_u32 v{vT}, s{sA}, v{vTR0}")
        a(f"v_add_u32 v{vU}, s{sA}, v{vTR1}")
        for kb in kbs:
            if kb == 15:
                a(f"v_add_u32 v{vT}, s{sB}, v{vTR0}")
                a(f"v_add_u32 v{vU}, s{sB}, v{vTR1}")
            o = kb * 2048 if kb < 15 else 0
            for nt in range(2):
                t = self.tr(X0 + (kb * 2 + nt) * 4, (vT, vU)[nt], (o, o + 512))
        return t

    def ring_init(self):
        a = self.a
        self.ring_next, self.ring_tag = 0, {}
        a(f"s_lshl_b32 s{sW3N}, s{sW}, 11")
        a(f"s_mul_i32 s{sW3}, s{sC}, {224 * 1024}")
        a(f"s_add_u32 s{sW3}, s{sW3}, s{sW3N}")
        a(f"s_add_u32 s{sW3}, s{sW3}, {WS_W3}")

    def ring_one(self):
        a = self.a
        s, h = divmod(self.ring_next, 2)
        a(f"s_add_u32 m0, s{sW3N}, {RING_AT[s % NSLOT] + 1024 * h}")
        a(f"s_add_u32 s{sBG}, s{sW3}, {s * 8192 + 1024 * h}")
        self.ring_tag[s] = self.dma(S_WS, vL16, f"s{sBG}", extra=" nt" if self.opt["nt"] & 1 and not self.opt["keep0"] <= s < self.opt["keep1"] else "")
        self.ring_next += 1

    def ring_items(self, stages, gap=72):
        return [(gap, self.ring_one) for _ in range(2 * stages)]

    def w4_init(self):
        a = self.a
        self.w4_next, self.w4_tag = 0, {}
        a(f"s_mul_i32 s{sW4}, s{sCT}, {224 * 1024}")
        a(f"s_mul_i32 s{sB}, s{sW}, {56 * 1024}")
        a(f"s_add_u32 s{sW4}, s{sW4}, s{sB}")
        a(f"s_add_u32 s{sW4}, s{sW4}, {WS_W4}")

    P4_ORDER = [7 * p + g for g in range(7) for p in range(4)]

    def w4_one(self):
        step, nt = divmod(self.w4_next, 2)
        kbl = self.P4_ORDER[step]
        if nt == 0:
            self.a(f"s_add_u32 s15, s{sW4}, {kbl * 2048}")
        self.w4_tag[step] = self.load(A(4 * (2 * kbl + nt), 4), S_WS, vL16, "s15", nt * 1024, sc1=False)
        self.w4_next += 1

    def publish(self):
        a = self.a
        skip = a.label("pub")
        a(f"s_cmp_lg_u32 s{sW}, 3")
        a(f"s_cbranch_scc1 {skip}")
        a(f"s_min_u32 s{sD}, s{sXCC}, 14")
        a(f"s_add_u32 s{sD}, s{sD}, 1")
        a(f"s_and_b32 s{sA}, s2, 3")
        a(f"s_lshl_b32 s{sA}, s{sA}, 3")
        a(f"s_lshl_b32 s{sA}, s{sD}, s{sA}")
        a(f"s_and_b32 s{sB}, s2, 0xfc")
        a(f"v_mov_b32 v{vT}, s{sA}")
        a(f"v_mov_b32 v{vU}, s{sB}")
        a("s_mov_b64 exec, 1")
        a.vmop(f"buffer_atomic_or v{vT}, v{vU}, {S(S_DBG)}, 0 offen sc1", counted=False)
        a("s_mov_b64 exec, -1")
        a(f"{skip}:")

    def prep_done(self):
        a = self.a
        skip = a.label("pd")
        a(f"s_cmp_lg_u32 s{sW}, 3")
        a(f"s_cbranch_scc1 {skip}")
        a(f"s_lshl_b32 s{sA}, s2, 2")
        a(f"s_add_u32 s{sA}, s{sA}, {WS_PREP}")
        a(f"v_mov_b32 v{vT}, 1")
        a(f"v_mov_b32 v{vU}, s{sA}")
        a("s_mov_b64 exec, 1")
        self.store(V(vT), S_WS, vU, 0, sc1=True, width="dword", counted=False)
        a("s_mov_b64 exec, -1")
        a(f"{skip}:")

    def prep_wait(self, dst, first):
        a = self.a
        lp, done = a.label("pw"), a.label("pwok")

        def test():
            a(f"v_min_u32 v{dst}, v{dst}, v{dst + 1}")
            a(f"v_min3_u32 v{dst}, v{dst}, v{dst + 2}, v{dst + 3}")
            a(f"v_cmp_eq_u32 vcc, 0, v{dst}")
        a.wait(vm=first)
        test()
        a(f"s_cbranch_vccz {done}")
        a(f"{lp}:")
        self.prep_poll(dst, counted=False)
        a("s_waitcnt vmcnt(0)")
        test()
        self.spin(lp, done)

    def prep_poll(self, dst, counted=True):
        self.a(f"s_mov_b32 s{sBG}, {WS_PREP}")
        return self.load(V(dst, 4), S_WS, vL16, f"s{sBG}", counted=counted)

    def table_check(self, first, tab, addr):
        a = self.a

        def test():
            a(f"v_add_u32 v{vU}, 0x7f7f7f7f, v{tab}")
            a(f"v_and_b32 v{vU}, 0x80808080, v{vU}")
            a(f"v_cmp_ne_u32 vcc, 0x80808080, v{vU}")
        self.poll(addr, test, first=first, srd=S_DBG, dst=tab, sleep=8)
        a(f"v_mov_b32 v{vU}, 0")
        for b in range(4):
            a(f"v_bfe_u32 v{vT}, v{tab}, {8 * b}, 4")
            a(f"v_lshlrev_b32 v{vT}, v{vT}, 1")
            a(f"v_or_b32 v{vU}, v{vU}, v{vT}")
        a(f"v_or_b32_dpp v{vU}, v{vU}, v{vU} quad_perm:[1,0,3,2] row_mask:0xf bank_mask:0xf")
        a(f"v_cmp_ne_u32 vcc, 0x1fe, v{vU}")
        a("s_branch L_slow" if self.force_slow else "s_cbranch_vccnz L_slow")

    def prep_items(self):
        a = self.a
        va, vb = vA0, vA1
        a(f"v_lshrrev_b32 v{vT}, 3, v{vLANE}")
        a(f"v_and_b32 v{vU}, 7, v{vLANE}")
        a(f"v_lshlrev_b32 v{vU}, 4, v{vU}")
        a(f"v_lshl_add_u32 v{vb}, v{vT}, 10, v{vU}")
        a(f"v_mul_u32_u24 v{vT}, 3584, v{vT}")
        a(f"v_add_u32 v{va}, v{vT}, v{vU}")
        a(f"s_min_u32 s{sF}, s2, 223")
        a(f"s_and_b32 s{sA}, s{sF}, 7")
        a(f"s_lshl_b32 s{sA}, s{sA}, 2")
        a(f"s_add_u32 s{sA}, s{sA}, s{sW}")
        a(f"s_mul_i32 s{sA}, s{sA}, {16 * 3584}")
        a(f"s_lshr_b32 s{sB}, s{sF}, 3")
        a(f"s_lshl_b32 s{sB}, s{sB}, 7")
        a(f"s_add_u32 s{sW3}, s{sA}, s{sB}")
        a(f"s_lshl_b32 s{sW3N}, s{sW}, 11")
        a(f"s_lshl_b32 s{sA}, s{sF}, 2")
        a(f"s_add_u32 s{sA}, s{sA}, s{sW}")
        a(f"s_and_b32 s{sB}, s{sA}, 7")
        a(f"s_lshl_b32 s{sB}, s{sB}, 7")
        a(f"s_lshr_b32 s{sA}, s{sA}, 3")
        a(f"s_lshl_b32 s{sA}, s{sA}, 14")
        a(f"s_add_u32 s{sW4}, s{sA}, s{sB}")
        g = self.opt["gp"]
        return [self.dma_items(2, S_WG, va, sW3, 8 * 3584, sW3N, PREP_G, g),
                self.dma_items(2, S_WU, va, sW3, 8 * 3584, sW3N, PREP_U, g),
                self.dma_items(2, S_WD, vb, sW4, 8192, sW3N, PREP_D, g)]

    def prep_setup(self):
        a = self.a
        a(f"s_lshr_b32 s{sA}, s2, 3")
        a(f"s_lshl_b32 s{sA}, s{sA}, 2")
        a(f"s_add_u32 s{sA}, s{sA}, s{sW}")
        a(f"s_mul_i32 s{sB}, s{sA}, 9363")
        a(f"s_lshr_b32 s{sB}, s{sB}, 16")
        a(f"s_mul_i32 s{sD}, s{sB}, 7")
        a(f"s_sub_u32 s{sD}, s{sA}, s{sD}")
        a(f"s_mul_i32 s{sB}, s{sB}, {224 * 1024}")
        a(f"s_add_u32 s{sB}, s{sB}, {WS_W3}")
        a(f"s_and_b32 s{sF}, s2, 7")
        n = self.opt["g0"]
        a(f"s_mov_b32 s11, {n * 1024}")
        a(f"s_cmp_ge_u32 s{sD}, {n}")
        a(f"s_cselect_b32 s11, {(6 - n) * 1024}, s11")
        a(f"s_cselect_b32 s{sG}, {31 * n * 1024}, 0")
        a(f"s_cmp_ge_u32 s{sD}, 6")
        a("s_cselect_b32 s11, 1024, s11")
        a(f"s_cselect_b32 s{sG}, {186 * 1024}, s{sG}")
        a(f"s_lshl_b32 s{sD}, s{sD}, 10")
        a(f"s_add_u32 s{sB}, s{sB}, s{sD}")
        a(f"s_add_u32 s{sB}, s{sB}, s{sG}")
        a(f"s_mul_i32 s{sD}, s{sF}, s11")
        a(f"s_lshl_b32 s{sD}, s{sD}, 2")
        a(f"s_add_u32 s10, s{sB}, s{sD}")
        a(f"s_mul_i32 s{sF}, s{sF}, 112")
        a(f"s_add_u32 s{sF}, s{sF}, s{sA}")
        a(f"s_lshl_b32 s{sF}, s{sF}, 7")
        a(f"s_add_u32 s12, s{sF}, {WS_CS3}")
        a(f"s_lshl_b32 s{sA}, s2, 2")
        a(f"s_add_u32 s{sA}, s{sA}, s{sW}")
        a(f"s_and_b32 s{sD}, s{sA}, 7")
        a(f"s_mul_i32 s{sD}, s{sD}, {224 * 1024}")
        a(f"s_lshr_b32 s{sA}, s{sA}, 3")
        a(f"s_lshl_b32 s{sA}, s{sA}, 11")
        a(f"s_add_u32 s{sA}, s{sA}, s{sD}")
        a(f"s_add_u32 s13, s{sA}, {WS_W4}")

    def prep_write(self, tmp):
        a = self.a
        va, vb, vc = vA0, vA1, vU
        on, a.on = a.on, False
        skip = a.label("noprepw")
        a("s_cmp_ge_u32 s2, 224")
        a(f"s_cbranch_scc1 {skip}")
        a(f"v_and_b32 v{va}, 0xffffffbf, v{vTR0}")
        a(f"s_lshl_b32 s{sA}, s{sW}, 11")
        a(f"s_add_u32 s{sA}, s{sA}, {PREP_D}")
        a(f"v_add_u32 v{vb}, s{sA}, v{va}")
        a(f"v_and_b32 v{vT}, 32, v{va}")
        a(f"v_and_b32 v{va}, 0xffffffdf, v{va}")
        a(f"v_lshl_add_u32 v{va}, v{vT}, 8, v{va}")
        a(f"s_lshl_b32 s{sA}, s{sW}, 5")
        a(f"s_add_u32 s{sA}, s{sA}, {PREP_G}")
        a(f"v_add_u32 v{va}, s{sA}, v{va}")
        for j in range(4):
            a(f"ds_read_b64_tr_b16 {V(tmp + 4 * j, 2)}, v{va} offset:{j * 2048}")
            a(f"ds_read_b64_tr_b16 {V(tmp + 4 * j + 2, 2)}, v{va} offset:{j * 2048 + 512}")
        for j in range(2):
            a(f"ds_read_b64_tr_b16 {V(tmp + 16 + 4 * j, 2)}, v{vb} offset:{j * 64}")
            a(f"ds_read_b64_tr_b16 {V(tmp + 18 + 4 * j, 2)}, v{vb} offset:{j * 64 + 512}")
        acc = tmp + 24
        self.natural_col(vc)
        a(f"v_mov_b32 v{acc}, 0")
        a(f"v_mov_b32 v{acc + 1}, 0")
        a("s_waitcnt lgkmcnt(0)")
        a("s_barrier")
        for j in range(4):
            self.store(V(tmp + 4 * j, 4), S_WS, vL16, "s10", sc1=True, counted=False)
            if j < 3:
                a("s_add_u32 s10, s10, s11")
            for i in range(4):
                a(f"v_dot2c_f32_bf16 v{acc + (i & 1)}, s{sONES}, v{tmp + 4 * j + i}")
        for j in range(2):
            self.store(V(tmp + 16 + 4 * j, 4), S_WS, vL16, "s13", 1024 * j, sc1=True, counted=False)
        self.fold_halves(acc)
        self.store(V(acc), S_WS, vc, "s12", sc1=True, width="dword", counted=False)
        done = a.label("prepd")
        a(f"s_branch {done}")
        a(f"{skip}:")
        a("s_barrier")
        a(f"{done}:")
        a.on = on

    def p1_start_l0(self):
        a = self.a
        first = not self.slow
        self.slot_scalars()
        xa, wv = WK, WK + 10
        a(f"v_lshrrev_b32 v{vT}, 3, v{vLANE}")
        a(f"v_lshrrev_b32 v{vU}, 4, v{vLANE}")
        a(f"v_xor_b32 v{vU}, v{vU}, v{vLANE}")
        a(f"v_and_b32 v{vU}, 7, v{vU}")
        a(f"v_lshlrev_b32 v{vU}, 4, v{vU}")
        a(f"v_lshl_add_u32 v{xa}, v{vT}, 10, v{vU}")
        a(f"v_xor_b32 v{xa + 1}, 64, v{xa}")
        a(f"s_lshl_b32 s{sH0}, s{sTT}, 15")
        a(f"s_lshl_b32 s{sH1}, s{sW}, 14")
        a(f"s_add_u32 s{sH1}, s{sH1}, {XS}")
        self.swz_voff(wv, 3072, 1024, 2048)
        a(f"s_mul_i32 s{sR0}, s{sW}, {32 * 3072}")
        a(f"s_lshl_b32 s{sB}, s{sC}, 6")
        a(f"s_add_u32 s{sR0}, s{sR0}, s{sB}")
        a(f"s_lshl_b32 s{sR1}, s{sW}, 12")
        tg, done_items = {}, [0] * 4

        def range_items(r):
            def xi(s, i):
                def f():
                    a(f"s_add_u32 m0, s{sH1}, {(s % 4) * 4096 + i * 1024}")
                    a(f"s_add_u32 s{sBG}, s{sH0}, {i * 8192 + s * 128}")
                    tg["x", s] = self.dma(S_AX, xa + (i & 1), f"s{sBG}")
                    done_items[r] += 1
                return self.opt["gx"], f

            def wi(i):
                def f():
                    a(f"s_add_u32 m0, s{sR1}, {r * 16384 + i * 1024}")
                    a(f"s_add_u32 s{sBG}, s{sR0}, {(128 * r + 8 * i) * 3072}")
                    tg["w", r] = self.dma(S_WQ, wv, f"s{sBG}")
                    done_items[r] += 1
                return self.opt["gw"], f
            return [xi(2 * r, i) for i in range(4)] + [xi(2 * r + 1, i) for i in range(4)] + [wi(i) for i in range(4)]
        a(f"s_mov_b32 m0, {PHI_IMG}")
        a(f"s_lshl_b32 s{sA}, s{sC}, 10")
        self.dma(S_PHI, vL16, f"s{sA}")
        tch = self.touch_items if first else (lambda r: [])
        r0, r1 = range_items(0), range_items(1)
        if self.opt["t_first"] == 1:
            a.bg = r0[:8] + tch(1) + r0[8:] + tch(2) + r1[:8] + tch(3) + r1[8:]
        else:
            a.bg = r0 + tch(2) + r1 + tch(3)
        a.pop(6)
        if first:
            self.clear_flags()
        late = self.late_touch_items(vBG, vROW, vP) if first and self.opt["late"] else []
        a.on = True
        self.lane_consts()
        if first and self.opt["pg"]:
            sh = self.opt["pg"]
            a(f"v_lshlrev_b32 v{WK + 75}, {sh}, v{vLANE}")
            a(f"v_min_u32 v{WK + 75}, {WS_SIZE - 128}, v{WK + 75}")
            late = [(100, lambda: a.vmop(f"buffer_load_dword v{vP}, v{WK + 75}, {S(S_WS)}, 0 offen"))] + late
        prep = self.prep_items() if first else [[], [], []]
        self.phi_address(WK + 78, WK + 79)
        ra = WK + 2
        a(f"v_and_b32 v{vT}, 31, v{vLANE}")
        a(f"v_bfe_u32 v{vU}, v{vLANE}, 1, 3")
        a(f"v_lshrrev_b32 v{vP}, 5, v{vLANE}")
        a(f"v_xor_b32 v{vU}, v{vU}, v{vP}")
        a(f"v_lshlrev_b32 v{vU}, 4, v{vU}")
        a(f"v_lshl_add_u32 v{vU}, v{vT}, 7, v{vU}")
        for j in range(4):
            a(f"v_xor_b32 v{ra + j}, {32 * j}, v{vU}")
            a(f"v_add_u32 v{ra + j}, s{sH1}, v{ra + j}")
        ss, sq, ck, cv, ca = WK + 6, WK + 8, WK + 12, WK + 14, WK + 76
        for r in (ss, ss + 1, sq, sq + 1, ck, ck + 1, cv, cv + 1):
            a(f"v_mov_b32 v{r}, 0")
        a(f"v_add_u32 v{ca}, s{sR1}, v{vTR0}")
        a(f"v_add_u32 v{ca + 1}, s{sR1}, v{vTR1}")
        if first:
            self.prep_setup()
        a.pop(len(a.bg) - self.opt["keep"])
        self.stamp("issued")
        accK, accV, ring, tmp = WK + 16, WK + 32, WK + 48, WK + 80
        def xread(r):
            while done_items[r] < 8:
                a.pop()
            a.wait(vm=tg["x", 2 * r + 1])
            return [f"ds_read_b128 {V(X0 + (4 * s + j) * 4, 4)}, v{ra + j} offset:{(s % 4) * 4096}"
                    for s in (2 * r, 2 * r + 1) for j in range(4)]
        for l in xread(0):
            a.ds(l)
        for r in range(4):
            while done_items[r] < 12:
                a.pop()
            a.wait(vm=tg["w", r])
            for j in range(2):
                self.tr(tmp + 8 * j, ca, (r * 16384 + j * 2048, r * 16384 + j * 2048 + 512))
                t = self.tr(tmp + 8 * j + 4, ca + 1, (r * 16384 + j * 2048, r * 16384 + j * 2048 + 512))
            a("s_barrier")
            a.wait(lg=t - 8)
            if r < 2:
                a.bg += range_items(r + 2)
            if r == 1:
                a.bg += late + sum(prep, [])
            pre = self.gemm_kv_head(8 * r, ring)
            for x in range(X0 + 32 * r, X0 + 32 * r + 32):
                a(f"v_dot2c_f32_bf16 v{ss + (x & 1)}, s{sONES}, v{x}")
                a(f"v_dot2c_f32_bf16 v{sq + (x & 1)}, v{x}, v{x}")
            a.wait(lg=t)
            for j in range(16):
                a(f"v_dot2c_f32_bf16 v{(cv if j & 4 else ck) + (j & 1)}, s{sONES}, v{tmp + j}")
            self.stamp(f"range{r}")
            extra = None
            if r == 0:
                for h in range(2):
                    t = self.tr(tmp + 16 + 4 * h, WK + 78, (512 * h, 512 * h + 128))
                extra = (3, a.capture(lambda: self.phi_operands(tmp + 16, WK + 79)))
            if r == 3:
                if first:
                    a.on = False
                    self.publish()
                    a.on = True

                def tail():
                    a(f"v_add_f32 v{ss}, v{ss}, v{ss + 1}")
                    a(f"v_add_f32 v{sq}, v{sq}, v{sq + 1}")
                    self.finish_stats(ss, sq)
                    self.colsum_write(CSP, (ck, cv), store=False)
                    self.e1_scalars(0)
                extra = (24, a.capture(tail))
            self.gemm_kv(range(8 * r, 8 * r + 8), None, accK, accV, ring, pre=pre, extra=extra,
                         hook=(8 * r + 5, (lambda r=r: xread(r + 1))) if r < 3 else None)
        a.on = False
        while len(a.bg) > sum(map(len, prep)):
            a.pop()
        self.colsum_store((ck, cv))
        w1q = self.w1q_items()
        a.drain(vm=False)
        a("s_barrier")
        self.colsum_final(CSP, 2, CS1, tmp)
        a.bg += w1q
        self.stamp("kvgemm")
        return accK, accV

    def phi_address(self, addr, sign):
        a = self.a
        a(f"v_bfe_u32 v{vT}, v{vLANE}, 2, 2")
        a(f"v_lshrrev_b32 v{vU}, 5, v{vLANE}")
        a(f"v_lshl_add_u32 v{vT}, v{vU}, 3, v{vT}")
        a(f"v_and_b32 v{vU}, 3, v{vLANE}")
        a(f"v_lshlrev_b32 v{vU}, 3, v{vU}")
        a(f"v_lshl_add_u32 v{vT}, v{vT}, 5, v{vU}")
        a(f"v_add_u32 v{addr}, {PHI_IMG}, v{vT}")
        a(f"v_bfe_u32 v{vU}, v{vLANE}, 4, 1")
        a(f"v_mul_u32_u24 v{vU}, 0x8000, v{vU}")
        a(f"v_lshl_or_b32 v{sign}, v{vU}, 16, v{vU}")

    def phi_operands(self, src, sign):
        a = self.a
        for r in range(8):
            a(f"v_xor_b32 v{src + r}, v{sign}, v{src + r}")
            a(f"v_accvgpr_write_b32 a{aPHI + r}, v{src + r}")

    def p1_start_l1(self):
        a = self.a
        xt = {}
        later = self.stats_items(WS_ST, WK + 80, xt, vA0, 60) + self.w1q_items()
        self.rows_poll_addr()
        self.poll(vU, 5)
        self.stamp("S5")
        xi = self.x_items(WS_A, xt, 60)
        a.bg = xi[:20] + later[:4] + xi[20:] + later[4:]
        a.pop(self.opt["lead"])
        a.on = True
        self.gemm_kv(range(32), xt, WK + 16, WK + 32, WK + 48,
                     extra=(22, a.capture(lambda: (self.sum_stats(WK + 80, packed=False), self.e1_scalars(1)))))
        self.stamp("kvgemm")
        return WK + 16, WK + 32

    def rows_poll_addr(self):
        a = self.a
        a(f"s_lshl_b32 s{sA}, s{sCL}, 8")
        a(f"s_lshl_b32 s{sB}, s{sTH}, 6")
        a(f"s_add_u32 s{sA}, s{sA}, s{sB}")
        a(f"s_lshl_b32 s{sB}, s{sKH}, 5")
        a(f"s_add_u32 s{sA}, s{sA}, s{sB}")
        if self.slow:
            a(f"s_add_u32 s{sA}, s{sA}, {WS_ALT}")
        a(f"v_and_b32 v{vT}, 7, v{vLANE}")
        a(f"v_bfe_u32 v{vU}, v{vLANE}, 3, 1")
        a(f"v_lshlrev_b32 v{vU}, 7, v{vU}")
        a(f"v_lshl_add_u32 v{vU}, v{vT}, 2, v{vU}")
        a(f"v_add_u32 v{vU}, s{sA}, v{vU}")

    def x_items(self, base, tags, gap):
        a = self.a
        a(f"s_lshl_b32 s{sH0}, s{sTT}, 15")
        a(f"s_add_u32 s{sH0}, s{sH0}, {base}")

        def item(kb):
            def f():
                if kb and kb % 4 == 0:
                    a(f"s_add_u32 s{sH0}, s{sH0}, 4096")
                tags[kb] = self.load(V(X0 + 4 * kb, 4), S_WS, vL16, f"s{sH0}", (kb % 4) * 1024)
            return gap, f
        return [item(kb) for kb in range(32)]

    def kv_read(self, kb, ring):
        r = ring + (kb % 3) * 8
        self.tr(r, vTR0, (kb * 2048, kb * 2048 + 512))
        return self.tr(r + 4, vTR1, (kb * 2048, kb * 2048 + 512))

    def gemm_kv_head(self, kb, ring):
        return {kb: self.kv_read(kb, ring), kb + 1: self.kv_read(kb + 1, ring)}

    def gemm_kv(self, kbs, xt, accK, accV, ring, extra=None, pre=None, hook=None):
        a = self.a
        tg = pre or self.gemm_kv_head(kbs[0], ring)
        more = []
        for kb in kbs:
            if kb + 2 <= kbs[-1]:
                tg[kb + 2] = self.kv_read(kb + 2, ring)
            a.wait(vm=xt[kb] if xt is not None else None, lg=tg[kb])
            r = ring + (kb % 3) * 8
            x = V(X0 + 4 * kb, 4)
            for acc, w in ((accK, r), (accV, r + 4)):
                self.mfma(V(acc, 16), V(w, 4), x, "0" if kb == 0 else None)
                if hook and kb == hook[0] and acc == accV:
                    more = hook[1]()
                for _ in range(3):
                    if extra and kb >= extra[0] and extra[1]:
                        Asm.__call__(a, extra[1].pop(0))
                    if more and kb > hook[0] and _ < 2:
                        a.ds(more.pop(0))
        assert not (extra and extra[1]) and not more

    def e1_scalars(self, layer):
        a = self.a
        kvp = (WS_KVP_ALT if self.slow else WS_KVP) + layer * 256 * KVP_SZ
        a(f"s_lshl_b32 s{sA}, s{sC}, 4")
        a(f"s_add_u32 s{sA}, s{sA}, s{sCL}")
        a(f"s_mul_i32 s{sA}, s{sA}, {KVP_SZ}")
        a(f"s_add_u32 s{sKV}, s{sA}, {kvp}")
        a(f"s_lshl_b32 s{sB}, s{sW}, 9")
        a(f"s_add_u32 s{sKVW}, s{sB}, s{sKV}")
        a(f"s_lshl_b32 s{sA}, s{sC}, 8")
        a(f"s_lshl_b32 s{sB}, s{sW}, 6")
        a(f"s_add_u32 s{sA}, s{sA}, s{sB}")
        a(f"s_add_u32 s23, s{sA}, {WS_S1F + layer * 4096 + (WS_ALT if self.slow else 0)}")
        a(f"s_lshl_b32 s{sB}, s{sCL}, 2")
        a(f"s_add_u32 s{sKVF}, s23, s{sB}")
        a(f"s_lshl_b32 s24, s{sW}, 8")
        a(f"s_add_u32 s24, s24, {ZS + 12288}")
        a(f"s_mul_i32 s25, s{sW}, 3072")
        a(f"s_add_u32 s25, s25, {ZS}")

    def e1_kv(self, layer, accK, accV):
        a = self.a
        a.on = bool(self.opt["e1bg"]) or layer == 0
        cs, Kb, Vb, PB, VB, tmp = WK + 48, WK + 80, WK + 88, WK + 96, WK, WK + 48
        tk = self.read_cs(0, cs)
        tv = self.read_cs(1, cs + 16)
        a.wait(lg=tk)
        self.normalize(accK, cs)
        a.wait(lg=tv)
        self.normalize(accV, cs + 16)
        PA, VA = accK, accV
        fine = self.opt["fine"] == 1 and layer == 1
        if fine:
            self.stamp("e:norm")
        self.cvt16(accK, Kb)
        self.mfma(V(PA, 16), A(aPHI, 4), V(Kb, 4), "0")
        self.mfma(V(PB, 16), A(aPHI + 4, 4), V(Kb + 4, 4), "0")
        self.cvt16(accV, Vb)
        self.mfma(V(VA, 16), V(Vb, 4), A(aI, 4), "0")
        self.mfma(V(VB, 16), V(Vb + 4, 4), A(aI + 4, 4), "0")
        phA, phB = tmp + 12, tmp + 20
        self.softmax4(PA, PB, tmp, phA, phB)
        if fine:
            self.stamp("e:soft")
        VAb, VBb, TA, TB, KV = Kb, Vb, PA, PB, VA
        for T, ph in ((TA, phA), (TB, phB)):
            self.mfma(V(T, 16), V(ph, 4), A(aI, 4), "0")
            self.mfma(V(T, 16), V(ph + 4, 4), A(aI + 4, 4))
        self.cvt16(VA, VAb)
        self.cvt16(VB, VBb)
        self.cvt16(TA, phA)
        self.mfma(V(KV, 16), V(phA, 4), V(VAb, 4), "0")
        self.mfma(V(KV, 16), V(phA + 4, 4), V(VAb + 4, 4))
        self.cvt16(TB, phB)
        self.mfma(V(KV, 16), V(phB, 4), V(VBb, 4))
        self.mfma(V(KV, 16), V(phB + 4, 4), V(VBb + 4, 4))
        for w in (8, 4, 2, 1):
            for T in (TA, TB):
                for i in range(w):
                    a(f"v_add_f32 v{T + i}, v{T + i}, v{T + w + i}")
        if fine:
            self.stamp("e:kv")
        held = []
        if self.opt["e1bg"]:
            a.flush()
        else:
            held, a.bg = a.bg, []
        a.on = False
        if fine:
            self.stamp("e:flush")
        a(f"v_lshl_add_u32 v{vU}, v{vLANE}, 2, s24")
        a(f"v_lshlrev_b32 v{vT}, 2, v{vLANE}")
        a(f"v_permlane32_swap_b32 v{TA}, v{TB}")
        a(f"v_add_u32 v{vA0}, {ZS + 12288}, v{vT}")
        a(f"v_add_u32 v{vA1}, s25, v{vL16}")
        a(f"v_add_f32 v{TA}, v{TA}, v{TB}")
        a.ds(f"ds_write_b32 v{vU}, v{TA}")
        own = tmp
        self.scatter(KV, 4, own, ZS, 1024)
        a(f"v_lshlrev_b32 v{vU}, 3, v{vLANE}")
        a.drain(vm=False)
        a("s_barrier")
        if fine:
            self.stamp("e:bar")
        for j in range(3):
            t = a.ds(f"ds_read_b128 {V(own + 4 + 4 * j, 4)}, v{vA1} offset:{1024 * j}")
        for j in range(4):
            tz = a.ds(f"ds_read_b32 v{own + 16 + j}, v{vA0} offset:{256 * j}")
        a.wait(lg=t)
        for i in (0, 2):
            a(f"v_pk_add_f32 {V(own + i, 2)}, {V(own + i, 2)}, {V(own + 4 + i, 2)}")
            a(f"v_pk_add_f32 {V(own + 8 + i, 2)}, {V(own + 8 + i, 2)}, {V(own + 12 + i, 2)}")
        for i in (0, 2):
            a(f"v_pk_add_f32 {V(own + i, 2)}, {V(own + i, 2)}, {V(own + 8 + i, 2)}")
        a(f"v_cvt_pk_bf16_f32 v{own}, v{own}, v{own + 1}")
        a(f"v_cvt_pk_bf16_f32 v{own + 1}, v{own + 2}, v{own + 3}")
        self.store(V(own, 2), S_WS, vU, f"s{sKVW}", sc1=True, width="dwordx2")
        a.wait(lg=tz)
        skip = a.label("noz")
        a(f"s_cmp_lg_u32 s{sW}, 0")
        a(f"s_cbranch_scc1 {skip}")
        a(f"v_pk_add_f32 {V(own + 16, 2)}, {V(own + 16, 2)}, {V(own + 18, 2)}")
        a(f"v_add_f32 v{own + 16}, v{own + 16}, v{own + 17}")
        self.store(V(own + 16), S_WS, vT, f"s{sKV}", 2048, sc1=True, width="dword", counted=False)
        a(f"{skip}:")
        self.stamp("e1")
        for _, f in held:
            f()
        w2 = self.w2_items()
        self.signal(1, sreg=sKVF, sc1=True)
        self.stamp("kvdrain")
        return w2

    def scatter(self, src, n, own, base, piece):
        a = self.a
        lab, done = [a.label("sc") for _ in range(4)], a.label("scd")
        a(f"v_add_u32 v{vU}, {base}, v{vL16}")
        a(f"s_cmp_ge_u32 s{sW}, 2")
        a(f"s_cbranch_scc1 {lab[2]}")
        for w in range(4):
            a(f"{lab[w]}:")
            if w % 2 == 0:
                a(f"s_cmp_eq_u32 s{sW}, {w + 1}")
                a(f"s_cbranch_scc1 {lab[w + 1]}")
            for q in range(4):
                if q != w:
                    for j in range(n // 4):
                        a(f"ds_write_b128 v{vU}, {V(src + n * q + 4 * j, 4)} "
                          f"offset:{(3 * q + ((w - q - 1) & 3)) * piece + 1024 * j}")
            for i in range(0, n, 2):
                a(f"v_pk_add_f32 {V(own + i, 2)}, {V(src + n * w + i, 2)}, 0")
            if w < 3:
                a(f"s_branch {done}")
        a(f"{done}:")

    def s1_window(self, layer, w2):
        a = self.a
        acc, ring = WK, WK + 16
        check = layer == 0 and not self.slow
        a.bg, w2_late = w2
        a("s_barrier")
        if check:
            self.prep_write(WK + 16)
            a(f"v_lshlrev_b32 v{WK + 108}, 2, v{vLANE}")
            t_tab = self.poll_issue(WK + 108, S_DBG, WK + 109)
        a.pop(2)
        a.on = True
        if layer == 0:
            cq, tmp = WK + 96, WK + 64
            a(f"s_lshl_b32 s{sA}, s{sW}, 13")
            a(f"v_add_u32 v{vA0}, s{sA}, v{vTRQ}")
            a(f"v_mov_b32 v{cq}, 0")
            a(f"v_mov_b32 v{cq + 1}, 0")
            for j in range(8):
                t = self.tr(tmp + 4 * j, vA0, (j * 1024, j * 1024 + 256))
            a.wait(lg=t)
            for j in range(32):
                a(f"v_dot2c_f32_bf16 v{cq + (j & 1)}, s{sONES}, v{tmp + j}")
            self.colsum_write(CSPQ, (cq,))
        kvr, zr, ks = WK + 76, X0, WK + 44
        kvp = (WS_KVP_ALT if self.slow else WS_KVP) + layer * 256 * KVP_SZ

        def addresses():
            a(f"v_and_b32 v{vU}, 15, v{vLANE}")
            a(f"v_lshl_add_u32 v{vBG}, v{vU}, 2, s23")
            a(f"v_lshrrev_b32 v{vT}, 4, v{vLANE}")
            a(f"v_mul_u32_u24 v{vT}, {KVP_SZ}, v{vT}")
            a(f"v_lshl_add_u32 v{vA1}, v{vU}, 4, v{vT}")
            a(f"v_lshrrev_b32 v{vT}, 5, v{vLANE}")
            a(f"v_mul_u32_u24 v{vT}, {KVP_SZ}, v{vT}")
            a(f"v_and_b32 v{vA0}, 31, v{vLANE}")
            a(f"v_lshl_add_u32 v{vA0}, v{vA0}, 4, v{vT}")
            a(f"s_mul_i32 s{sD}, s{sC}, {16 * KVP_SZ}")
            a(f"s_add_u32 s{sD}, s{sD}, {kvp}")
            a(f"s_lshl_b32 s{sE}, s{sW}, 9")
            a(f"s_add_u32 s{sE}, s{sE}, s{sD}")
            self.ring_init()
            if layer == 0:
                self.w4_init()
            for i in range(8):
                a(f"v_mov_b32 v{ks + i}, 0")
            a(f"v_lshlrev_b32 v{vU}, 1, v{vLANE}")
            a(f"v_lshrrev_b32 v{vT}, 5, v{vLANE}")
            a(f"v_and_or_b32 v{vU}, v{vU}, 62, v{vT}")
            a(f"v_bfe_u32 v{vT}, v{vU}, 4, 1")
            a(f"v_lshlrev_b32 v{vT}, 11, v{vT}")
            a(f"v_and_b32 v{vU}, 47, v{vU}")
            a(f"v_lshl_add_u32 v{vT}, v{vU}, 4, v{vT}")
            a(f"s_lshl_b32 s{sA}, s{sKH}, 10")
            a(f"s_lshl_b32 s{sB}, s{sTH}, 3")
            a(f"s_add_u32 s{sA}, s{sA}, s{sB}")
            a(f"s_add_u32 s{sA}, s{sA}, {ZAIMG}")
            a(f"v_add_u32 v{WK + 52}, s{sA}, v{vT}")
            a(f"v_and_b32 v{vT}, 31, v{vLANE}")
            a(f"v_min_u32 v{vT}, 16, v{vT}")
            a(f"v_and_b32 v{vU}, 32, v{vLANE}")
            a(f"v_add_u32 v{vT}, v{vT}, v{vU}")
            a(f"v_lshlrev_b32 v{vT}, 4, v{vT}")
            a(f"v_add_u32 v{WK + 53}, {ZAIMG}, v{vT}")
            a(f"s_lshl_b32 s{sA}, s{sTT}, 15")
            a(f"s_lshl_b32 s{sB}, s{sC}, 11")
            a(f"s_add_u32 s{sA}, s{sA}, s{sB}")
            a(f"s_add_u32 s{sG}, s{sA}, {WS_OBUF[layer]}")
            a(f"v_bfe_u32 v{vT}, v{vLANE}, 2, 2")
            a(f"v_lshlrev_b32 v{vT}, 10, v{vT}")
            a(f"v_and_b32 v{vU}, 1, v{vLANE}")
            a(f"v_lshl_add_u32 v{vT}, v{vU}, 9, v{vT}")
            a(f"v_bfe_u32 v{vU}, v{vLANE}, 1, 1")
            a(f"v_lshl_add_u32 v{vT}, v{vU}, 3, v{vT}")
            a(f"v_add_u32 v{WK + 54}, {ZAIMG + 256}, v{vT}")
        extra = a.capture(addresses)
        tg, tp, kt, wt = {}, {}, {}, {}
        a.bg.append((60, lambda: tp.setdefault(0, self.poll_issue(vBG))))

        def rd(kb):
            tg[kb] = self.tr(ring + (kb % 4) * 4, vTRQ, (kb * 1024, kb * 1024 + 256))
        for kb in range(3):
            rd(kb)
        for kb in range(32):
            if kb + 3 < 32:
                rd(kb + 3)
            a.wait(lg=tg[kb])
            self.mfma(V(acc, 16), V(ring + (kb % 4) * 4, 4), V(X0 + 4 * kb, 4), "0" if kb == 0 else None)
            for _ in range(3):
                if extra:
                    assert 0 not in tp or len(extra) < 40
                    Asm.__call__(a, extra.pop(0))
        a.flush()
        a.on = False
        if check:
            self.table_check(t_tab, WK + 109, WK + 108)
        a.drain(vm=False)
        a("s_barrier")
        self.stamp("qgemm")
        if layer == 0:
            self.prep_done()
            self.colsum_final(CSPQ, 1, CS1 + 256, WK + 64)
        cs, Qb, PB, tmp = WK + 16, WK + 32, WK + 56, WK + 32
        t = self.read_cs(2, cs)
        a.wait(lg=t)
        self.normalize(acc, cs)
        self.cvt16(acc, Qb)
        self.mfma(V(acc, 16), A(aPHI, 4), V(Qb, 4), "0")
        self.mfma(V(PB, 16), A(aPHI + 4, 4), V(Qb + 4, 4), "0")
        self.phq = WK + 16
        self.poll(vBG, 1, first=tp[0], sleep=self.opt["kvsleep"])
        self.stamp("S1")
        skip = a.label("zld")
        a(f"s_cmp_lg_u32 s{sW}, 0")
        a(f"s_cbranch_scc1 {skip}")
        for i in range(4):
            self.load(V(zr + 4 * i, 4), S_WS, vA1, f"s{sD}", 2048, counted=False)
            if i < 3:
                a(f"s_add_u32 s{sD}, s{sD}, {4 * KVP_SZ}")
        a(f"{skip}:")

        def kv_item(p):
            def f():
                if p:
                    a(f"s_add_u32 s{sE}, s{sE}, {2 * KVP_SZ}")
                kt[p] = self.load(V(kvr + 4 * p, 4), S_WS, vA0, f"s{sE}")
            return 40, f
        a.bg = [kv_item(p) for p in range(8)] + w2_late + [(0, lambda: wt.setdefault(0, a.vm))] + \
            self.ring_items(self.opt["pre_a"] if layer else 0)
        a.pop(4)
        a.on = True
        self.softmax4(acc, PB, tmp, self.phq, self.phq + 8)
        a.flush()
        a.on = False
        self.stamp("qdone")
        skip = a.label("zsum")
        a(f"s_cmp_lg_u32 s{sW}, 0")
        a(f"s_cbranch_scc1 {skip}")
        a(f"s_waitcnt vmcnt({a.vm - kt[0] + 1})")
        for i in (0, 2):
            a(f"v_pk_add_f32 {V(zr + i, 2)}, {V(zr + i, 2)}, {V(zr + 4 + i, 2)}")
            a(f"v_pk_add_f32 {V(zr + 8 + i, 2)}, {V(zr + 8 + i, 2)}, {V(zr + 12 + i, 2)}")
        for i in (0, 2):
            a(f"v_pk_add_f32 {V(zr + i, 2)}, {V(zr + i, 2)}, {V(zr + 8 + i, 2)}")
        for sw in ("v_permlane16_swap_b32", "v_permlane32_swap_b32"):
            for i in range(4):
                a(f"v_mov_b32 v{zr + 4 + i}, v{zr + i}")
            for i in range(4):
                a(f"{sw} v{zr + i}, v{zr + 4 + i}")
            for i in range(4):
                a(f"v_add_f32 v{zr + i}, v{zr + i}, v{zr + 4 + i}")
        a(f"v_cvt_pk_bf16_f32 v{zr}, v{zr}, v{zr + 1}")
        a(f"v_cvt_pk_bf16_f32 v{zr + 1}, v{zr + 2}, v{zr + 3}")
        a(f"ds_write_b64 v{WK + 54}, {V(zr, 2)}")
        a(f"{skip}:")
        for p in range(8):
            a.wait(vm=kt[p])
            for i in range(4):
                a(f"v_dot2c_f32_bf16 v{ks + 2 * i}, s{sLO}, v{kvr + 4 * p + i}")
                a(f"v_dot2c_f32_bf16 v{ks + 2 * i + 1}, s{sHI}, v{kvr + 4 * p + i}")
        for i in range(4):
            a(f"v_permlane32_swap_b32 v{ks + i}, v{ks + 4 + i}")
        for i in (0, 2):
            a(f"v_pk_add_f32 {V(ks + i, 2)}, {V(ks + i, 2)}, {V(ks + 4 + i, 2)}")
        a(f"v_cvt_pk_bf16_f32 v{ks}, v{ks}, v{ks + 1}")
        a(f"v_cvt_pk_bf16_f32 v{ks + 1}, v{ks + 2}, v{ks + 3}")
        a.ds(f"ds_write_b64 v{WK + 52}, {V(ks, 2)}")
        a.wait(vm=wt[0])
        a.drain(vm=False)
        a("s_barrier")
        self.stamp("kvsum")
        op, O = WK + 32, WK + 56
        for j in range(4):
            t = a.ds(f"ds_read_b128 {V(op + 4 * j, 4)}, v{WK + 53} offset:{1024 * j}")
        a.wait(lg=t)
        for h in range(2):
            self.mfma(V(O + 16 * h, 16), V(op + 8 * h, 4), V(self.phq + 8 * h, 4), "0")
            self.mfma(V(O + 16 * h, 16), V(op + 8 * h + 4, 4), V(self.phq + 8 * h + 4, 4))
        for h in range(2):
            o = O + 16 * h
            a(f"v_add_f32 v{o + 8}, 0x358637bd, v{o + 8}")
            a(f"v_rcp_f32 v{o + 8}, v{o + 8}")
            for i in range(0, 8, 2):
                a(f"v_pk_mul_f32 {V(o + i, 2)}, {V(o + i, 2)}, {V(o + 8, 2)} op_sel_hi:[1,0]")
            for i in range(4):
                a(f"v_cvt_pk_bf16_f32 v{o + 12 + i}, v{o + 2 * i}, v{o + 2 * i + 1}")
            self.store(V(o + 12, 4), S_WS, vL16, f"s{sG}", 1024 * h, sc1="first" if layer == 0 else None)
        self.w2_read(range(0, 5))
        self.signal(1 + 5 * layer)
        self.w2_read(range(5, 16))
        self.stamp("o")

    def res_addr(self):
        a = self.a
        a(f"s_lshl_b32 s{sE}, s{sCL}, 2")
        a(f"s_lshl_b32 s{sA}, s{sTH2}, 1")
        a(f"s_add_u32 s{sE}, s{sE}, s{sA}")
        a(f"s_add_u32 s{sE}, s{sE}, s{sTH}")
        a(f"s_lshl_b32 s{sF}, s{sE}, 12")
        a(f"s_lshl_b32 s{sA}, s{sCT}, 9")
        a(f"s_add_u32 s{sF}, s{sF}, s{sA}")
        a(f"s_lshl_b32 s{sA}, s{sKH}, 3")
        a(f"s_add_u32 s{sF}, s{sF}, s{sA}")
        a(f"s_lshl_b32 s{sE}, s{sE}, 15")
        a(f"s_lshl_b32 s{sA}, s{sCT}, 7")
        a(f"s_lshl_b32 s{sB}, s{sKH}, 6")
        a(f"s_add_u32 s{sA}, s{sA}, s{sB}")
        a(f"s_add_u32 s{sD}, s{sE}, s{sA}")
        a(f"s_lshl_b32 s{sA}, s{sA}, 5")
        a(f"s_add_u32 s{sE}, s{sE}, s{sA}")
        a(f"v_and_b32 v{vT}, 31, v{vLANE}")
        a(f"v_lshrrev_b32 v{vU}, 5, v{vLANE}")
        a(f"v_lshlrev_b32 v{vROW}, 10, v{vT}")
        a(f"v_lshl_add_u32 v{vROW}, v{vU}, 4, v{vROW}")
        a(f"v_lshlrev_b32 v{vT}, 4, v{vT}")
        a(f"v_lshl_add_u32 v{vBG}, v{vU}, 2, v{vT}")

    def res_load(self, dst, src):
        a = self.a
        if src is None:
            for j in range(2):
                t = self.load(V(dst + 4 * j, 4), S_AX, vROW, f"s{sD}", 32 * j, sc1=False)
        else:
            a(f"s_add_u32 s{sBG}, s{sE}, {src}")
            for j in range(2):
                t = self.load(V(dst + 4 * j, 4), S_WS, vL16, f"s{sBG}", 1024 * j)
        return t

    def res_finish(self, acc, res, dst, flag, sc1=None):
        a = self.a
        for i in range(8):
            a(f"v_dot2c_f32_bf16 v{acc + 2 * i}, s{sLO}, v{res + i}")
            a(f"v_dot2c_f32_bf16 v{acc + 2 * i + 1}, s{sHI}, v{res + i}")
        self.cvt16(acc, res)
        if dst is None:
            for j in range(2):
                self.store(V(res + 4 * j, 4), S_OUT, vROW, f"s{sD}", 32 * j, sc1=False)
            return
        a(f"s_add_u32 s{sA}, s{sE}, {dst}")
        for j in range(2):
            self.store(V(res + 4 * j, 4), S_WS, vL16, f"s{sA}", 1024 * j, sc1=sc1)
        a(f"v_mov_b32 v{acc}, 0")
        a(f"v_mov_b32 v{acc + 1}, 0")
        for i in range(8):
            a(f"v_dot2c_f32_bf16 v{acc}, s{sONES}, v{res + i}")
            a(f"v_dot2c_f32_bf16 v{acc + 1}, v{res + i}, v{res + i}")
        a(f"s_add_u32 s{sA}, s{sF}, {WS_ST}")
        a(f"v_permlane32_swap_b32 v{acc}, v{acc + 1}")
        a(f"v_add_f32 v{acc}, v{acc}, v{acc + 1}")
        self.store(V(acc), S_WS, vBG, f"s{sA}", width="dword", sc1=sc1)
        self.signal(flag)

    def p2(self, layer):
        a = self.a
        of, acc, res = WK, WK + 64, WK + 96
        self.res_addr()
        tr = self.res_load(res, None if layer == 0 else WS_A)
        a(f"s_lshl_b32 s{sA}, s{sTH2}, 1")
        a(f"s_add_u32 s{sA}, s{sA}, s{sTH}")
        a(f"s_lshl_b32 s{sG}, s{sCL}, 2")
        a(f"s_add_u32 s{sG}, s{sG}, s{sA}")
        a(f"s_lshl_b32 s{sA}, s{sG}, 6")
        a(f"s_lshl_b32 s{sB}, s{sKH}, 5")
        a(f"s_add_u32 s{sA}, s{sA}, s{sB}")
        if self.slow:
            a(f"s_add_u32 s{sA}, s{sA}, {WS_ALT}")
        a(f"v_and_b32 v{vU}, 7, v{vLANE}")
        a(f"v_lshl_add_u32 v{vU}, v{vU}, 2, s{sA}")
        a(f"s_lshl_b32 s{sG}, s{sG}, 15")
        a(f"s_lshl_b32 s{sB}, s{sKH}, 14")
        a(f"s_add_u32 s{sG}, s{sG}, s{sB}")
        a(f"s_add_u32 s{sH0}, s{sG}, {WS_OBUF[layer]}")
        a(f"s_xor_b32 s{sA}, s{sW}, 2")
        a(f"s_lshl_b32 s{sA}, s{sA}, 12")
        a(f"s_add_u32 s{sA}, s{sA}, {P2S}")
        a(f"v_add_u32 v{vA0}, s{sA}, v{vL16}")
        a(f"s_lshl_b32 s{sA}, s{sW}, 12")
        a(f"s_add_u32 s{sA}, s{sA}, {P2S}")
        a(f"v_add_u32 v{vA1}, s{sA}, v{vL16}")
        a.drain(vm=False)
        a("s_barrier")
        self.poll(vU, 1 + 5 * layer)
        if layer == 0:
            t_prep = self.prep_poll(WK + 104)
        self.stamp("S2")
        ot = {}

        def item(kb):
            def f():
                if kb and kb % 4 == 0:
                    a(f"s_add_u32 s{sH0}, s{sH0}, 4096")
                ot[kb] = self.load(V(of + 4 * kb, 4), S_WS, vL16, f"s{sH0}", (kb % 4) * 1024)
            return 60, f
        a.bg = [item(kb) for kb in range(16)]
        if layer == 0:
            a.bg.append((0, lambda: self.prep_wait(WK + 104, t_prep)))
        a.bg += self.ring_items(self.opt["pre_c" if layer else "pre_c0"], 60)
        a.pop(self.opt["lead"])
        a.on = True
        for kb in range(16):
            a.wait(vm=ot[kb])
            for nt in range(2):
                self.mfma(V(acc + 16 * nt, 16), V(X0 + (kb * 2 + nt) * 4, 4), V(of + 4 * kb, 4), "0" if kb == 0 else None)
        a.flush()
        a.on = False
        self.stamp("p2gemm")
        hi, done = a.label("khi"), a.label("kd")
        a(f"s_cmp_lg_u32 s{sKH}, 0")
        a(f"s_cbranch_scc1 {hi}")
        for q in range(4):
            a(f"ds_write_b128 v{vA0}, {V(acc + 16 + 4 * q, 4)} offset:{1024 * q}")
        a(f"s_branch {done}")
        a(f"{hi}:")
        for q in range(4):
            a(f"ds_write_b128 v{vA0}, {V(acc + 4 * q, 4)} offset:{1024 * q}")
        for i in range(0, 16, 2):
            a(f"v_pk_add_f32 {V(acc + i, 2)}, {V(acc + 16 + i, 2)}, 0")
        a(f"{done}:")
        a.drain(vm=False)
        a("s_barrier")
        for q in range(4):
            t = a.ds(f"ds_read_b128 {V(acc + 16 + 4 * q, 4)}, v{vA1} offset:{1024 * q}")
        a.wait(vm=tr, lg=t)
        for i in range(0, 16, 2):
            a(f"v_pk_add_f32 {V(acc + i, 2)}, {V(acc + i, 2)}, {V(acc + 16 + i, 2)}")
        self.res_finish(acc, res, WS_XMID[layer], 2 + 5 * layer, sc1="first" if layer == 0 else None)
        self.stamp("x1")

    def p3(self, layer):
        a = self.a
        BAR = self.opt["bar"]
        if layer == 0:
            skip = a.label("cs3")
            a(f"s_cmp_lg_u32 s{sW}, 0")
            a(f"s_cbranch_scc1 {skip}")
            a(f"s_mul_i32 s{sA}, s{sC}, 896")
            a(f"s_add_u32 s{sA}, s{sA}, {WS_CS3}")
            for k in range(8):
                self.load(V(WK + 4 * k, 4), S_WS, vL16, f"s{sA}", counted=False)
                a(f"s_add_u32 s{sA}, s{sA}, {112 * 128}")
            a("s_waitcnt vmcnt(0)")
            for w in (16, 8, 4):
                for i in range(0, w, 2):
                    a(f"v_pk_add_f32 {V(WK + i, 2)}, {V(WK + i, 2)}, {V(WK + w + i, 2)}")
            for i in range(4):
                a(f"v_cvt_pk_bf16_f32 v{WK + 4 + i}, v{WK + i}, v{WK + i}")
                a(f"v_and_b32 v{WK + 8 + i}, 0xffff0000, v{WK + 4 + i}")
                a(f"v_sub_f32 v{WK + i}, v{WK + i}, v{WK + 8 + i}")
                a(f"v_cvt_pk_bf16_f32 v{WK + i}, v{WK + 8 + i}, v{WK + i}")
            a(f"v_add_u32 v{vT}, {CS3}, v{vL16}")
            a("s_mov_b32 exec_hi, 0x00ffffff")
            a(f"ds_write_b128 v{vT}, {V(WK, 4)}")
            a("s_mov_b64 exec, -1")
            a("s_waitcnt lgkmcnt(0)")
            a(f"{skip}:")
        accs = [WK, WK + 16, WK + 32, WK + 48, WK + 64, WK + 80, WK]
        tmp = WK + 96
        xt = {}
        st_items = self.stats_items(WS_ST, tmp, xt, vBG, 0)
        x_items = self.x_items(WS_XMID[layer], xt, 0)
        a(f"v_add_u32 v{vA0}, {ZB}, v{vL16}")
        a(f"v_add_u32 v{vA1}, {ZB + 65536}, v{vL16}")
        a(f"s_mul_i32 s{sH1}, s{sTT}, {112 * 1024}")
        a(f"s_mul_i32 s{sA}, s{sC}, {7 * 1024}")
        a(f"s_add_u32 s{sH1}, s{sH1}, s{sA}")
        a(f"s_add_u32 s{sH1}, s{sH1}, {WS_H}")
        self.rows_poll_addr()
        n0 = self.opt["g0"]
        seq = [(g, kb) for kb in range(32) for g in range(n0)] + [(g, kb) for kb in range(32) for g in range(n0, 6)] + \
              [(6, kb) for kb in range(32)]
        M = 32 * n0
        self.n_early = n_early = 4
        rt = {}
        self.free_upto = -1

        def rd(f):
            s = f // 8
            if f % BAR == 0:
                last = s + BAR // 8 - 1
                while self.ring_next < 2 * last + 2:
                    self.ring_one()
                fine = self.opt["fine"] == 2 and layer == 1 and 6 <= s <= 16
                if fine:
                    self.stamp(f"pre{s}")
                a.wait(vm=self.ring_tag[last])
                if fine:
                    self.stamp(f"vm{s}")
                a("s_barrier")
                if fine:
                    self.stamp(f"bar{s}")
                self.free_upto = s - 2
            off = RING_AT[s % NSLOT] - ZB + (f % 8) * 1024
            addr, off = (vA0, off) if off < 65536 else (vA1, off - 65536)
            rt[f] = a.ds(f"ds_read_b128 {A(aRING + (f % 4) * 4, 4)}, v{addr} offset:{off}")
        for f in range(4):
            rd(f)
        for _ in range(2 * self.opt["pre_d"]):
            self.ring_one()
        self.poll(vU, 2 + 5 * layer)
        self.stamp("S3")
        for _ in range(self.opt["lead3"]):
            x_items.pop(0)[1]()
        x_items = x_items[:6] + st_items + x_items[6:]

        ext, mu = tmp + 8, tmp + 4

        def epi(gs):
            l = []
            for g in gs:
                acc = accs[g]
                for i in range(8):
                    l.append(("v", f"v_mul_f32 v{acc + 8 + i}, v{vRHO}, v{acc + 8 + i}", None))
                for i in range(8):
                    l.append(("v", f"v_mul_f32 v{acc + i}, v{acc + i}, v{acc + 8 + i}", None))
                for i in range(4):
                    l.append(("v", f"v_cvt_pk_bf16_f32 v{acc + 8 + i}, v{acc + 2 * i}, v{acc + 2 * i + 1}", None))
                l.append(("st", g, None))
            return l

        def mean_operand():
            a(f"v_mul_f32 v{vRHO}, v{vRHO}, v{vRHO}")
            a(f"v_cvt_pk_bf16_f32 v{mu}, v{vNMU}, v{vNMU}")
            a(f"v_and_b32 v{vT}, 0xffff0000, v{mu}")
            a(f"v_sub_f32 v{vT}, v{vNMU}, v{vT}")
            a(f"v_cvt_pk_bf16_f32 v{mu + 1}, v{vT}, v{vT}")
            a(f"v_cmp_gt_u32 vcc, 32, v{vLANE}")
            a(f"v_mov_b32 v{mu + 2}, 0")
            a(f"v_mov_b32 v{mu + 3}, 0")
            a(f"v_cndmask_b32 v{mu}, 0, v{mu}, vcc")
            a(f"v_cndmask_b32 v{mu + 1}, 0, v{mu + 1}, vcc")
            for i in (2, 3, 6, 7):
                a(f"v_mov_b32 v{ext + i}, 0")
            self.natural_col(tmp)
            a(f"v_add_u32 v{tmp}, {CS3}, v{tmp}")
        ext_tag, h_tag = {}, {}

        def ext_read(g):
            ext_tag[g] = a.ds(f"ds_read2_b32 {V(ext + 4 * (g & 1), 2)}, v{tmp} offset0:{32 * g} offset1:{32 * g}")

        def run(item):
            k, x, key = item
            if k == "v":
                a(x)
            elif k == "st":
                if x == 4:
                    a(f"s_add_u32 s{sH1}, s{sH1}, 4096")
                h_tag[x] = self.store(V(accs[x] + 8, 4), S_WS, vL16, f"s{sH1}", (x % 4) * 1024,
                                      sc1="first" if layer == 0 else None)
            elif k == "call":
                x()
        tp = {}

        def sig_a():
            a(f"v_mov_b32 v{vT}, {3 + 5 * layer}")
            a(f"v_mov_b32 v{vROW}, s{sFLAG}")
            a.wait(vm=h_tag[n_early - 1])
            a("s_mov_b64 exec, 1")
            self.store(V(vT), S_WS, vROW, 0, width="dword")
            a("s_mov_b64 exec, -1")
        pend = []
        for f, (g, kb) in enumerate(seq):
            if f == M + 3:
                assert not pend
                pend = epi(range(n0))
                if n0 == 4:
                    pend += [("v", l, None) for l in a.capture(self.p4_setup)]
            if f == 195:
                assert n0 == 5 or not pend
                pend += epi(range(n0, 6))
            if f == (197 if n0 == 4 else self.opt['siga']):
                pend.insert(0, ("call", sig_a, None))
            if f in (16, 48, 96, 128, 192) and self.opt["fine"] != 2:
                self.stamp(f"p3f{f}")
            a.wait(vm=xt[kb] if g == 0 else None, lg=rt[f])
            self.mfma(V(accs[g], 16), A(aRING + (f % 4) * 4, 4), V(X0 + 4 * kb, 4), "0" if kb == 0 else None)
            if f + 4 < 224:
                rd(f + 4)
            if kb == 31:
                a.wait(lg=ext_tag[g])
                self.mfma(V(accs[g], 16), V(ext + 4 * (g & 1), 4), V(mu, 4))
                if g + 2 < 7:
                    ext_read(g + 2)
            if f == M - 8:
                assert not pend
                ext_read(0)
                ext_read(1)
            ring_ok = self.ring_next < 56 and self.ring_next // 2 - NSLOT <= self.free_upto
            slots = {8: range(0, 16, 2), 7: (0, 2, 5, 7, 9, 12, 14), 6: (0, 3, 5, 8, 11, 13), 5: (0, 3, 6, 10, 13)}
            rate = self.opt["vm16" if layer else "vm16a"] if f < self.opt["vmend"] else 8
            if f % 16 in slots[rate] or f < self.opt["xburst"]:
                nx = sum(isinstance(k, int) for k in xt)
                if self.opt["edf"] < 100:
                    s_due = self.ring_next // 2 // (BAR // 8) * BAR
                    take_x = x_items and (not ring_ok or n0 * nx - self.opt["edf"] <= s_due)
                elif self.opt["xmin"]:
                    take_x = x_items and (not ring_ok or nx - f // n0 < self.opt["xmin"] or f >= 32 and len(x_items) > 26 - nx + self.opt["lead3"] + 6)
                else:
                    take_x = x_items and not (ring_ok and f % 4 == 2 and f >= self.opt["xfirst"])
                if take_x:
                    x_items.pop(0)[1]()
                elif ring_ok:
                    self.ring_one()
                elif layer == 0 and self.w4_next < 56:
                    self.w4_one()
            if f == 64:
                a.wait(vm=xt["st"])
                pend = [("v", l, None) for l in a.capture(lambda: self.sum_stats(tmp, packed=False))]
                pend += [("v", l, None) for l in a.capture(mean_operand)]
                if n0 == 5:
                    pend += [("v", l, None) for l in a.capture(self.p4_setup)]
            if f == self.opt["polla"]:
                tp["a"] = self.poll_issue(vU)
            for _ in range(3 if n0 == 5 and M < f < 196 else 2):
                if pend:
                    run(pend.pop(0))
        assert not pend, len(pend)
        if layer == 0 and not self.slow:
            print("W4 fragments left after P3:", 56 - self.w4_next)
        while layer == 0 and (self.w4_next < 56 and not self.opt["w4rest"] or self.w4_next % 2):
            self.w4_one()
        self.stamp("p3gemm")
        a("s_barrier")
        for it in epi((6,)):
            run(it)
        self.p4(layer, tp["a"], h_tag[6])

    def p4_setup(self):
        a = self.a
        self.res_addr()
        a(f"s_lshl_b32 s{sA}, s{sCL}, 8")
        a(f"s_lshl_b32 s{sB}, s{sTH2}, 7")
        a(f"s_add_u32 s{sA}, s{sA}, s{sB}")
        a(f"s_lshl_b32 s{sB}, s{sW}, 4")
        a(f"s_add_u32 s{sA}, s{sA}, s{sB}")
        if self.slow:
            a(f"s_add_u32 s{sA}, s{sA}, {WS_ALT}")
        a(f"v_and_b32 v{vT}, 3, v{vLANE}")
        a(f"v_bfe_u32 v{vU}, v{vLANE}, 2, 1")
        a(f"v_lshlrev_b32 v{vU}, 6, v{vU}")
        a(f"v_lshl_add_u32 v{vU}, v{vT}, 2, v{vU}")
        a(f"v_add_u32 v{vU}, s{sA}, v{vU}")
        a(f"s_lshl_b32 s{sA}, s{sCL}, 2")
        a(f"s_lshl_b32 s{sB}, s{sTH2}, 1")
        a(f"s_add_u32 s{sA}, s{sA}, s{sB}")
        a(f"s_mul_i32 s{sH2}, s{sA}, {112 * 1024}")
        a(f"s_mul_i32 s{sB}, s{sW}, {28 * 1024}")
        a(f"s_add_u32 s{sH2}, s{sH2}, s{sB}")
        a(f"s_add_u32 s{sH2}, s{sH2}, {WS_H}")
        a(f"s_add_u32 s{sH3}, s{sH2}, {112 * 1024}")

    def p4(self, layer, t_poll_a, t_last_h):
        a = self.a
        acc, res = X0, WK + 96
        slots = [X0 + 64 + 8 * i for i in range(8)] + [WK + 16 + 8 * i for i in range(10)]
        NH = len(slots)
        order = self.P4_ORDER
        ht = {}

        def ld(n):
            i, th = divmod(n, 2)
            a(f"s_add_u32 s{sA}, s{sH2 + th}, {order[i] * 1024}")
            ht[n] = self.load(V(slots[i % NH] + 4 * th, 4), S_WS, vL16, f"s{sA}")
        self.poll(vU, 3 + 5 * layer, first=t_poll_a)
        for n in range(4):
            ld(n)
        self.signal(4 + 5 * layer, after=t_last_h)
        self.stamp("h")
        lead = 2 * self.opt["lead4"]
        for n in range(4, lead):
            ld(n)
        nl, tp, tr = lead, None, None
        for i in range(28):
            for th in range(2):
                a.wait(vm=max(ht[2 * i + th], self.w4_tag[i]) if layer == 0 else ht[2 * i + th])
                for nt in range(2):
                    self.mfma(V(acc + 16 * (2 * nt + th), 16), A((order[i] * 2 + nt) * 4, 4),
                              V(slots[i % NH] + 4 * th, 4), "0" if i == 0 else None)
                    if nt == 0:
                        if nl == 8 * self.n_early - self.opt["pollb"]:
                            tp = self.poll_issue(vU)
                        if nl == 8 * self.n_early:
                            self.poll(vU, 4 + 5 * layer, first=tp)
                        if nl < 56:
                            ld(nl)
                            nl += 1
                        elif tr is None:
                            tr = self.res_load(res, WS_XMID[layer])
                    elif layer == 0 and self.w4_next < 56 and i >= 1:
                        self.w4_one()
        self.stamp("p4gemm")
        if layer == 1:
            a(f"v_and_b32 v{vT}, 31, v{vLANE}")
            a(f"v_lshrrev_b32 v{vU}, 5, v{vLANE}")
            a(f"v_lshlrev_b32 v{vROW}, 10, v{vT}")
            a(f"v_lshl_add_u32 v{vROW}, v{vU}, 4, v{vROW}")
        own = WK
        self.scatter(acc, 16, own, P4S, 4096)
        a(f"s_mul_i32 s{sA}, s{sW}, 12288")
        a(f"s_add_u32 s{sA}, s{sA}, {P4S}")
        a(f"v_add_u32 v{vA0}, s{sA}, v{vL16}")
        a.drain(vm=False)
        a("s_barrier")
        ts = []
        for j in range(12):
            ts.append(a.ds(f"ds_read_b128 {V(acc + 4 * j, 4)}, v{vA0} offset:{1024 * j}"))
        for s in range(3):
            a.wait(lg=ts[4 * s + 3])
            for i in range(0, 16, 2):
                a(f"v_pk_add_f32 {V(own + i, 2)}, {V(own + i, 2)}, {V(acc + 16 * s + i, 2)}")
        a.wait(vm=tr)
        if layer == 0:
            self.res_finish(own, res, WS_A, 5)
            a("s_barrier")
        else:
            self.res_finish(own, res, None, None)
        self.stamp("x2")

    def body(self):
        for layer in range(self.opt["layers"]):
            acc = self.p1_start_l0() if layer == 0 else self.p1_start_l1()
            self.s1_window(layer, self.e1_kv(layer, *acc))
            self.p2(layer)
            self.p3(layer)
            if layer == 0 and self.opt["amp2"] == 1 and not self.slow:
                self.a("s_memrealtime s[12:13]")
                self.a("s_memtime s[18:19]")
                self.a.drain(vm=False)

    def build(self):
        a = self.a
        self.slow = False
        self.prologue()
        self.stamp("start")
        if self.diag or self.opt["amp"]:
            a("s_memrealtime s[6:7]")
            a("s_memtime s[14:15]")
        self.body()
        if self.opt["amp"]:
            a("s_waitcnt vmcnt(0)")
            a("s_memtime s[16:17]")
            a("s_memrealtime s[8:9]")
            a("s_waitcnt lgkmcnt(0)")
            a(f"s_cmp_lg_u32 s2, {self.opt['amp']}")
            a("s_cbranch_scc1 L_end")
            a(("s_sub_u32 s10, s8, s6", "s_sub_u32 s10, s8, s12", "s_sub_u32 s10, s6, s12")[self.opt["amp2"]])
            a("s_mul_i32 s10, s10, 20")
            if self.opt["ampat"]:
                a("s_sub_u32 s10, s18, s14")
            elif self.opt["ampc"]:
                a("s_sub_u32 s10, s16, s18" if self.opt["amp2"] else "s_sub_u32 s10, s16, s14")
            a("L_amp:")
            a("s_sleep 8")
            a("s_memrealtime s[6:7]")
            a("s_waitcnt lgkmcnt(0)")
            a("s_sub_u32 s11, s6, s8")
            a("s_cmp_lt_u32 s11, s10")
            a("s_cbranch_scc1 L_amp")
        if self.diag:
            a("s_memrealtime s[8:9]")
            a.drain(vm=False)
            a(f"v_writelane_b32 v{vDIAG}, s6, 61")
            a(f"v_writelane_b32 v{vDIAG}, s8, 62")
            a(f"v_writelane_b32 v{vDIAG}, s{sTO}, 63")
            a(f"s_lshl_b32 s{sA}, s{sCL}, 4")
            a(f"s_add_u32 s{sA}, s{sA}, s{sC}")
            a(f"s_lshl_b32 s{sA}, s{sA}, 2")
            a(f"s_add_u32 s{sA}, s{sA}, s{sW}")
            a(f"s_lshl_b32 s{sA}, s{sA}, 8")
            a(f"s_add_u32 s{sA}, s{sA}, {WS_SIZE - 0x40000}")
            a(f"v_lshlrev_b32 v{vT}, 2, v{vLANE}")
            self.store(V(vDIAG), S_WS, vT, f"s{sA}", width="dword")
        a("L_end:")
        a("s_endpgm")
        self.slow = True
        a("L_slow:")
        a.drain()
        a("s_barrier")
        a(f"s_lshr_b32 s{sCL}, s2, 4")
        a(f"s_and_b32 s{sC}, s2, 15")
        self.body()
        a("s_endpgm")
        lines, n = fix_hazards(a.lines)
        if self.opt["align"]:
            lines = align8(lines)
        head = HEADER.format(lds=LDS_SIZE, name=NAME)
        return head + "\n".join(lines) + "\n" + TAIL.format(name=NAME), n

HEADER = """; Two interleaved (Hedgehog linear attention, bilinear GLU) blocks in one persistent launch: 256 workgroups, one per CU.
; Work split: 16 clusters of 16 workgroups, one cluster per 128 token rows.  Phases per layer:
;   P1 k,v,q = LN(x) Wqkv (2 heads per workgroup), feature maps, partial phi_k^T [v 1]  -> exchange over the 16 clusters
; LayerNorm is applied after the product: LN(x) W = rstd * (x W - mean * colsum(W)).
; Hand-offs inside a cluster: when the table in d_debug (every workgroup publishes the XCD it really runs on) shows that each
; cluster sits on one XCD, they stay in that XCD's L2 (plain stores, L1-bypassing loads); under any other placement every
; workgroup jumps to L_slow, a copy that writes all hand-offs through to memory.  Hand-offs between clusters always write through.
; @launch grid=(256,1,1) block=(256,1,1) lds={lds}
.amdgcn_target "amdgcn-amd-amdhsa--gfx950"
.text
.globl {name}_kernel
.p2align 8
.type {name}_kernel,@function
{name}_kernel:
"""
TAIL = """.section .rodata,"a"
.p2align 6
.amdhsa_kernel {name}_kernel
  .amdhsa_next_free_vgpr 512
  .amdhsa_next_free_sgpr 102
  .amdhsa_accum_offset 256
  .amdhsa_group_segment_fixed_size 0
  .amdhsa_kernarg_size 88
  .amdhsa_user_sgpr_count 2
  .amdhsa_user_sgpr_kernarg_segment_ptr 1
  .amdhsa_system_sgpr_workgroup_id_x 1
.end_amdhsa_kernel
"""

if __name__ == "__main__":
    out = sys.argv[1]
    flags = sys.argv[2:]
    opt = {f.split("=")[0]: int(f.split("=")[1]) for f in flags if "=" in f}
    g = Gen(diag="diag" in flags, force_slow="slow" in flags, opt=opt)
    text, n = g.build()
    open(out, "w").write(text)
    if g.diag:
        open(out + ".stamps", "w").write("\n".join(g.stamps))
    print(f"{out}: {len(text)} bytes, {text.count(chr(10))} lines, {n} hazard nops")
```

```python
import sys
from asmlib import Asm, fix_hazards, align8

NAME = "interleave_layers__linear_kernel_hedgehog__glu_gated_bilinear__prompt"

WS_FLAG = 0x0
WS_S1F = 0x1000
WS_PREP = 0x3000
WS_ALT = 0x4000
WS_CS3 = 0x20000
WS_ST = 0x40000
WS_KVP = 0x100000
WS_KVP_ALT = 0x240000
KVP_SZ = 2304
WS_A = 0x400000
WS_B = 0x600000
WS_OBUF = (WS_A, WS_B)
WS_XMID = (WS_B, WS_A)
WS_H = 0xA00000
WS_W3 = 0x1200000
WS_W4 = 0x1600000
WS_SIZE = 0x1800000

W1KV = 0
PERS = 65536
CS1 = PERS
CS3 = PERS + 512
ZB = PERS + 2048
ZQ = ZB
ZW2 = ZB + 30720
ZS = ZB + 32768
ZAIMG = ZB + 24576
XS = ZB
PREP_G = ZB + 65536
PREP_U = PREP_G + 8192
PREP_D = PREP_U + 8192
PHI_IMG = ZB + 90112
CSP = PHI_IMG + 1024
CSPQ = PERS + 1408
NSLOT = 11
RING_AT = [ZB + 8192 * i for i in (0, 1, 2, 4, 5, 6, 7, 8, 9, 10, 3)]
P2S = ZB + 73728
P4S = ZB
LDS_SIZE = 163840

sTM = 4
S_AX, S_WQ, S_WS, S_DBG, S_PHI, S_WO, S_WG, S_WU, S_WD, S_OUT = 28, 32, 36, 40, 44, 48, 52, 56, 60, 64
sW, sCL, sC, sTT, sCT, sTH2, sKH, sTH = 68, 69, 70, 71, 72, 73, 74, 75
sXCC = 76
sA, sB, sD, sE, sF, sG = 77, 78, 79, 80, 81, 82
sFLAG = 83
sLOG2E = 84
sONES, sLO, sHI = 86, 87, 88
sH0, sH1, sH2, sH3 = 89, 90, 92, 93
sTO = 91
sBG = 94
sQ0, sQ1, sR0, sR1, sW3, sW3N, sW4 = 95, 96, 97, 98, 99, 100, 101
sKV, sKVW, sKVF = 20, 21, 22

vLANE, vL16, vTR0, vTR1, vTRQ, vBG, vP, vT = 0, 1, 2, 3, 4, 5, 6, 7
vNMU, vRHO = 8, 9
vCS, vU, vA0, vA1, vROW, vDIAG = 10, 11, 12, 13, 14, 15
X0 = 16
WK = 144
aI, aPHI, aRING = 224, 232, 240


def V(a, n=1):
    return f"v{a}" if n == 1 else f"v[{a}:{a + n - 1}]"


def A(a, n=1):
    return f"a{a}" if n == 1 else f"a[{a}:{a + n - 1}]"


def S(a, n=4):
    return f"s[{a}:{a + n - 1}]"


class PacedAsm(Asm):
    def __init__(self):
        super().__init__()
        self.bg, self.on, self.acc, self.busy = [], False, 0, False

    def __call__(self, text):
        super().__call__(text)
        if self.on and not self.busy and text.startswith("v_"):
            mn = text.split()[0]
            self.acc += 32 if "mfma" in mn else 8 if mn[2:5] in ("exp", "rcp", "rsq", "per") else 4
            if self.bg and self.acc >= self.bg[0][0]:
                self.pop()

    def pop(self, n=1):
        for _ in range(n):
            if self.bg:
                self.busy = True
                self.bg.pop(0)[1]()
                self.busy = False
                self.acc = 0

    def flush(self):
        self.pop(len(self.bg))

    def capture(self, fn):
        n, on = len(self.lines), self.on
        self.on = False
        fn()
        self.on = on
        got = self.lines[n:]
        del self.lines[n:]
        return got


class Gen:
    def __init__(self, diag=False, force_slow=False, opt=None):
        self.a = PacedAsm()
        self.diag, self.force_slow = diag, force_slow
        self.nstamp, self.stamps = 0, []
        self.opt = dict(pre_a=3, pre_c0=8, t_first=2, gx=60, gw=60, xfirst=12, xburst=6, xmin=8, vm16=7, vm16a=8, vmend=224, edf=0, siga=204, polla=219, pollb=12, g0=5, fine=0, e1bg=1, keep=4, pg=0, late=1, gp=250, gl=300, kvsleep=4, hwt=6, owt=0, wb=0, w4rest=1, pre_d=0, nt=0, keep0=8, keep1=20, align=1, pre_c=5, layers=2, bar=16, lead=12, lead3=4, lead4=6, prepat=0, wt0=1, amp=0, amp2=0, ampc=0, ampat=0, stf=0)
        self.opt.update(opt or {})

    def stamp(self, name):
        if not self.slow and self.opt["ampat"]:
            self.nstamp += 1
            if self.nstamp - 1 == self.opt["ampat"]:
                self.a("s_memtime s[18:19]")
                self.a.drain(vm=False)
                print("amplified checkpoint:", name)
        if not self.diag or self.slow:
            return
        a = self.a
        on, a.on = a.on, False
        a(f"s_memtime s[{sTM}:{sTM + 1}]")
        a.drain(vm=False)
        a(f"v_writelane_b32 v{vDIAG}, s{sTM}, {self.nstamp}")
        a.on = on
        self.stamps.append(name)
        self.nstamp += 1

    def mfma(self, d, x, y, c=None):
        self.a(f"v_mfma_f32_32x32x16_bf16 {d}, {x}, {y}, {c if c is not None else d}")

    def dma(self, srd, voff, soff, imm=0, counted=True, extra=""):
        o = f" offset:{imm}" if imm else ""
        return self.a.vmop(f"buffer_load_dwordx4 v{voff}, {S(srd)}, {soff} offen{o}{extra} lds", counted)

    def load(self, dst, srd, voff, soff, imm=0, sc1=True, counted=True, extra=""):
        o = (f" offset:{imm}" if imm else "") + extra
        return self.a.vmop(f"buffer_load_dwordx4 {dst}, v{voff}, {S(srd)}, {soff} offen{o}{' sc1' if sc1 else ''}", counted)

    def store(self, src, srd, voff, soff, imm=0, sc1=None, width="dwordx4", counted=True):
        if sc1 is None:
            sc1 = self.slow
        if sc1 == "first":
            sc1 = self.slow or bool(self.opt["wt0"])
        o = f" offset:{imm}" if imm else ""
        fl = " sc1" if sc1 else ""
        if not sc1 and width == "dwordx4":
            fl = ("", " nt", " sc1", " sc0")[self.opt["stf"]]
        return self.a.vmop(f"buffer_store_{width} {src}, v{voff}, {S(srd)}, {soff} offen{o}{fl}", counted)

    def dma_items(self, n, srd, voff, src, src_step, lds, lds0, gap, tags=None, key=None):
        a = self.a

        def item(i):
            def f():
                a(f"s_add_u32 m0, s{lds}, {lds0 + i * 1024}")
                a(f"s_add_u32 s{sBG}, s{src}, {i * src_step}")
                t = self.dma(srd, voff, f"s{sBG}", extra=" nt" if self.opt["nt"] & 4 else "")
                if tags is not None:
                    tags[key] = t
            return gap, f
        return [item(i) for i in range(n)]

    def tr(self, dst, addr, off):
        self.a.ds(f"ds_read_b64_tr_b16 {V(dst, 2)}, v{addr} offset:{off[0]}")
        return self.a.ds(f"ds_read_b64_tr_b16 {V(dst + 2, 2)}, v{addr} offset:{off[1]}")

    def flag_store(self, value, sreg=sFLAG, sc1=None):
        a = self.a
        a("s_mov_b64 exec, 1")
        self.store(V(vT), S_WS, vA1, 0, sc1=sc1, width="dword")
        a("s_mov_b64 exec, -1")

    def signal(self, value, sreg=sFLAG, sc1=None, after=None):
        a = self.a
        a(f"v_mov_b32 v{vT}, {value}")
        a(f"v_mov_b32 v{vA1}, s{sreg}")
        if after is None:
            a.drain(lg=False)
        else:
            a.wait(vm=after)
        self.flag_store(value, sreg, sc1)

    def spin(self, lp, done):
        a = self.a
        a(f"s_cbranch_vccz {done}")
        a(f"s_add_u32 s{sTO}, s{sTO}, 1")
        a(f"s_bitcmp0_b32 s{sTO}, 20")
        a(f"s_cbranch_scc1 {lp}")
        a(f"{done}:")

    def poll_issue(self, addr, srd=S_WS, dst=vP):
        return self.a.vmop(f"buffer_load_dword v{dst}, v{addr}, {S(srd)}, 0 offen sc1")

    def poll(self, addr, test, first=None, srd=S_WS, dst=vP, sleep=0):
        a = self.a
        on, a.on = a.on, False
        if not callable(test):
            value = test
            test = lambda: a(f"v_cmp_gt_u32 vcc, {value}, v{vP}")
        lp, done = a.label("poll"), a.label("go")
        if first is not None:
            a.wait(vm=first)
            test()
            a(f"s_cbranch_vccz {done}")
        a(f"{lp}:")
        if sleep:
            a(f"s_sleep {sleep}")
        a.vmop(f"buffer_load_dword v{dst}, v{addr}, {S(srd)}, 0 offen sc1", counted=first is None)
        if first is None:
            a.drain(lg=False)
        else:
            a("s_waitcnt vmcnt(0)")
        test()
        self.spin(lp, done)
        a.on = on

    def half_reduce2(self, x, y, op):
        a = self.a
        a(f"v_permlane32_swap_b32 v{x}, v{y}")
        a(f"{op} v{x}, v{x}, v{y}")
        a(f"v_mov_b32 v{y}, v{x}")
        a(f"v_permlane32_swap_b32 v{x}, v{y}")

    def finish_stats(self, s, q):
        a = self.a
        self.half_reduce2(s, q, "v_add_f32")
        a(f"v_mul_f32 v{vNMU}, {-1.0 / 512}, v{s}")
        a(f"v_mul_f32 v{q}, {1.0 / 512}, v{q}")
        a(f"v_fma_f32 v{q}, -v{vNMU}, v{vNMU}, v{q}")
        a(f"v_max_f32 v{q}, 0, v{q}")
        a(f"v_add_f32 v{q}, 0x3727c5ac, v{q}")
        a(f"v_rsq_f32 v{vRHO}, v{q}")

    def stats_items(self, base, dst, tags, voff, gap):
        a = self.a
        a(f"s_lshl_b32 s{sR0}, s{sTT}, 12")
        a(f"s_add_u32 s{sR0}, s{sR0}, {base}")
        a(f"v_and_b32 v{vT}, 31, v{vLANE}")
        a(f"v_lshlrev_b32 v{vT}, 4, v{vT}")
        a(f"v_lshrrev_b32 v{voff}, 5, v{vLANE}")
        a(f"v_lshl_add_u32 v{voff}, v{voff}, 11, v{vT}")

        def item(i):
            def f():
                tags["st"] = self.load(V(dst + 4 * i, 4), S_WS, voff, f"s{sR0}", 512 * i)
            return gap, f
        return [item(i) for i in range(4)]

    def sum_stats(self, src, packed=True):
        a = self.a
        for w in (8, 4, 2):
            for i in range(0, w, 2):
                if packed:
                    a(f"v_pk_add_f32 {V(src + i, 2)}, {V(src + i, 2)}, {V(src + w + i, 2)}")
                else:
                    a(f"v_add_f32 v{src + i}, v{src + i}, v{src + w + i}")
                    a(f"v_add_f32 v{src + i + 1}, v{src + i + 1}, v{src + w + i + 1}")
        self.finish_stats(src, src + 1)

    def normalize(self, acc, cs):
        a = self.a
        for i in range(0, 16, 2):
            a(f"v_pk_fma_f32 {V(acc + i, 2)}, {V(cs + i, 2)}, {V(vNMU, 2)}, {V(acc + i, 2)} op_sel_hi:[1,0,1]")
        for i in range(0, 16, 2):
            a(f"v_pk_mul_f32 {V(acc + i, 2)}, {V(acc + i, 2)}, {V(vNMU, 2)} op_sel:[0,1] op_sel_hi:[1,1]")

    def cvt16(self, src, dst):
        for i in range(8):
            self.a(f"v_cvt_pk_bf16_f32 v{dst + i}, v{src + 2 * i}, v{src + 2 * i + 1}")

    def read_cs(self, tile, dst):
        for j, o in enumerate((0, 16, 64, 80)):
            t = self.a.ds(f"ds_read_b128 {V(dst + 4 * j, 4)}, v{vCS} offset:{tile * 128 + o}")
        return t

    def softmax4(self, pa, pb, tmp, da, db):
        a = self.a
        G = [(pa, tmp), (pa + 8, tmp + 2), (pb, tmp + 4), (pb + 8, tmp + 6)]

        def reduce(op):
            for step in range(4):
                for x, y in ((tmp, tmp + 2), (tmp + 4, tmp + 6)):
                    a((f"v_permlane32_swap_b32 v{x}, v{y}", f"{op} v{x}, v{x}, v{y}", f"v_mov_b32 v{y}, v{x}",
                       f"v_permlane32_swap_b32 v{x}, v{y}")[step])
        for g, m in G:
            a(f"v_max3_f32 v{m}, v{g}, v{g + 1}, v{g + 2}")
            a(f"v_max3_f32 v{m + 1}, v{g + 3}, v{g + 4}, v{g + 5}")
            a(f"v_max3_f32 v{m}, v{g + 6}, v{g + 7}, v{m}")
            a(f"v_max_f32 v{m}, v{m}, v{m + 1}")
        reduce("v_max_f32")
        for g, m in G:
            a(f"v_mul_f32 v{m}, 0xbfb8aa3b, v{m}")
        for g, m in G:
            for i in range(0, 8, 2):
                a(f"v_pk_fma_f32 {V(g + i, 2)}, {V(g + i, 2)}, {S(sLOG2E, 2)}, {V(m, 2)} op_sel_hi:[1,1,0]")
        for g, m in G:
            for i in range(8):
                a(f"v_exp_f32 v{g + i}, v{g + i}")
        for g, m in G:
            a(f"v_pk_add_f32 {V(m, 2)}, {V(g, 2)}, {V(g + 2, 2)}")
            a(f"v_pk_add_f32 {V(tmp + 8, 2)}, {V(g + 4, 2)}, {V(g + 6, 2)}")
            a(f"v_pk_add_f32 {V(m, 2)}, {V(m, 2)}, {V(tmp + 8, 2)}")
            a(f"v_add_f32 v{m}, v{m}, v{m + 1}")
        reduce("v_add_f32")
        for g, m in G:
            a(f"v_rcp_f32 v{m}, v{m}")
        for g, m in G:
            for i in range(0, 8, 2):
                a(f"v_pk_mul_f32 {V(g + i, 2)}, {V(g + i, 2)}, {V(m, 2)} op_sel_hi:[1,0]")
        self.cvt16(pa, da)
        self.cvt16(pb, db)

    def natural_col(self, dst):
        a = self.a
        a(f"v_and_b32 v{vT}, 19, v{vLANE}")
        a(f"v_bfe_u32 v{dst}, v{vLANE}, 2, 1")
        a(f"v_lshl_add_u32 v{vT}, v{dst}, 3, v{vT}")
        a(f"v_bfe_u32 v{dst}, v{vLANE}, 3, 1")
        a(f"v_lshl_add_u32 v{vT}, v{dst}, 2, v{vT}")
        a(f"v_lshlrev_b32 v{dst}, 2, v{vT}")

    def fold_halves(self, acc):
        a = self.a
        a(f"v_add_f32 v{acc}, v{acc}, v{acc + 1}")
        a(f"v_mov_b32 v{acc + 1}, v{acc}")
        a(f"v_permlane32_swap_b32 v{acc}, v{acc + 1}")
        a(f"v_add_f32 v{acc}, v{acc}, v{acc + 1}")

    def colsum_write(self, base, accs, store=True):
        a = self.a
        self.natural_col(vU)
        a(f"s_mul_i32 s{sA}, s{sW}, {128 * len(accs)}")
        a(f"s_add_u32 s{sA}, s{sA}, {base}")
        a(f"v_add_u32 v{vU}, s{sA}, v{vU}")
        for acc in accs:
            self.fold_halves(acc)
        if store:
            self.colsum_store(accs)

    def colsum_store(self, accs):
        for tile, acc in enumerate(accs):
            self.a.ds(f"ds_write_b32 v{vU}, v{acc} offset:{tile * 128}")

    def colsum_final(self, base, ntile, dst, tmp):
        a = self.a
        a(f"v_lshlrev_b32 v{vT}, 2, v{vLANE}")
        if ntile == 1:
            a(f"v_and_b32 v{vT}, 127, v{vT}")
        a(f"v_add_u32 v{vU}, {base}, v{vT}")
        for w in range(4):
            t = a.ds(f"ds_read_b32 v{tmp + w}, v{vU} offset:{128 * ntile * w}")
        a(f"v_add_u32 v{vU}, {dst}, v{vT}")
        a.wait(lg=t)
        a(f"v_add_f32 v{tmp}, v{tmp}, v{tmp + 1}")
        a(f"v_add_f32 v{tmp + 2}, v{tmp + 2}, v{tmp + 3}")
        a(f"v_add_f32 v{tmp}, v{tmp}, v{tmp + 2}")
        return a.ds(f"ds_write_b32 v{vU}, v{tmp}")

    def prologue(self):
        a = self.a
        if self.opt["amp2"] == 2:
            a("s_memrealtime s[12:13]")
        a("s_cmp_ge_u32 s2, 256")
        a("s_cbranch_scc1 L_end")
        a("s_getpc_b64 s[4:5]")
        for srd, off in ((S_AX, 0), (S_WQ, 8), (S_WS, 80), (S_WG, 40), (S_WU, 48), (S_WD, 56), (S_DBG, 72), (S_PHI, 16),
                         (S_WO, 24), (S_OUT, 64)):
            a(f"s_load_dwordx2 s[{srd}:{srd + 1}], s[0:1], {off}")
        a(f"v_lshrrev_b32 v{vU}, 6, v0")
        a(f"v_and_b32 v{vT}, 3, v0")
        a(f"v_lshl_add_u32 v{vT}, v{vU}, 2, v{vT}")
        a(f"s_lshr_b32 s{sG}, s2, 3")
        a(f"s_lshl_b32 s{sA}, s{sG}, 11")
        a(f"v_lshl_add_u32 v{vT}, v{vT}, 7, s{sA}")
        a.vmop(f"global_load_dword v255, v{vT}, s[4:5]")
        a(f"v_readfirstlane_b32 s{sW}, v{vU}")
        a(f"s_getreg_b32 s{sXCC}, hwreg(HW_REG_XCC_ID, 0, 4)")
        a(f"v_and_b32 v{vLANE}, 63, v0")
        a(f"v_lshlrev_b32 v{vL16}, 4, v{vLANE}")
        for srd, size in ((S_AX, 2 << 20), (S_WQ, 512 * 1536 * 2), (S_WS, WS_SIZE), (S_WG, 512 * 1792 * 2),
                          (S_WU, 512 * 1792 * 2), (S_WD, 1792 * 512 * 2), (S_DBG, 256), (S_PHI, 16384),
                          (S_WO, 512 * 512 * 2), (S_OUT, 2 << 20)):
            a(f"s_mov_b32 s{srd + 2}, {size}")
            a(f"s_mov_b32 s{srd + 3}, 0x20000")
        if self.diag:
            a(f"v_mov_b32 v{vDIAG}, 0")
        a(f"s_mov_b32 s{sTO}, 0")
        a(f"s_and_b32 s{sD}, s{sXCC}, 7")
        a(f"s_lshl_b32 s{sCL}, s{sD}, 1")
        a(f"s_lshr_b32 s{sA}, s2, 7")
        a(f"s_add_u32 s{sCL}, s{sCL}, s{sA}")
        a(f"s_bfe_u32 s{sC}, s2, 0x40003")
        a(f"s_lshl_b32 s{sE}, s{sG}, 2")
        a(f"s_add_u32 s{sE}, s{sE}, s{sW}")
        a(f"s_lshl_b32 s{sA}, s{sD}, 18")
        a(f"s_lshl_b32 s{sB}, s{sE}, 11")
        a(f"s_add_u32 s{sH2}, s{sA}, s{sB}")
        a(f"s_mul_i32 s{sH3}, s{sE}, 3072")
        a(f"v_and_b32 v{vT}, 1, v{vLANE}")
        a(f"v_bfe_u32 v{vU}, v{vLANE}, 1, 1")
        a(f"v_lshlrev_b32 v{vT}, 7, v{vT}")
        a(f"v_lshl_add_u32 v250, v{vU}, 10, v{vT}")
        a(f"v_and_b32 v{vT}, 15, v{vLANE}")
        a(f"v_lshlrev_b32 v251, 7, v{vT}")
        a("s_waitcnt lgkmcnt(0)")
        for r in range(self.opt["t_first"]):
            for _, f in self.touch_items(r):
                f()

    def clear_flags(self):
        a = self.a
        skip = a.label("clr")
        a(f"s_cmp_lg_u32 s{sW}, 3")
        a(f"s_cbranch_scc1 {skip}")
        a(f"s_lshl_b32 s{sA}, s{sCL}, 8")
        a(f"s_lshl_b32 s{sB}, s{sC}, 2")
        a(f"s_add_u32 s{sA}, s{sA}, s{sB}")
        a(f"s_lshl_b32 s{sB}, s{sC}, 8")
        a(f"s_lshl_b32 s{sD}, s{sCL}, 2")
        a(f"s_add_u32 s{sB}, s{sB}, s{sD}")
        a(f"s_lshr_b32 s{sD}, s2, 4")
        a(f"s_and_b32 s{sF}, s2, 15")
        a(f"s_lshl_b32 s{sG}, s{sD}, 8")
        a(f"s_lshl_b32 s{sBG}, s{sF}, 2")
        a(f"s_add_u32 s{sG}, s{sG}, s{sBG}")
        a(f"s_lshl_b32 s{sF}, s{sF}, 8")
        a(f"s_lshl_b32 s{sD}, s{sD}, 2")
        a(f"s_add_u32 s{sF}, s{sF}, s{sD}")
        a(f"s_lshl_b32 s{sD}, s2, 2")
        a(f"v_mov_b32 v{vU}, s{sB}")
        a(f"v_writelane_b32 v{vU}, s{sA}, 0")
        a(f"v_writelane_b32 v{vU}, s{sD}, 3")
        a(f"v_writelane_b32 v{vU}, s{sG}, 4")
        a(f"v_writelane_b32 v{vU}, s{sF}, 5")
        a(f"v_writelane_b32 v{vU}, s{sF}, 6")
        a(f"v_lshl_add_u32 v{vU}, v{vLANE}, 12, v{vU}")
        a(f"v_mov_b32 v{vT}, 0")
        a("s_mov_b64 exec, 0x7f")
        for w in range(4):
            self.store(V(vT), S_WS, vU, 0, 64 * w, sc1=True, width="dword", counted=False)
            if w == 0:
                a("s_mov_b64 exec, 0x77")
        a("s_mov_b64 exec, -1")
        a(f"{skip}:")

    def touch_items(self, r):
        a = self.a

        def w():
            a(f"s_add_u32 s{sBG}, s{sH3}, {128 * r * 3072 + 1024}")
            a.vmop(f"buffer_load_dword v253, v251, {S(S_WQ)}, s{sBG} offen")
        return [(40, w), (40, lambda: a.vmop(f"buffer_load_dword v254, v250, {S(S_AX)}, s{sH2} offen offset:{256 * r}"))]

    def late_touch_items(self, va, vb, dst):
        a = self.a
        a(f"s_lshr_b32 s{sQ1}, s2, 3")
        a(f"s_lshl_b32 s{sQ1}, s{sQ1}, 2")
        a(f"s_add_u32 s{sQ1}, s{sQ1}, s{sW}")
        a(f"s_mul_i32 s{sQ0}, s{sQ1}, {4 * 3072}")
        a(f"s_lshl_b32 s{sQ1}, s{sQ1}, 12")
        a(f"v_and_b32 v{vT}, 7, v{vLANE}")
        a(f"v_lshlrev_b32 v{vT}, 7, v{vT}")
        a(f"v_bfe_u32 v{va}, v{vLANE}, 3, 2")
        a(f"v_lshl_add_u32 v{vb}, v{va}, 10, v{vT}")
        a(f"v_mul_u32_u24 v{va}, 3072, v{va}")
        a(f"v_add_u32 v{va}, v{va}, v{vT}")
        g = self.opt["gl"]
        return [(g, lambda: a.vmop(f"buffer_load_dword v{dst}, v{va}, {S(S_WQ)}, s{sQ0} offen")),
                (g, lambda: a.vmop(f"buffer_load_dword v{dst}, v{vb}, {S(S_WO)}, s{sQ1} offen"))]

    def slot_scalars(self):
        a = self.a
        a(f"s_lshl_b32 s{sTT}, s{sCL}, 2")
        a(f"s_add_u32 s{sTT}, s{sTT}, s{sW}")
        a(f"s_and_b32 s{sCT}, s{sC}, 7")
        a(f"s_lshr_b32 s{sTH2}, s{sC}, 3")
        a(f"s_lshr_b32 s{sKH}, s{sW}, 1")
        a(f"s_and_b32 s{sTH}, s{sW}, 1")

    def lane_consts(self):
        a = self.a
        a(f"v_bfe_u32 v{vT}, v{vLANE}, 2, 2")
        a(f"v_lshrrev_b32 v{vU}, 5, v{vLANE}")
        a(f"v_lshl_add_u32 v{vA0}, v{vU}, 3, v{vT}")
        a(f"v_and_b32 v{vA1}, 1, v{vLANE}")
        a(f"v_lshlrev_b32 v{vA1}, 4, v{vA1}")
        a(f"v_bfe_u32 v{vP}, v{vLANE}, 1, 1")
        a(f"v_lshl_add_u32 v{vA1}, v{vP}, 3, v{vA1}")
        a(f"v_bfe_u32 v{vP}, v{vLANE}, 4, 1")
        a(f"v_lshl_add_u32 v{vA1}, v{vP}, 5, v{vA1}")
        a(f"v_lshl_add_u32 v{vTRQ}, v{vA0}, 6, v{vA1}")
        a(f"v_add_u32 v{vTRQ}, {ZQ}, v{vTRQ}")
        a(f"v_lshl_add_u32 v{vTR0}, v{vA0}, 7, v{vA1}")
        a(f"v_lshrrev_b32 v{vT}, 1, v{vT}")
        a(f"v_lshl_add_u32 v{vTR0}, v{vT}, 6, v{vTR0}")
        a(f"v_xor_b32 v{vTR1}, 64, v{vTR0}")
        a(f"v_lshlrev_b32 v{vCS}, 5, v{vU}")
        a(f"v_add_u32 v{vCS}, {PERS}, v{vCS}")
        a(f"s_lshl_b32 s{sA}, s{sTT}, 6")
        a(f"s_lshl_b32 s{sB}, s{sC}, 2")
        a(f"s_add_u32 s{sFLAG}, s{sA}, s{sB}")
        if self.slow:
            a(f"s_add_u32 s{sFLAG}, s{sFLAG}, {WS_ALT}")
        a(f"s_mov_b32 s{sLOG2E}, 0x3fb8aa3b")
        a(f"s_mov_b32 s{sLOG2E + 1}, 0x3fb8aa3b")
        a(f"s_mov_b32 s{sONES}, 0x3f803f80")
        a(f"s_mov_b32 s{sLO}, 0x3f80")
        a(f"s_mov_b32 s{sHI}, 0x3f800000")
        a(f"v_bfe_u32 v{vT}, v{vLANE}, 2, 1")
        a(f"v_cmp_eq_u32 vcc, v{vT}, v{vU}")
        a(f"v_and_b32 v{vT}, 1, v{vLANE}")
        a(f"v_lshlrev_b32 v{vT}, 4, v{vT}")
        a(f"v_mov_b32 v{vA0}, 0x3f80")
        a(f"v_lshlrev_b32 v{vA0}, v{vT}, v{vA0}")
        a(f"v_cndmask_b32 v{vA0}, 0, v{vA0}, vcc")
        a(f"v_bfe_u32 v{vT}, v{vLANE}, 1, 1")
        a(f"v_bfe_u32 v{vA1}, v{vLANE}, 3, 2")
        a(f"v_lshl_add_u32 v{vT}, v{vA1}, 1, v{vT}")
        for r in range(8):
            a(f"v_cmp_eq_u32 vcc, {r}, v{vT}")
            a(f"v_cndmask_b32 v{vA1}, 0, v{vA0}, vcc")
            a(f"v_accvgpr_write_b32 a{aI + r}, v{vA1}")

    def w1q_items(self):
        a = self.a
        a(f"v_lshrrev_b32 v{vT}, 2, v{vLANE}")
        a(f"v_mul_u32_u24 v{vT}, 3072, v{vT}")
        a(f"v_and_b32 v{vBG}, 3, v{vLANE}")
        a(f"v_lshl_add_u32 v{vBG}, v{vBG}, 4, v{vT}")
        a(f"s_mul_i32 s{sQ0}, s{sW}, {128 * 3072}")
        a(f"s_lshl_b32 s{sB}, s{sC}, 6")
        a(f"s_add_u32 s{sQ0}, s{sQ0}, s{sB}")
        a(f"s_lshl_b32 s{sQ1}, s{sW}, 13")
        return self.dma_items(8, S_WQ, vBG, sQ0, 16 * 3072, sQ1, ZQ, 140)

    def swz_voff(self, dst, stride, lo, hi):
        a = self.a
        a(f"v_lshrrev_b32 v{vT}, 3, v{vLANE}")
        a(f"v_mul_u32_u24 v{vT}, {stride}, v{vT}")
        a(f"v_and_b32 v{dst}, 3, v{vLANE}")
        a(f"v_lshl_add_u32 v{vT}, v{dst}, 4, v{vT}")
        a(f"v_lshrrev_b32 v{dst}, 2, v{vLANE}")
        a(f"v_lshrrev_b32 v{vU}, 4, v{vLANE}")
        a(f"v_xor_b32 v{dst}, v{dst}, v{vU}")
        a(f"v_and_b32 v{dst}, 1, v{dst}")
        a(f"v_mul_u32_u24 v{dst}, {hi - lo}, v{dst}")
        if lo:
            a(f"v_add_u32 v{vT}, {lo}, v{vT}")
        a(f"v_add_u32 v{dst}, v{dst}, v{vT}")

    def w2_items(self):
        a = self.a
        self.swz_voff(vROW, 1024, 0, 64)
        a(f"s_lshl_b32 s{sH3}, s{sW}, 14")
        a(f"s_lshl_b32 s{sA}, s{sW}, 17")
        a(f"s_lshl_b32 s{sB}, s{sCT}, 7")
        a(f"s_add_u32 s{sH2}, s{sA}, s{sB}")
        a(f"s_sub_u32 s{sA}, s{sH2}, 16384")
        a(f"s_and_b32 s{sR0}, s{sA}, 0x7ffff")
        late = self.dma_items(2, S_WO, vROW, sR0, 8192, sH3, ZW2, 72)
        return self.dma_items(14, S_WO, vROW, sH2, 8192, sH3, ZW2 + 2048, 60), late

    def w2_read(self, kbs):
        a = self.a
        a(f"s_lshl_b32 s{sA}, s{sKH}, 15")
        a(f"s_add_u32 s{sA}, s{sA}, {ZW2 + 2048}")
        a(f"s_mul_i32 s{sB}, s{sKH}, {-32768 & 0xffffffff}")
        a(f"s_add_u32 s{sB}, s{sB}, {ZW2 + 32768}")
        a(f"v_add_u32 v{vT}, s{sA}, v{vTR0}")
        a(f"v_add_u32 v{vU}, s{sA}, v{vTR1}")
        for kb in kbs:
            if kb == 15:
                a(f"v_add_u32 v{vT}, s{sB}, v{vTR0}")
                a(f"v_add_u32 v{vU}, s{sB}, v{vTR1}")
            o = kb * 2048 if kb < 15 else 0
            for nt in range(2):
                t = self.tr(X0 + (kb * 2 + nt) * 4, (vT, vU)[nt], (o, o + 512))
        return t

    def ring_init(self):
        a = self.a
        self.ring_next, self.ring_tag = 0, {}
        a(f"s_lshl_b32 s{sW3N}, s{sW}, 11")
        a(f"s_mul_i32 s{sW3}, s{sC}, {224 * 1024}")
        a(f"s_add_u32 s{sW3}, s{sW3}, s{sW3N}")
        a(f"s_add_u32 s{sW3}, s{sW3}, {WS_W3}")

    def ring_one(self):
        a = self.a
        s, h = divmod(self.ring_next, 2)
        a(f"s_add_u32 m0, s{sW3N}, {RING_AT[s % NSLOT] + 1024 * h}")
        a(f"s_add_u32 s{sBG}, s{sW3}, {s * 8192 + 1024 * h}")
        self.ring_tag[s] = self.dma(S_WS, vL16, f"s{sBG}", extra=" nt" if self.opt["nt"] & 1 and not self.opt["keep0"] <= s < self.opt["keep1"] else "")
        self.ring_next += 1

    def ring_items(self, stages, gap=72):
        return [(gap, self.ring_one) for _ in range(2 * stages)]

    def w4_init(self):
        a = self.a
        self.w4_next, self.w4_tag = 0, {}
        a(f"s_mul_i32 s{sW4}, s{sCT}, {224 * 1024}")
        a(f"s_mul_i32 s{sB}, s{sW}, {56 * 1024}")
        a(f"s_add_u32 s{sW4}, s{sW4}, s{sB}")
        a(f"s_add_u32 s{sW4}, s{sW4}, {WS_W4}")

    P4_ORDER = [7 * p + g for g in range(7) for p in range(4)]

    def w4_one(self):
        step, nt = divmod(self.w4_next, 2)
        kbl = self.P4_ORDER[step]
        if nt == 0:
            self.a(f"s_add_u32 s15, s{sW4}, {kbl * 2048}")
        self.w4_tag[step] = self.load(A(4 * (2 * kbl + nt), 4), S_WS, vL16, "s15", nt * 1024, sc1=False)
        self.w4_next += 1

    def publish(self):
        a = self.a
        skip = a.label("pub")
        a(f"s_cmp_lg_u32 s{sW}, 3")
        a(f"s_cbranch_scc1 {skip}")
        a(f"s_min_u32 s{sD}, s{sXCC}, 14")
        a(f"s_add_u32 s{sD}, s{sD}, 1")
        a(f"s_and_b32 s{sA}, s2, 3")
        a(f"s_lshl_b32 s{sA}, s{sA}, 3")
        a(f"s_lshl_b32 s{sA}, s{sD}, s{sA}")
        a(f"s_and_b32 s{sB}, s2, 0xfc")
        a(f"v_mov_b32 v{vT}, s{sA}")
        a(f"v_mov_b32 v{vU}, s{sB}")
        a("s_mov_b64 exec, 1")
        a.vmop(f"buffer_atomic_or v{vT}, v{vU}, {S(S_DBG)}, 0 offen sc1", counted=False)
        a("s_mov_b64 exec, -1")
        a(f"{skip}:")

    def prep_done(self):
        a = self.a
        skip = a.label("pd")
        a(f"s_cmp_lg_u32 s{sW}, 3")
        a(f"s_cbranch_scc1 {skip}")
        a(f"s_lshl_b32 s{sA}, s2, 2")
        a(f"s_add_u32 s{sA}, s{sA}, {WS_PREP}")
        a(f"v_mov_b32 v{vT}, 1")
        a(f"v_mov_b32 v{vU}, s{sA}")
        a("s_mov_b64 exec, 1")
        self.store(V(vT), S_WS, vU, 0, sc1=True, width="dword", counted=False)
        a("s_mov_b64 exec, -1")
        a(f"{skip}:")

    def prep_wait(self, dst, first):
        a = self.a
        lp, done = a.label("pw"), a.label("pwok")

        def test():
            a(f"v_min_u32 v{dst}, v{dst}, v{dst + 1}")
            a(f"v_min3_u32 v{dst}, v{dst}, v{dst + 2}, v{dst + 3}")
            a(f"v_cmp_eq_u32 vcc, 0, v{dst}")
        a.wait(vm=first)
        test()
        a(f"s_cbranch_vccz {done}")
        a(f"{lp}:")
        self.prep_poll(dst, counted=False)
        a("s_waitcnt vmcnt(0)")
        test()
        self.spin(lp, done)

    def prep_poll(self, dst, counted=True):
        self.a(f"s_mov_b32 s{sBG}, {WS_PREP}")
        return self.load(V(dst, 4), S_WS, vL16, f"s{sBG}", counted=counted)

    def table_check(self, first, tab, addr):
        a = self.a

        def test():
            a(f"v_add_u32 v{vU}, 0x7f7f7f7f, v{tab}")
            a(f"v_and_b32 v{vU}, 0x80808080, v{vU}")
            a(f"v_cmp_ne_u32 vcc, 0x80808080, v{vU}")
        self.poll(addr, test, first=first, srd=S_DBG, dst=tab, sleep=8)
        a(f"v_mov_b32 v{vU}, 0")
        for b in range(4):
            a(f"v_bfe_u32 v{vT}, v{tab}, {8 * b}, 4")
            a(f"v_lshlrev_b32 v{vT}, v{vT}, 1")
            a(f"v_or_b32 v{vU}, v{vU}, v{vT}")
        a(f"v_or_b32_dpp v{vU}, v{vU}, v{vU} quad_perm:[1,0,3,2] row_mask:0xf bank_mask:0xf")
        a(f"v_cmp_ne_u32 vcc, 0x1fe, v{vU}")
        a("s_branch L_slow" if self.force_slow else "s_cbranch_vccnz L_slow")

    def prep_items(self):
        a = self.a
        va, vb = vA0, vA1
        a(f"v_lshrrev_b32 v{vT}, 3, v{vLANE}")
        a(f"v_and_b32 v{vU}, 7, v{vLANE}")
        a(f"v_lshlrev_b32 v{vU}, 4, v{vU}")
        a(f"v_lshl_add_u32 v{vb}, v{vT}, 10, v{vU}")
        a(f"v_mul_u32_u24 v{vT}, 3584, v{vT}")
        a(f"v_add_u32 v{va}, v{vT}, v{vU}")
        a(f"s_min_u32 s{sF}, s2, 223")
        a(f"s_and_b32 s{sA}, s{sF}, 7")
        a(f"s_lshl_b32 s{sA}, s{sA}, 2")
        a(f"s_add_u32 s{sA}, s{sA}, s{sW}")
        a(f"s_mul_i32 s{sA}, s{sA}, {16 * 3584}")
        a(f"s_lshr_b32 s{sB}, s{sF}, 3")
        a(f"s_lshl_b32 s{sB}, s{sB}, 7")
        a(f"s_add_u32 s{sW3}, s{sA}, s{sB}")
        a(f"s_lshl_b32 s{sW3N}, s{sW}, 11")
        a(f"s_lshl_b32 s{sA}, s{sF}, 2")
        a(f"s_add_u32 s{sA}, s{sA}, s{sW}")
        a(f"s_and_b32 s{sB}, s{sA}, 7")
        a(f"s_lshl_b32 s{sB}, s{sB}, 7")
        a(f"s_lshr_b32 s{sA}, s{sA}, 3")
        a(f"s_lshl_b32 s{sA}, s{sA}, 14")
        a(f"s_add_u32 s{sW4}, s{sA}, s{sB}")
        g = self.opt["gp"]
        return [self.dma_items(2, S_WG, va, sW3, 8 * 3584, sW3N, PREP_G, g),
                self.dma_items(2, S_WU, va, sW3, 8 * 3584, sW3N, PREP_U, g),
                self.dma_items(2, S_WD, vb, sW4, 8192, sW3N, PREP_D, g)]

    def prep_setup(self):
        a = self.a
        a(f"s_lshr_b32 s{sA}, s2, 3")
        a(f"s_lshl_b32 s{sA}, s{sA}, 2")
        a(f"s_add_u32 s{sA}, s{sA}, s{sW}")
        a(f"s_mul_i32 s{sB}, s{sA}, 9363")
        a(f"s_lshr_b32 s{sB}, s{sB}, 16")
        a(f"s_mul_i32 s{sD}, s{sB}, 7")
        a(f"s_sub_u32 s{sD}, s{sA}, s{sD}")
        a(f"s_mul_i32 s{sB}, s{sB}, {224 * 1024}")
        a(f"s_add_u32 s{sB}, s{sB}, {WS_W3}")
        a(f"s_and_b32 s{sF}, s2, 7")
        n = self.opt["g0"]
        a(f"s_mov_b32 s11, {n * 1024}")
        a(f"s_cmp_ge_u32 s{sD}, {n}")
        a(f"s_cselect_b32 s11, {(6 - n) * 1024}, s11")
        a(f"s_cselect_b32 s{sG}, {31 * n * 1024}, 0")
        a(f"s_cmp_ge_u32 s{sD}, 6")
        a("s_cselect_b32 s11, 1024, s11")
        a(f"s_cselect_b32 s{sG}, {186 * 1024}, s{sG}")
        a(f"s_lshl_b32 s{sD}, s{sD}, 10")
        a(f"s_add_u32 s{sB}, s{sB}, s{sD}")
        a(f"s_add_u32 s{sB}, s{sB}, s{sG}")
        a(f"s_mul_i32 s{sD}, s{sF}, s11")
        a(f"s_lshl_b32 s{sD}, s{sD}, 2")
        a(f"s_add_u32 s10, s{sB}, s{sD}")
        a(f"s_mul_i32 s{sF}, s{sF}, 112")
        a(f"s_add_u32 s{sF}, s{sF}, s{sA}")
        a(f"s_lshl_b32 s{sF}, s{sF}, 7")
        a(f"s_add_u32 s12, s{sF}, {WS_CS3}")
        a(f"s_lshl_b32 s{sA}, s2, 2")
        a(f"s_add_u32 s{sA}, s{sA}, s{sW}")
        a(f"s_and_b32 s{sD}, s{sA}, 7")
        a(f"s_mul_i32 s{sD}, s{sD}, {224 * 1024}")
        a(f"s_lshr_b32 s{sA}, s{sA}, 3")
        a(f"s_lshl_b32 s{sA}, s{sA}, 11")
        a(f"s_add_u32 s{sA}, s{sA}, s{sD}")
        a(f"s_add_u32 s13, s{sA}, {WS_W4}")

    def prep_write(self, tmp):
        a = self.a
        va, vb, vc = vA0, vA1, vU
        on, a.on = a.on, False
        skip = a.label("noprepw")
        a("s_cmp_ge_u32 s2, 224")
        a(f"s_cbranch_scc1 {skip}")
        a(f"v_and_b32 v{va}, 0xffffffbf, v{vTR0}")
        a(f"s_lshl_b32 s{sA}, s{sW}, 11")
        a(f"s_add_u32 s{sA}, s{sA}, {PREP_D}")
        a(f"v_add_u32 v{vb}, s{sA}, v{va}")
        a(f"v_and_b32 v{vT}, 32, v{va}")
        a(f"v_and_b32 v{va}, 0xffffffdf, v{va}")
        a(f"v_lshl_add_u32 v{va}, v{vT}, 8, v{va}")
        a(f"s_lshl_b32 s{sA}, s{sW}, 5")
        a(f"s_add_u32 s{sA}, s{sA}, {PREP_G}")
        a(f"v_add_u32 v{va}, s{sA}, v{va}")
        for j in range(4):
            a(f"ds_read_b64_tr_b16 {V(tmp + 4 * j, 2)}, v{va} offset:{j * 2048}")
            a(f"ds_read_b64_tr_b16 {V(tmp + 4 * j + 2, 2)}, v{va} offset:{j * 2048 + 512}")
        for j in range(2):
            a(f"ds_read_b64_tr_b16 {V(tmp + 16 + 4 * j, 2)}, v{vb} offset:{j * 64}")
            a(f"ds_read_b64_tr_b16 {V(tmp + 18 + 4 * j, 2)}, v{vb} offset:{j * 64 + 512}")
        acc = tmp + 24
        self.natural_col(vc)
        a(f"v_mov_b32 v{acc}, 0")
        a(f"v_mov_b32 v{acc + 1}, 0")
        a("s_waitcnt lgkmcnt(0)")
        a("s_barrier")
        for j in range(4):
            self.store(V(tmp + 4 * j, 4), S_WS, vL16, "s10", sc1=True, counted=False)
            if j < 3:
                a("s_add_u32 s10, s10, s11")
            for i in range(4):
                a(f"v_dot2c_f32_bf16 v{acc + (i & 1)}, s{sONES}, v{tmp + 4 * j + i}")
        for j in range(2):
            self.store(V(tmp + 16 + 4 * j, 4), S_WS, vL16, "s13", 1024 * j, sc1=True, counted=False)
        self.fold_halves(acc)
        self.store(V(acc), S_WS, vc, "s12", sc1=True, width="dword", counted=False)
        done = a.label("prepd")
        a(f"s_branch {done}")
        a(f"{skip}:")
        a("s_barrier")
        a(f"{done}:")
        a.on = on

    def p1_start_l0(self):
        a = self.a
        first = not self.slow
        self.slot_scalars()
        xa, wv = WK, WK + 10
        a(f"v_lshrrev_b32 v{vT}, 3, v{vLANE}")
        a(f"v_lshrrev_b32 v{vU}, 4, v{vLANE}")
        a(f"v_xor_b32 v{vU}, v{vU}, v{vLANE}")
        a(f"v_and_b32 v{vU}, 7, v{vU}")
        a(f"v_lshlrev_b32 v{vU}, 4, v{vU}")
        a(f"v_lshl_add_u32 v{xa}, v{vT}, 10, v{vU}")
        a(f"v_xor_b32 v{xa + 1}, 64, v{xa}")
        a(f"s_lshl_b32 s{sH0}, s{sTT}, 15")
        a(f"s_lshl_b32 s{sH1}, s{sW}, 14")
        a(f"s_add_u32 s{sH1}, s{sH1}, {XS}")
        self.swz_voff(wv, 3072, 1024, 2048)
        a(f"s_mul_i32 s{sR0}, s{sW}, {32 * 3072}")
        a(f"s_lshl_b32 s{sB}, s{sC}, 6")
        a(f"s_add_u32 s{sR0}, s{sR0}, s{sB}")
        a(f"s_lshl_b32 s{sR1}, s{sW}, 12")
        tg, done_items = {}, [0] * 4

        def range_items(r):
            def xi(s, i):
                def f():
                    a(f"s_add_u32 m0, s{sH1}, {(s % 4) * 4096 + i * 1024}")
                    a(f"s_add_u32 s{sBG}, s{sH0}, {i * 8192 + s * 128}")
                    tg["x", s] = self.dma(S_AX, xa + (i & 1), f"s{sBG}")
                    done_items[r] += 1
                return self.opt["gx"], f

            def wi(i):
                def f():
                    a(f"s_add_u32 m0, s{sR1}, {r * 16384 + i * 1024}")
                    a(f"s_add_u32 s{sBG}, s{sR0}, {(128 * r + 8 * i) * 3072}")
                    tg["w", r] = self.dma(S_WQ, wv, f"s{sBG}")
                    done_items[r] += 1
                return self.opt["gw"], f
            return [xi(2 * r, i) for i in range(4)] + [xi(2 * r + 1, i) for i in range(4)] + [wi(i) for i in range(4)]
        a(f"s_mov_b32 m0, {PHI_IMG}")
        a(f"s_lshl_b32 s{sA}, s{sC}, 10")
        self.dma(S_PHI, vL16, f"s{sA}")
        tch = self.touch_items if first else (lambda r: [])
        r0, r1 = range_items(0), range_items(1)
        if self.opt["t_first"] == 1:
            a.bg = r0[:8] + tch(1) + r0[8:] + tch(2) + r1[:8] + tch(3) + r1[8:]
        else:
            a.bg = r0 + tch(2) + r1 + tch(3)
        a.pop(6)
        if first:
            self.clear_flags()
        late = self.late_touch_items(vBG, vROW, vP) if first and self.opt["late"] else []
        a.on = True
        self.lane_consts()
        if first and self.opt["pg"]:
            sh = self.opt["pg"]
            a(f"v_lshlrev_b32 v{WK + 75}, {sh}, v{vLANE}")
            a(f"v_min_u32 v{WK + 75}, {WS_SIZE - 128}, v{WK + 75}")
            late = [(100, lambda: a.vmop(f"buffer_load_dword v{vP}, v{WK + 75}, {S(S_WS)}, 0 offen"))] + late
        prep = self.prep_items() if first else [[], [], []]
        self.phi_address(WK + 78, WK + 79)
        ra = WK + 2
        a(f"v_and_b32 v{vT}, 31, v{vLANE}")
        a(f"v_bfe_u32 v{vU}, v{vLANE}, 1, 3")
        a(f"v_lshrrev_b32 v{vP}, 5, v{vLANE}")
        a(f"v_xor_b32 v{vU}, v{vU}, v{vP}")
        a(f"v_lshlrev_b32 v{vU}, 4, v{vU}")
        a(f"v_lshl_add_u32 v{vU}, v{vT}, 7, v{vU}")
        for j in range(4):
            a(f"v_xor_b32 v{ra + j}, {32 * j}, v{vU}")
            a(f"v_add_u32 v{ra + j}, s{sH1}, v{ra + j}")
        ss, sq, ck, cv, ca = WK + 6, WK + 8, WK + 12, WK + 14, WK + 76
        for r in (ss, ss + 1, sq, sq + 1, ck, ck + 1, cv, cv + 1):
            a(f"v_mov_b32 v{r}, 0")
        a(f"v_add_u32 v{ca}, s{sR1}, v{vTR0}")
        a(f"v_add_u32 v{ca + 1}, s{sR1}, v{vTR1}")
        if first:
            self.prep_setup()
        a.pop(len(a.bg) - self.opt["keep"])
        self.stamp("issued")
        accK, accV, ring, tmp = WK + 16, WK + 32, WK + 48, WK + 80
        def xread(r):
            while done_items[r] < 8:
                a.pop()
            a.wait(vm=tg["x", 2 * r + 1])
            return [f"ds_read_b128 {V(X0 + (4 * s + j) * 4, 4)}, v{ra + j} offset:{(s % 4) * 4096}"
                    for s in (2 * r, 2 * r + 1) for j in range(4)]
        for l in xread(0):
            a.ds(l)
        for r in range(4):
            while done_items[r] < 12:
                a.pop()
            a.wait(vm=tg["w", r])
            for j in range(2):
                self.tr(tmp + 8 * j, ca, (r * 16384 + j * 2048, r * 16384 + j * 2048 + 512))
                t = self.tr(tmp + 8 * j + 4, ca + 1, (r * 16384 + j * 2048, r * 16384 + j * 2048 + 512))
            a("s_barrier")
            a.wait(lg=t - 8)
            if r < 2:
                a.bg += range_items(r + 2)
            if r == 1:
                a.bg += late + sum(prep, [])
            pre = self.gemm_kv_head(8 * r, ring)
            for x in range(X0 + 32 * r, X0 + 32 * r + 32):
                a(f"v_dot2c_f32_bf16 v{ss + (x & 1)}, s{sONES}, v{x}")
                a(f"v_dot2c_f32_bf16 v{sq + (x & 1)}, v{x}, v{x}")
            a.wait(lg=t)
            for j in range(16):
                a(f"v_dot2c_f32_bf16 v{(cv if j & 4 else ck) + (j & 1)}, s{sONES}, v{tmp + j}")
            self.stamp(f"range{r}")
            extra = None
            if r == 0:
                for h in range(2):
                    t = self.tr(tmp + 16 + 4 * h, WK + 78, (512 * h, 512 * h + 128))
                extra = (3, a.capture(lambda: self.phi_operands(tmp + 16, WK + 79)))
            if r == 3:
                if first:
                    a.on = False
                    self.publish()
                    a.on = True

                def tail():
                    a(f"v_add_f32 v{ss}, v{ss}, v{ss + 1}")
                    a(f"v_add_f32 v{sq}, v{sq}, v{sq + 1}")
                    self.finish_stats(ss, sq)
                    self.colsum_write(CSP, (ck, cv), store=False)
                    self.e1_scalars(0)
                extra = (24, a.capture(tail))
            self.gemm_kv(range(8 * r, 8 * r + 8), None, accK, accV, ring, pre=pre, extra=extra,
                         hook=(8 * r + 5, (lambda r=r: xread(r + 1))) if r < 3 else None)
        a.on = False
        while len(a.bg) > sum(map(len, prep)):
            a.pop()
        self.colsum_store((ck, cv))
        w1q = self.w1q_items()
        a.drain(vm=False)
        a("s_barrier")
        self.colsum_final(CSP, 2, CS1, tmp)
        a.bg += w1q
        self.stamp("kvgemm")
        return accK, accV

    def phi_address(self, addr, sign):
        a = self.a
        a(f"v_bfe_u32 v{vT}, v{vLANE}, 2, 2")
        a(f"v_lshrrev_b32 v{vU}, 5, v{vLANE}")
        a(f"v_lshl_add_u32 v{vT}, v{vU}, 3, v{vT}")
        a(f"v_and_b32 v{vU}, 3, v{vLANE}")
        a(f"v_lshlrev_b32 v{vU}, 3, v{vU}")
        a(f"v_lshl_add_u32 v{vT}, v{vT}, 5, v{vU}")
        a(f"v_add_u32 v{addr}, {PHI_IMG}, v{vT}")
        a(f"v_bfe_u32 v{vU}, v{vLANE}, 4, 1")
        a(f"v_mul_u32_u24 v{vU}, 0x8000, v{vU}")
        a(f"v_lshl_or_b32 v{sign}, v{vU}, 16, v{vU}")

    def phi_operands(self, src, sign):
        a = self.a
        for r in range(8):
            a(f"v_xor_b32 v{src + r}, v{sign}, v{src + r}")
            a(f"v_accvgpr_write_b32 a{aPHI + r}, v{src + r}")

    def p1_start_l1(self):
        a = self.a
        xt = {}
        later = self.stats_items(WS_ST, WK + 80, xt, vA0, 60) + self.w1q_items()
        self.rows_poll_addr()
        self.poll(vU, 5)
        self.stamp("S5")
        xi = self.x_items(WS_A, xt, 60)
        a.bg = xi[:20] + later[:4] + xi[20:] + later[4:]
        a.pop(self.opt["lead"])
        a.on = True
        self.gemm_kv(range(32), xt, WK + 16, WK + 32, WK + 48,
                     extra=(22, a.capture(lambda: (self.sum_stats(WK + 80, packed=False), self.e1_scalars(1)))))
        self.stamp("kvgemm")
        return WK + 16, WK + 32

    def rows_poll_addr(self):
        a = self.a
        a(f"s_lshl_b32 s{sA}, s{sCL}, 8")
        a(f"s_lshl_b32 s{sB}, s{sTH}, 6")
        a(f"s_add_u32 s{sA}, s{sA}, s{sB}")
        a(f"s_lshl_b32 s{sB}, s{sKH}, 5")
        a(f"s_add_u32 s{sA}, s{sA}, s{sB}")
        if self.slow:
            a(f"s_add_u32 s{sA}, s{sA}, {WS_ALT}")
        a(f"v_and_b32 v{vT}, 7, v{vLANE}")
        a(f"v_bfe_u32 v{vU}, v{vLANE}, 3, 1")
        a(f"v_lshlrev_b32 v{vU}, 7, v{vU}")
        a(f"v_lshl_add_u32 v{vU}, v{vT}, 2, v{vU}")
        a(f"v_add_u32 v{vU}, s{sA}, v{vU}")

    def x_items(self, base, tags, gap):
        a = self.a
        a(f"s_lshl_b32 s{sH0}, s{sTT}, 15")
        a(f"s_add_u32 s{sH0}, s{sH0}, {base}")

        def item(kb):
            def f():
                if kb and kb % 4 == 0:
                    a(f"s_add_u32 s{sH0}, s{sH0}, 4096")
                tags[kb] = self.load(V(X0 + 4 * kb, 4), S_WS, vL16, f"s{sH0}", (kb % 4) * 1024)
            return gap, f
        return [item(kb) for kb in range(32)]

    def kv_read(self, kb, ring):
        r = ring + (kb % 3) * 8
        self.tr(r, vTR0, (kb * 2048, kb * 2048 + 512))
        return self.tr(r + 4, vTR1, (kb * 2048, kb * 2048 + 512))

    def gemm_kv_head(self, kb, ring):
        return {kb: self.kv_read(kb, ring), kb + 1: self.kv_read(kb + 1, ring)}

    def gemm_kv(self, kbs, xt, accK, accV, ring, extra=None, pre=None, hook=None):
        a = self.a
        tg = pre or self.gemm_kv_head(kbs[0], ring)
        more = []
        for kb in kbs:
            if kb + 2 <= kbs[-1]:
                tg[kb + 2] = self.kv_read(kb + 2, ring)
            a.wait(vm=xt[kb] if xt is not None else None, lg=tg[kb])
            r = ring + (kb % 3) * 8
            x = V(X0 + 4 * kb, 4)
            for acc, w in ((accK, r), (accV, r + 4)):
                self.mfma(V(acc, 16), V(w, 4), x, "0" if kb == 0 else None)
                if hook and kb == hook[0] and acc == accV:
                    more = hook[1]()
                for _ in range(3):
                    if extra and kb >= extra[0] and extra[1]:
                        Asm.__call__(a, extra[1].pop(0))
                    if more and kb > hook[0] and _ < 2:
                        a.ds(more.pop(0))
        assert not (extra and extra[1]) and not more

    def e1_scalars(self, layer):
        a = self.a
        kvp = (WS_KVP_ALT if self.slow else WS_KVP) + layer * 256 * KVP_SZ
        a(f"s_lshl_b32 s{sA}, s{sC}, 4")
        a(f"s_add_u32 s{sA}, s{sA}, s{sCL}")
        a(f"s_mul_i32 s{sA}, s{sA}, {KVP_SZ}")
        a(f"s_add_u32 s{sKV}, s{sA}, {kvp}")
        a(f"s_lshl_b32 s{sB}, s{sW}, 9")
        a(f"s_add_u32 s{sKVW}, s{sB}, s{sKV}")
        a(f"s_lshl_b32 s{sA}, s{sC}, 8")
        a(f"s_lshl_b32 s{sB}, s{sW}, 6")
        a(f"s_add_u32 s{sA}, s{sA}, s{sB}")
        a(f"s_add_u32 s23, s{sA}, {WS_S1F + layer * 4096 + (WS_ALT if self.slow else 0)}")
        a(f"s_lshl_b32 s{sB}, s{sCL}, 2")
        a(f"s_add_u32 s{sKVF}, s23, s{sB}")
        a(f"s_lshl_b32 s24, s{sW}, 8")
        a(f"s_add_u32 s24, s24, {ZS + 12288}")
        a(f"s_mul_i32 s25, s{sW}, 3072")
        a(f"s_add_u32 s25, s25, {ZS}")

    def e1_kv(self, layer, accK, accV):
        a = self.a
        a.on = bool(self.opt["e1bg"]) or layer == 0
        cs, Kb, Vb, PB, VB, tmp = WK + 48, WK + 80, WK + 88, WK + 96, WK, WK + 48
        tk = self.read_cs(0, cs)
        tv = self.read_cs(1, cs + 16)
        a.wait(lg=tk)
        self.normalize(accK, cs)
        a.wait(lg=tv)
        self.normalize(accV, cs + 16)
        PA, VA = accK, accV
        fine = self.opt["fine"] == 1 and layer == 1
        if fine:
            self.stamp("e:norm")
        self.cvt16(accK, Kb)
        self.mfma(V(PA, 16), A(aPHI, 4), V(Kb, 4), "0")
        self.mfma(V(PB, 16), A(aPHI + 4, 4), V(Kb + 4, 4), "0")
        self.cvt16(accV, Vb)
        self.mfma(V(VA, 16), V(Vb, 4), A(aI, 4), "0")
        self.mfma(V(VB, 16), V(Vb + 4, 4), A(aI + 4, 4), "0")
        phA, phB = tmp + 12, tmp + 20
        self.softmax4(PA, PB, tmp, phA, phB)
        if fine:
            self.stamp("e:soft")
        VAb, VBb, TA, TB, KV = Kb, Vb, PA, PB, VA
        for T, ph in ((TA, phA), (TB, phB)):
            self.mfma(V(T, 16), V(ph, 4), A(aI, 4), "0")
            self.mfma(V(T, 16), V(ph + 4, 4), A(aI + 4, 4))
        self.cvt16(VA, VAb)
        self.cvt16(VB, VBb)
        self.cvt16(TA, phA)
        self.mfma(V(KV, 16), V(phA, 4), V(VAb, 4), "0")
        self.mfma(V(KV, 16), V(phA + 4, 4), V(VAb + 4, 4))
        self.cvt16(TB, phB)
        self.mfma(V(KV, 16), V(phB, 4), V(VBb, 4))
        self.mfma(V(KV, 16), V(phB + 4, 4), V(VBb + 4, 4))
        for w in (8, 4, 2, 1):
            for T in (TA, TB):
                for i in range(w):
                    a(f"v_add_f32 v{T + i}, v{T + i}, v{T + w + i}")
        if fine:
            self.stamp("e:kv")
        held = []
        if self.opt["e1bg"]:
            a.flush()
        else:
            held, a.bg = a.bg, []
        a.on = False
        if fine:
            self.stamp("e:flush")
        a(f"v_lshl_add_u32 v{vU}, v{vLANE}, 2, s24")
        a(f"v_lshlrev_b32 v{vT}, 2, v{vLANE}")
        a(f"v_permlane32_swap_b32 v{TA}, v{TB}")
        a(f"v_add_u32 v{vA0}, {ZS + 12288}, v{vT}")
        a(f"v_add_u32 v{vA1}, s25, v{vL16}")
        a(f"v_add_f32 v{TA}, v{TA}, v{TB}")
        a.ds(f"ds_write_b32 v{vU}, v{TA}")
        own = tmp
        self.scatter(KV, 4, own, ZS, 1024)
        a(f"v_lshlrev_b32 v{vU}, 3, v{vLANE}")
        a.drain(vm=False)
        a("s_barrier")
        if fine:
            self.stamp("e:bar")
        for j in range(3):
            t = a.ds(f"ds_read_b128 {V(own + 4 + 4 * j, 4)}, v{vA1} offset:{1024 * j}")
        for j in range(4):
            tz = a.ds(f"ds_read_b32 v{own + 16 + j}, v{vA0} offset:{256 * j}")
        a.wait(lg=t)
        for i in (0, 2):
            a(f"v_pk_add_f32 {V(own + i, 2)}, {V(own + i, 2)}, {V(own + 4 + i, 2)}")
            a(f"v_pk_add_f32 {V(own + 8 + i, 2)}, {V(own + 8 + i, 2)}, {V(own + 12 + i, 2)}")
        for i in (0, 2):
            a(f"v_pk_add_f32 {V(own + i, 2)}, {V(own + i, 2)}, {V(own + 8 + i, 2)}")
        a(f"v_cvt_pk_bf16_f32 v{own}, v{own}, v{own + 1}")
        a(f"v_cvt_pk_bf16_f32 v{own + 1}, v{own + 2}, v{own + 3}")
        self.store(V(own, 2), S_WS, vU, f"s{sKVW}", sc1=True, width="dwordx2")
        a.wait(lg=tz)
        skip = a.label("noz")
        a(f"s_cmp_lg_u32 s{sW}, 0")
        a(f"s_cbranch_scc1 {skip}")
        a(f"v_pk_add_f32 {V(own + 16, 2)}, {V(own + 16, 2)}, {V(own + 18, 2)}")
        a(f"v_add_f32 v{own + 16}, v{own + 16}, v{own + 17}")
        self.store(V(own + 16), S_WS, vT, f"s{sKV}", 2048, sc1=True, width="dword", counted=False)
        a(f"{skip}:")
        self.stamp("e1")
        for _, f in held:
            f()
        w2 = self.w2_items()
        self.signal(1, sreg=sKVF, sc1=True)
        self.stamp("kvdrain")
        return w2

    def scatter(self, src, n, own, base, piece):
        a = self.a
        lab, done = [a.label("sc") for _ in range(4)], a.label("scd")
        a(f"v_add_u32 v{vU}, {base}, v{vL16}")
        a(f"s_cmp_ge_u32 s{sW}, 2")
        a(f"s_cbranch_scc1 {lab[2]}")
        for w in range(4):
            a(f"{lab[w]}:")
            if w % 2 == 0:
                a(f"s_cmp_eq_u32 s{sW}, {w + 1}")
                a(f"s_cbranch_scc1 {lab[w + 1]}")
            for q in range(4):
                if q != w:
                    for j in range(n // 4):
                        a(f"ds_write_b128 v{vU}, {V(src + n * q + 4 * j, 4)} "
                          f"offset:{(3 * q + ((w - q - 1) & 3)) * piece + 1024 * j}")
            for i in range(0, n, 2):
                a(f"v_pk_add_f32 {V(own + i, 2)}, {V(src + n * w + i, 2)}, 0")
            if w < 3:
                a(f"s_branch {done}")
        a(f"{done}:")

    def s1_window(self, layer, w2):
        a = self.a
        acc, ring = WK, WK + 16
        check = layer == 0 and not self.slow
        a.bg, w2_late = w2
        a("s_barrier")
        if check:
            self.prep_write(WK + 16)
            a(f"v_lshlrev_b32 v{WK + 108}, 2, v{vLANE}")
            t_tab = self.poll_issue(WK + 108, S_DBG, WK + 109)
        a.pop(2)
        a.on = True
        if layer == 0:
            cq, tmp = WK + 96, WK + 64
            a(f"s_lshl_b32 s{sA}, s{sW}, 13")
            a(f"v_add_u32 v{vA0}, s{sA}, v{vTRQ}")
            a(f"v_mov_b32 v{cq}, 0")
            a(f"v_mov_b32 v{cq + 1}, 0")
            for j in range(8):
                t = self.tr(tmp + 4 * j, vA0, (j * 1024, j * 1024 + 256))
            a.wait(lg=t)
            for j in range(32):
                a(f"v_dot2c_f32_bf16 v{cq + (j & 1)}, s{sONES}, v{tmp + j}")
            self.colsum_write(CSPQ, (cq,))
        kvr, zr, ks = WK + 76, X0, WK + 44
        kvp = (WS_KVP_ALT if self.slow else WS_KVP) + layer * 256 * KVP_SZ

        def addresses():
            a(f"v_and_b32 v{vU}, 15, v{vLANE}")
            a(f"v_lshl_add_u32 v{vBG}, v{vU}, 2, s23")
            a(f"v_lshrrev_b32 v{vT}, 4, v{vLANE}")
            a(f"v_mul_u32_u24 v{vT}, {KVP_SZ}, v{vT}")
            a(f"v_lshl_add_u32 v{vA1}, v{vU}, 4, v{vT}")
            a(f"v_lshrrev_b32 v{vT}, 5, v{vLANE}")
            a(f"v_mul_u32_u24 v{vT}, {KVP_SZ}, v{vT}")
            a(f"v_and_b32 v{vA0}, 31, v{vLANE}")
            a(f"v_lshl_add_u32 v{vA0}, v{vA0}, 4, v{vT}")
            a(f"s_mul_i32 s{sD}, s{sC}, {16 * KVP_SZ}")
            a(f"s_add_u32 s{sD}, s{sD}, {kvp}")
            a(f"s_lshl_b32 s{sE}, s{sW}, 9")
            a(f"s_add_u32 s{sE}, s{sE}, s{sD}")
            self.ring_init()
            if layer == 0:
                self.w4_init()
            for i in range(8):
                a(f"v_mov_b32 v{ks + i}, 0")
            a(f"v_lshlrev_b32 v{vU}, 1, v{vLANE}")
            a(f"v_lshrrev_b32 v{vT}, 5, v{vLANE}")
            a(f"v_and_or_b32 v{vU}, v{vU}, 62, v{vT}")
            a(f"v_bfe_u32 v{vT}, v{vU}, 4, 1")
            a(f"v_lshlrev_b32 v{vT}, 11, v{vT}")
            a(f"v_and_b32 v{vU}, 47, v{vU}")
            a(f"v_lshl_add_u32 v{vT}, v{vU}, 4, v{vT}")
            a(f"s_lshl_b32 s{sA}, s{sKH}, 10")
            a(f"s_lshl_b32 s{sB}, s{sTH}, 3")
            a(f"s_add_u32 s{sA}, s{sA}, s{sB}")
            a(f"s_add_u32 s{sA}, s{sA}, {ZAIMG}")
            a(f"v_add_u32 v{WK + 52}, s{sA}, v{vT}")
            a(f"v_and_b32 v{vT}, 31, v{vLANE}")
            a(f"v_min_u32 v{vT}, 16, v{vT}")
            a(f"v_and_b32 v{vU}, 32, v{vLANE}")
            a(f"v_add_u32 v{vT}, v{vT}, v{vU}")
            a(f"v_lshlrev_b32 v{vT}, 4, v{vT}")
            a(f"v_add_u32 v{WK + 53}, {ZAIMG}, v{vT}")
            a(f"s_lshl_b32 s{sA}, s{sTT}, 15")
            a(f"s_lshl_b32 s{sB}, s{sC}, 11")
            a(f"s_add_u32 s{sA}, s{sA}, s{sB}")
            a(f"s_add_u32 s{sG}, s{sA}, {WS_OBUF[layer]}")
            a(f"v_bfe_u32 v{vT}, v{vLANE}, 2, 2")
            a(f"v_lshlrev_b32 v{vT}, 10, v{vT}")
            a(f"v_and_b32 v{vU}, 1, v{vLANE}")
            a(f"v_lshl_add_u32 v{vT}, v{vU}, 9, v{vT}")
            a(f"v_bfe_u32 v{vU}, v{vLANE}, 1, 1")
            a(f"v_lshl_add_u32 v{vT}, v{vU}, 3, v{vT}")
            a(f"v_add_u32 v{WK + 54}, {ZAIMG + 256}, v{vT}")
        extra = a.capture(addresses)
        tg, tp, kt, wt = {}, {}, {}, {}
        a.bg.append((60, lambda: tp.setdefault(0, self.poll_issue(vBG))))

        def rd(kb):
            tg[kb] = self.tr(ring + (kb % 4) * 4, vTRQ, (kb * 1024, kb * 1024 + 256))
        for kb in range(3):
            rd(kb)
        for kb in range(32):
            if kb + 3 < 32:
                rd(kb + 3)
            a.wait(lg=tg[kb])
            self.mfma(V(acc, 16), V(ring + (kb % 4) * 4, 4), V(X0 + 4 * kb, 4), "0" if kb == 0 else None)
            for _ in range(3):
                if extra:
                    assert 0 not in tp or len(extra) < 40
                    Asm.__call__(a, extra.pop(0))
        a.flush()
        a.on = False
        if check:
            self.table_check(t_tab, WK + 109, WK + 108)
        a.drain(vm=False)
        a("s_barrier")
        self.stamp("qgemm")
        if layer == 0:
            self.prep_done()
            self.colsum_final(CSPQ, 1, CS1 + 256, WK + 64)
        cs, Qb, PB, tmp = WK + 16, WK + 32, WK + 56, WK + 32
        t = self.read_cs(2, cs)
        a.wait(lg=t)
        self.normalize(acc, cs)
        self.cvt16(acc, Qb)
        self.mfma(V(acc, 16), A(aPHI, 4), V(Qb, 4), "0")
        self.mfma(V(PB, 16), A(aPHI + 4, 4), V(Qb + 4, 4), "0")
        self.phq = WK + 16
        self.poll(vBG, 1, first=tp[0], sleep=self.opt["kvsleep"])
        self.stamp("S1")
        skip = a.label("zld")
        a(f"s_cmp_lg_u32 s{sW}, 0")
        a(f"s_cbranch_scc1 {skip}")
        for i in range(4):
            self.load(V(zr + 4 * i, 4), S_WS, vA1, f"s{sD}", 2048, counted=False)
            if i < 3:
                a(f"s_add_u32 s{sD}, s{sD}, {4 * KVP_SZ}")
        a(f"{skip}:")

        def kv_item(p):
            def f():
                if p:
                    a(f"s_add_u32 s{sE}, s{sE}, {2 * KVP_SZ}")
                kt[p] = self.load(V(kvr + 4 * p, 4), S_WS, vA0, f"s{sE}")
            return 40, f
        a.bg = [kv_item(p) for p in range(8)] + w2_late + [(0, lambda: wt.setdefault(0, a.vm))] + \
            self.ring_items(self.opt["pre_a"] if layer else 0)
        a.pop(4)
        a.on = True
        self.softmax4(acc, PB, tmp, self.phq, self.phq + 8)
        a.flush()
        a.on = False
        self.stamp("qdone")
        skip = a.label("zsum")
        a(f"s_cmp_lg_u32 s{sW}, 0")
        a(f"s_cbranch_scc1 {skip}")
        a(f"s_waitcnt vmcnt({a.vm - kt[0] + 1})")
        for i in (0, 2):
            a(f"v_pk_add_f32 {V(zr + i, 2)}, {V(zr + i, 2)}, {V(zr + 4 + i, 2)}")
            a(f"v_pk_add_f32 {V(zr + 8 + i, 2)}, {V(zr + 8 + i, 2)}, {V(zr + 12 + i, 2)}")
        for i in (0, 2):
            a(f"v_pk_add_f32 {V(zr + i, 2)}, {V(zr + i, 2)}, {V(zr + 8 + i, 2)}")
        for sw in ("v_permlane16_swap_b32", "v_permlane32_swap_b32"):
            for i in range(4):
                a(f"v_mov_b32 v{zr + 4 + i}, v{zr + i}")
            for i in range(4):
                a(f"{sw} v{zr + i}, v{zr + 4 + i}")
            for i in range(4):
                a(f"v_add_f32 v{zr + i}, v{zr + i}, v{zr + 4 + i}")
        a(f"v_cvt_pk_bf16_f32 v{zr}, v{zr}, v{zr + 1}")
        a(f"v_cvt_pk_bf16_f32 v{zr + 1}, v{zr + 2}, v{zr + 3}")
        a(f"ds_write_b64 v{WK + 54}, {V(zr, 2)}")
        a(f"{skip}:")
        for p in range(8):
            a.wait(vm=kt[p])
            for i in range(4):
                a(f"v_dot2c_f32_bf16 v{ks + 2 * i}, s{sLO}, v{kvr + 4 * p + i}")
                a(f"v_dot2c_f32_bf16 v{ks + 2 * i + 1}, s{sHI}, v{kvr + 4 * p + i}")
        for i in range(4):
            a(f"v_permlane32_swap_b32 v{ks + i}, v{ks + 4 + i}")
        for i in (0, 2):
            a(f"v_pk_add_f32 {V(ks + i, 2)}, {V(ks + i, 2)}, {V(ks + 4 + i, 2)}")
        a(f"v_cvt_pk_bf16_f32 v{ks}, v{ks}, v{ks + 1}")
        a(f"v_cvt_pk_bf16_f32 v{ks + 1}, v{ks + 2}, v{ks + 3}")
        a.ds(f"ds_write_b64 v{WK + 52}, {V(ks, 2)}")
        a.wait(vm=wt[0])
        a.drain(vm=False)
        a("s_barrier")
        self.stamp("kvsum")
        op, O = WK + 32, WK + 56
        for j in range(4):
            t = a.ds(f"ds_read_b128 {V(op + 4 * j, 4)}, v{WK + 53} offset:{1024 * j}")
        a.wait(lg=t)
        for h in range(2):
            self.mfma(V(O + 16 * h, 16), V(op + 8 * h, 4), V(self.phq + 8 * h, 4), "0")
            self.mfma(V(O + 16 * h, 16), V(op + 8 * h + 4, 4), V(self.phq + 8 * h + 4, 4))
        for h in range(2):
            o = O + 16 * h
            a(f"v_add_f32 v{o + 8}, 0x358637bd, v{o + 8}")
            a(f"v_rcp_f32 v{o + 8}, v{o + 8}")
            for i in range(0, 8, 2):
                a(f"v_pk_mul_f32 {V(o + i, 2)}, {V(o + i, 2)}, {V(o + 8, 2)} op_sel_hi:[1,0]")
            for i in range(4):
                a(f"v_cvt_pk_bf16_f32 v{o + 12 + i}, v{o + 2 * i}, v{o + 2 * i + 1}")
            self.store(V(o + 12, 4), S_WS, vL16, f"s{sG}", 1024 * h, sc1="first" if layer == 0 else None)
        self.w2_read(range(0, 5))
        self.signal(1 + 5 * layer)
        self.w2_read(range(5, 16))
        self.stamp("o")

    def res_addr(self):
        a = self.a
        a(f"s_lshl_b32 s{sE}, s{sCL}, 2")
        a(f"s_lshl_b32 s{sA}, s{sTH2}, 1")
        a(f"s_add_u32 s{sE}, s{sE}, s{sA}")
        a(f"s_add_u32 s{sE}, s{sE}, s{sTH}")
        a(f"s_lshl_b32 s{sF}, s{sE}, 12")
        a(f"s_lshl_b32 s{sA}, s{sCT}, 9")
        a(f"s_add_u32 s{sF}, s{sF}, s{sA}")
        a(f"s_lshl_b32 s{sA}, s{sKH}, 3")
        a(f"s_add_u32 s{sF}, s{sF}, s{sA}")
        a(f"s_lshl_b32 s{sE}, s{sE}, 15")
        a(f"s_lshl_b32 s{sA}, s{sCT}, 7")
        a(f"s_lshl_b32 s{sB}, s{sKH}, 6")
        a(f"s_add_u32 s{sA}, s{sA}, s{sB}")
        a(f"s_add_u32 s{sD}, s{sE}, s{sA}")
        a(f"s_lshl_b32 s{sA}, s{sA}, 5")
        a(f"s_add_u32 s{sE}, s{sE}, s{sA}")
        a(f"v_and_b32 v{vT}, 31, v{vLANE}")
        a(f"v_lshrrev_b32 v{vU}, 5, v{vLANE}")
        a(f"v_lshlrev_b32 v{vROW}, 10, v{vT}")
        a(f"v_lshl_add_u32 v{vROW}, v{vU}, 4, v{vROW}")
        a(f"v_lshlrev_b32 v{vT}, 4, v{vT}")
        a(f"v_lshl_add_u32 v{vBG}, v{vU}, 2, v{vT}")

    def res_load(self, dst, src):
        a = self.a
        if src is None:
            for j in range(2):
                t = self.load(V(dst + 4 * j, 4), S_AX, vROW, f"s{sD}", 32 * j, sc1=False)
        else:
            a(f"s_add_u32 s{sBG}, s{sE}, {src}")
            for j in range(2):
                t = self.load(V(dst + 4 * j, 4), S_WS, vL16, f"s{sBG}", 1024 * j)
        return t

    def res_finish(self, acc, res, dst, flag, sc1=None):
        a = self.a
        for i in range(8):
            a(f"v_dot2c_f32_bf16 v{acc + 2 * i}, s{sLO}, v{res + i}")
            a(f"v_dot2c_f32_bf16 v{acc + 2 * i + 1}, s{sHI}, v{res + i}")
        self.cvt16(acc, res)
        if dst is None:
            for j in range(2):
                self.store(V(res + 4 * j, 4), S_OUT, vROW, f"s{sD}", 32 * j, sc1=bool(self.opt["owt"]))
            return
        a(f"s_add_u32 s{sA}, s{sE}, {dst}")
        for j in range(2):
            self.store(V(res + 4 * j, 4), S_WS, vL16, f"s{sA}", 1024 * j, sc1=sc1)
        a(f"v_mov_b32 v{acc}, 0")
        a(f"v_mov_b32 v{acc + 1}, 0")
        for i in range(8):
            a(f"v_dot2c_f32_bf16 v{acc}, s{sONES}, v{res + i}")
            a(f"v_dot2c_f32_bf16 v{acc + 1}, v{res + i}, v{res + i}")
        a(f"s_add_u32 s{sA}, s{sF}, {WS_ST}")
        a(f"v_permlane32_swap_b32 v{acc}, v{acc + 1}")
        a(f"v_add_f32 v{acc}, v{acc}, v{acc + 1}")
        self.store(V(acc), S_WS, vBG, f"s{sA}", width="dword", sc1=sc1)
        self.signal(flag)

    def p2(self, layer):
        a = self.a
        of, acc, res = WK, WK + 64, WK + 96
        self.res_addr()
        tr = self.res_load(res, None if layer == 0 else WS_A)
        a(f"s_lshl_b32 s{sA}, s{sTH2}, 1")
        a(f"s_add_u32 s{sA}, s{sA}, s{sTH}")
        a(f"s_lshl_b32 s{sG}, s{sCL}, 2")
        a(f"s_add_u32 s{sG}, s{sG}, s{sA}")
        a(f"s_lshl_b32 s{sA}, s{sG}, 6")
        a(f"s_lshl_b32 s{sB}, s{sKH}, 5")
        a(f"s_add_u32 s{sA}, s{sA}, s{sB}")
        if self.slow:
            a(f"s_add_u32 s{sA}, s{sA}, {WS_ALT}")
        a(f"v_and_b32 v{vU}, 7, v{vLANE}")
        a(f"v_lshl_add_u32 v{vU}, v{vU}, 2, s{sA}")
        a(f"s_lshl_b32 s{sG}, s{sG}, 15")
        a(f"s_lshl_b32 s{sB}, s{sKH}, 14")
        a(f"s_add_u32 s{sG}, s{sG}, s{sB}")
        a(f"s_add_u32 s{sH0}, s{sG}, {WS_OBUF[layer]}")
        a(f"s_xor_b32 s{sA}, s{sW}, 2")
        a(f"s_lshl_b32 s{sA}, s{sA}, 12")
        a(f"s_add_u32 s{sA}, s{sA}, {P2S}")
        a(f"v_add_u32 v{vA0}, s{sA}, v{vL16}")
        a(f"s_lshl_b32 s{sA}, s{sW}, 12")
        a(f"s_add_u32 s{sA}, s{sA}, {P2S}")
        a(f"v_add_u32 v{vA1}, s{sA}, v{vL16}")
        a.drain(vm=False)
        a("s_barrier")
        self.poll(vU, 1 + 5 * layer)
        if layer == 0:
            t_prep = self.prep_poll(WK + 104)
        self.stamp("S2")
        ot = {}

        def item(kb):
            def f():
                if kb and kb % 4 == 0:
                    a(f"s_add_u32 s{sH0}, s{sH0}, 4096")
                ot[kb] = self.load(V(of + 4 * kb, 4), S_WS, vL16, f"s{sH0}", (kb % 4) * 1024)
            return 60, f
        a.bg = [item(kb) for kb in range(16)]
        if layer == 0:
            a.bg.append((0, lambda: self.prep_wait(WK + 104, t_prep)))
        a.bg += self.ring_items(self.opt["pre_c" if layer else "pre_c0"], 60)
        a.pop(self.opt["lead"])
        a.on = True
        for kb in range(16):
            a.wait(vm=ot[kb])
            for nt in range(2):
                self.mfma(V(acc + 16 * nt, 16), V(X0 + (kb * 2 + nt) * 4, 4), V(of + 4 * kb, 4), "0" if kb == 0 else None)
        a.flush()
        a.on = False
        self.stamp("p2gemm")
        hi, done = a.label("khi"), a.label("kd")
        a(f"s_cmp_lg_u32 s{sKH}, 0")
        a(f"s_cbranch_scc1 {hi}")
        for q in range(4):
            a(f"ds_write_b128 v{vA0}, {V(acc + 16 + 4 * q, 4)} offset:{1024 * q}")
        a(f"s_branch {done}")
        a(f"{hi}:")
        for q in range(4):
            a(f"ds_write_b128 v{vA0}, {V(acc + 4 * q, 4)} offset:{1024 * q}")
        for i in range(0, 16, 2):
            a(f"v_pk_add_f32 {V(acc + i, 2)}, {V(acc + 16 + i, 2)}, 0")
        a(f"{done}:")
        a.drain(vm=False)
        a("s_barrier")
        for q in range(4):
            t = a.ds(f"ds_read_b128 {V(acc + 16 + 4 * q, 4)}, v{vA1} offset:{1024 * q}")
        a.wait(vm=tr, lg=t)
        for i in range(0, 16, 2):
            a(f"v_pk_add_f32 {V(acc + i, 2)}, {V(acc + i, 2)}, {V(acc + 16 + i, 2)}")
        self.res_finish(acc, res, WS_XMID[layer], 2 + 5 * layer, sc1="first" if layer == 0 else None)
        self.stamp("x1")

    def p3(self, layer):
        a = self.a
        BAR = self.opt["bar"]
        if layer == 0:
            skip = a.label("cs3")
            a(f"s_cmp_lg_u32 s{sW}, 0")
            a(f"s_cbranch_scc1 {skip}")
            a(f"s_mul_i32 s{sA}, s{sC}, 896")
            a(f"s_add_u32 s{sA}, s{sA}, {WS_CS3}")
            for k in range(8):
                self.load(V(WK + 4 * k, 4), S_WS, vL16, f"s{sA}", counted=False)
                a(f"s_add_u32 s{sA}, s{sA}, {112 * 128}")
            a("s_waitcnt vmcnt(0)")
            for w in (16, 8, 4):
                for i in range(0, w, 2):
                    a(f"v_pk_add_f32 {V(WK + i, 2)}, {V(WK + i, 2)}, {V(WK + w + i, 2)}")
            for i in range(4):
                a(f"v_cvt_pk_bf16_f32 v{WK + 4 + i}, v{WK + i}, v{WK + i}")
                a(f"v_and_b32 v{WK + 8 + i}, 0xffff0000, v{WK + 4 + i}")
                a(f"v_sub_f32 v{WK + i}, v{WK + i}, v{WK + 8 + i}")
                a(f"v_cvt_pk_bf16_f32 v{WK + i}, v{WK + 8 + i}, v{WK + i}")
            a(f"v_add_u32 v{vT}, {CS3}, v{vL16}")
            a("s_mov_b32 exec_hi, 0x00ffffff")
            a(f"ds_write_b128 v{vT}, {V(WK, 4)}")
            a("s_mov_b64 exec, -1")
            a("s_waitcnt lgkmcnt(0)")
            a(f"{skip}:")
        accs = [WK, WK + 16, WK + 32, WK + 48, WK + 64, WK + 80, WK]
        tmp = WK + 96
        xt = {}
        st_items = self.stats_items(WS_ST, tmp, xt, vBG, 0)
        x_items = self.x_items(WS_XMID[layer], xt, 0)
        a(f"v_add_u32 v{vA0}, {ZB}, v{vL16}")
        a(f"v_add_u32 v{vA1}, {ZB + 65536}, v{vL16}")
        a(f"s_mul_i32 s{sH1}, s{sTT}, {112 * 1024}")
        a(f"s_mul_i32 s{sA}, s{sC}, {7 * 1024}")
        a(f"s_add_u32 s{sH1}, s{sH1}, s{sA}")
        a(f"s_add_u32 s{sH1}, s{sH1}, {WS_H}")
        self.rows_poll_addr()
        n0 = self.opt["g0"]
        seq = [(g, kb) for kb in range(32) for g in range(n0)] + [(g, kb) for kb in range(32) for g in range(n0, 6)] + \
              [(6, kb) for kb in range(32)]
        M = 32 * n0
        self.n_early = n_early = 4
        rt = {}
        self.free_upto = -1

        def rd(f):
            s = f // 8
            if f % BAR == 0:
                last = s + BAR // 8 - 1
                while self.ring_next < 2 * last + 2:
                    self.ring_one()
                fine = self.opt["fine"] == 2 and layer == 1 and 6 <= s <= 16
                if fine:
                    self.stamp(f"pre{s}")
                a.wait(vm=self.ring_tag[last])
                if fine:
                    self.stamp(f"vm{s}")
                a("s_barrier")
                if fine:
                    self.stamp(f"bar{s}")
                self.free_upto = s - 2
            off = RING_AT[s % NSLOT] - ZB + (f % 8) * 1024
            addr, off = (vA0, off) if off < 65536 else (vA1, off - 65536)
            rt[f] = a.ds(f"ds_read_b128 {A(aRING + (f % 4) * 4, 4)}, v{addr} offset:{off}")
        for f in range(4):
            rd(f)
        for _ in range(2 * self.opt["pre_d"]):
            self.ring_one()
        self.poll(vU, 2 + 5 * layer)
        self.stamp("S3")
        for _ in range(self.opt["lead3"]):
            x_items.pop(0)[1]()
        x_items = x_items[:6] + st_items + x_items[6:]

        ext, mu = tmp + 8, tmp + 4

        def epi(gs):
            l = []
            for g in gs:
                acc = accs[g]
                for i in range(8):
                    l.append(("v", f"v_mul_f32 v{acc + 8 + i}, v{vRHO}, v{acc + 8 + i}", None))
                for i in range(8):
                    l.append(("v", f"v_mul_f32 v{acc + i}, v{acc + i}, v{acc + 8 + i}", None))
                for i in range(4):
                    l.append(("v", f"v_cvt_pk_bf16_f32 v{acc + 8 + i}, v{acc + 2 * i}, v{acc + 2 * i + 1}", None))
                l.append(("st", g, None))
            return l

        def mean_operand():
            a(f"v_mul_f32 v{vRHO}, v{vRHO}, v{vRHO}")
            a(f"v_cvt_pk_bf16_f32 v{mu}, v{vNMU}, v{vNMU}")
            a(f"v_and_b32 v{vT}, 0xffff0000, v{mu}")
            a(f"v_sub_f32 v{vT}, v{vNMU}, v{vT}")
            a(f"v_cvt_pk_bf16_f32 v{mu + 1}, v{vT}, v{vT}")
            a(f"v_cmp_gt_u32 vcc, 32, v{vLANE}")
            a(f"v_mov_b32 v{mu + 2}, 0")
            a(f"v_mov_b32 v{mu + 3}, 0")
            a(f"v_cndmask_b32 v{mu}, 0, v{mu}, vcc")
            a(f"v_cndmask_b32 v{mu + 1}, 0, v{mu + 1}, vcc")
            for i in (2, 3, 6, 7):
                a(f"v_mov_b32 v{ext + i}, 0")
            self.natural_col(tmp)
            a(f"v_add_u32 v{tmp}, {CS3}, v{tmp}")
        ext_tag, h_tag = {}, {}

        def ext_read(g):
            ext_tag[g] = a.ds(f"ds_read2_b32 {V(ext + 4 * (g & 1), 2)}, v{tmp} offset0:{32 * g} offset1:{32 * g}")

        def run(item):
            k, x, key = item
            if k == "v":
                a(x)
            elif k == "st":
                if x == 4:
                    a(f"s_add_u32 s{sH1}, s{sH1}, 4096")
                h_tag[x] = self.store(V(accs[x] + 8, 4), S_WS, vL16, f"s{sH1}", (x % 4) * 1024,
                                      sc1="first" if layer == 0 else x < self.opt["hwt"] or None)
            elif k == "call":
                x()
        tp = {}

        def sig_a():
            a(f"v_mov_b32 v{vT}, {3 + 5 * layer}")
            a(f"v_mov_b32 v{vROW}, s{sFLAG}")
            a.wait(vm=h_tag[n_early - 1])
            a("s_mov_b64 exec, 1")
            self.store(V(vT), S_WS, vROW, 0, width="dword")
            a("s_mov_b64 exec, -1")
        pend = []
        for f, (g, kb) in enumerate(seq):
            if f == M + 3:
                assert not pend
                pend = epi(range(n0))
                if n0 == 4:
                    pend += [("v", l, None) for l in a.capture(self.p4_setup)]
            if f == 195:
                assert n0 == 5 or not pend
                pend += epi(range(n0, 6))
            if f == (197 if n0 == 4 else self.opt['siga']):
                pend.insert(0, ("call", sig_a, None))
            if f in (16, 48, 96, 128, 192) and self.opt["fine"] != 2:
                self.stamp(f"p3f{f}")
            a.wait(vm=xt[kb] if g == 0 else None, lg=rt[f])
            self.mfma(V(accs[g], 16), A(aRING + (f % 4) * 4, 4), V(X0 + 4 * kb, 4), "0" if kb == 0 else None)
            if f + 4 < 224:
                rd(f + 4)
            if kb == 31:
                a.wait(lg=ext_tag[g])
                self.mfma(V(accs[g], 16), V(ext + 4 * (g & 1), 4), V(mu, 4))
                if g + 2 < 7:
                    ext_read(g + 2)
            if f == M - 8:
                assert not pend
                ext_read(0)
                ext_read(1)
            ring_ok = self.ring_next < 56 and self.ring_next // 2 - NSLOT <= self.free_upto
            slots = {8: range(0, 16, 2), 7: (0, 2, 5, 7, 9, 12, 14), 6: (0, 3, 5, 8, 11, 13), 5: (0, 3, 6, 10, 13)}
            rate = self.opt["vm16" if layer else "vm16a"] if f < self.opt["vmend"] else 8
            if f % 16 in slots[rate] or f < self.opt["xburst"]:
                nx = sum(isinstance(k, int) for k in xt)
                if self.opt["edf"] < 100:
                    s_due = self.ring_next // 2 // (BAR // 8) * BAR
                    take_x = x_items and (not ring_ok or n0 * nx - self.opt["edf"] <= s_due)
                elif self.opt["xmin"]:
                    take_x = x_items and (not ring_ok or nx - f // n0 < self.opt["xmin"] or f >= 32 and len(x_items) > 26 - nx + self.opt["lead3"] + 6)
                else:
                    take_x = x_items and not (ring_ok and f % 4 == 2 and f >= self.opt["xfirst"])
                if take_x:
                    x_items.pop(0)[1]()
                elif ring_ok:
                    self.ring_one()
                elif layer == 0 and self.w4_next < 56:
                    self.w4_one()
            if f == 64:
                a.wait(vm=xt["st"])
                pend = [("v", l, None) for l in a.capture(lambda: self.sum_stats(tmp, packed=False))]
                pend += [("v", l, None) for l in a.capture(mean_operand)]
                if n0 == 5:
                    pend += [("v", l, None) for l in a.capture(self.p4_setup)]
            if f == self.opt["polla"]:
                tp["a"] = self.poll_issue(vU)
            for _ in range(3 if n0 == 5 and M < f < 196 else 2):
                if pend:
                    run(pend.pop(0))
        assert not pend, len(pend)
        if layer == 0 and not self.slow:
            print("W4 fragments left after P3:", 56 - self.w4_next)
        while layer == 0 and (self.w4_next < 56 and not self.opt["w4rest"] or self.w4_next % 2):
            self.w4_one()
        self.stamp("p3gemm")
        a("s_barrier")
        for it in epi((6,)):
            run(it)
        self.p4(layer, tp["a"], h_tag[6])

    def p4_setup(self):
        a = self.a
        self.res_addr()
        a(f"s_lshl_b32 s{sA}, s{sCL}, 8")
        a(f"s_lshl_b32 s{sB}, s{sTH2}, 7")
        a(f"s_add_u32 s{sA}, s{sA}, s{sB}")
        a(f"s_lshl_b32 s{sB}, s{sW}, 4")
        a(f"s_add_u32 s{sA}, s{sA}, s{sB}")
        if self.slow:
            a(f"s_add_u32 s{sA}, s{sA}, {WS_ALT}")
        a(f"v_and_b32 v{vT}, 3, v{vLANE}")
        a(f"v_bfe_u32 v{vU}, v{vLANE}, 2, 1")
        a(f"v_lshlrev_b32 v{vU}, 6, v{vU}")
        a(f"v_lshl_add_u32 v{vU}, v{vT}, 2, v{vU}")
        a(f"v_add_u32 v{vU}, s{sA}, v{vU}")
        a(f"s_lshl_b32 s{sA}, s{sCL}, 2")
        a(f"s_lshl_b32 s{sB}, s{sTH2}, 1")
        a(f"s_add_u32 s{sA}, s{sA}, s{sB}")
        a(f"s_mul_i32 s{sH2}, s{sA}, {112 * 1024}")
        a(f"s_mul_i32 s{sB}, s{sW}, {28 * 1024}")
        a(f"s_add_u32 s{sH2}, s{sH2}, s{sB}")
        a(f"s_add_u32 s{sH2}, s{sH2}, {WS_H}")
        a(f"s_add_u32 s{sH3}, s{sH2}, {112 * 1024}")

    def p4(self, layer, t_poll_a, t_last_h):
        a = self.a
        acc, res = X0, WK + 96
        slots = [X0 + 64 + 8 * i for i in range(8)] + [WK + 16 + 8 * i for i in range(10)]
        NH = len(slots)
        order = self.P4_ORDER
        ht = {}

        def ld(n):
            i, th = divmod(n, 2)
            a(f"s_add_u32 s{sA}, s{sH2 + th}, {order[i] * 1024}")
            ht[n] = self.load(V(slots[i % NH] + 4 * th, 4), S_WS, vL16, f"s{sA}")
        self.poll(vU, 3 + 5 * layer, first=t_poll_a)
        for n in range(4):
            ld(n)
        self.signal(4 + 5 * layer, after=t_last_h)
        self.stamp("h")
        lead = 2 * self.opt["lead4"]
        for n in range(4, lead):
            ld(n)
        nl, tp, tr = lead, None, None
        for i in range(28):
            for th in range(2):
                a.wait(vm=max(ht[2 * i + th], self.w4_tag[i]) if layer == 0 else ht[2 * i + th])
                for nt in range(2):
                    self.mfma(V(acc + 16 * (2 * nt + th), 16), A((order[i] * 2 + nt) * 4, 4),
                              V(slots[i % NH] + 4 * th, 4), "0" if i == 0 else None)
                    if nt == 0:
                        if nl == 8 * self.n_early - self.opt["pollb"]:
                            tp = self.poll_issue(vU)
                        if nl == 8 * self.n_early:
                            self.poll(vU, 4 + 5 * layer, first=tp)
                        if nl < 56:
                            ld(nl)
                            nl += 1
                        elif tr is None:
                            tr = self.res_load(res, WS_XMID[layer])
                    elif layer == 0 and self.w4_next < 56 and i >= 1:
                        self.w4_one()
        self.stamp("p4gemm")
        if layer == 1 and self.opt["wb"] and not self.slow:
            skip = a.label("wb")
            a.wait(vm=tr)
            a(f"s_lshr_b32 s{sA}, s2, 3")
            a(f"s_or_b32 s{sA}, s{sA}, s{sW}")
            a(f"s_cmp_lg_u32 s{sA}, 0")
            a(f"s_cbranch_scc1 {skip}")
            a("buffer_wbl2 sc1")
            a(f"{skip}:")
        if layer == 1:
            a(f"v_and_b32 v{vT}, 31, v{vLANE}")
            a(f"v_lshrrev_b32 v{vU}, 5, v{vLANE}")
            a(f"v_lshlrev_b32 v{vROW}, 10, v{vT}")
            a(f"v_lshl_add_u32 v{vROW}, v{vU}, 4, v{vROW}")
        own = WK
        self.scatter(acc, 16, own, P4S, 4096)
        a(f"s_mul_i32 s{sA}, s{sW}, 12288")
        a(f"s_add_u32 s{sA}, s{sA}, {P4S}")
        a(f"v_add_u32 v{vA0}, s{sA}, v{vL16}")
        a.drain(vm=False)
        a("s_barrier")
        ts = []
        for j in range(12):
            ts.append(a.ds(f"ds_read_b128 {V(acc + 4 * j, 4)}, v{vA0} offset:{1024 * j}"))
        for s in range(3):
            a.wait(lg=ts[4 * s + 3])
            for i in range(0, 16, 2):
                a(f"v_pk_add_f32 {V(own + i, 2)}, {V(own + i, 2)}, {V(acc + 16 * s + i, 2)}")
        a.wait(vm=tr)
        if layer == 0:
            self.res_finish(own, res, WS_A, 5)
            a("s_barrier")
        else:
            self.res_finish(own, res, None, None)
        self.stamp("x2")

    def body(self):
        for layer in range(self.opt["layers"]):
            acc = self.p1_start_l0() if layer == 0 else self.p1_start_l1()
            self.s1_window(layer, self.e1_kv(layer, *acc))
            self.p2(layer)
            self.p3(layer)
            if layer == 0 and self.opt["amp2"] == 1 and not self.slow:
                self.a("s_memrealtime s[12:13]")
                self.a("s_memtime s[18:19]")
                self.a.drain(vm=False)

    def build(self):
        a = self.a
        self.slow = False
        self.prologue()
        self.stamp("start")
        if self.diag or self.opt["amp"]:
            a("s_memrealtime s[6:7]")
            a("s_memtime s[14:15]")
        self.body()
        if self.opt["amp"]:
            a("s_waitcnt vmcnt(0)")
            a("s_memtime s[16:17]")
            a("s_memrealtime s[8:9]")
            a("s_waitcnt lgkmcnt(0)")
            a(f"s_cmp_lg_u32 s2, {self.opt['amp']}")
            a("s_cbranch_scc1 L_end")
            a(("s_sub_u32 s10, s8, s6", "s_sub_u32 s10, s8, s12", "s_sub_u32 s10, s6, s12")[self.opt["amp2"]])
            a("s_mul_i32 s10, s10, 20")
            if self.opt["ampat"]:
                a("s_sub_u32 s10, s18, s14")
            elif self.opt["ampc"]:
                a("s_sub_u32 s10, s16, s18" if self.opt["amp2"] else "s_sub_u32 s10, s16, s14")
            a("L_amp:")
            a("s_sleep 8")
            a("s_memrealtime s[6:7]")
            a("s_waitcnt lgkmcnt(0)")
            a("s_sub_u32 s11, s6, s8")
            a("s_cmp_lt_u32 s11, s10")
            a("s_cbranch_scc1 L_amp")
        if self.diag:
            a("s_memrealtime s[8:9]")
            a.drain(vm=False)
            a(f"v_writelane_b32 v{vDIAG}, s6, 61")
            a(f"v_writelane_b32 v{vDIAG}, s8, 62")
            a(f"v_writelane_b32 v{vDIAG}, s{sTO}, 63")
            a(f"s_lshl_b32 s{sA}, s{sCL}, 4")
            a(f"s_add_u32 s{sA}, s{sA}, s{sC}")
            a(f"s_lshl_b32 s{sA}, s{sA}, 2")
            a(f"s_add_u32 s{sA}, s{sA}, s{sW}")
            a(f"s_lshl_b32 s{sA}, s{sA}, 8")
            a(f"s_add_u32 s{sA}, s{sA}, {WS_SIZE - 0x40000}")
            a(f"v_lshlrev_b32 v{vT}, 2, v{vLANE}")
            self.store(V(vDIAG), S_WS, vT, f"s{sA}", width="dword")
        a("L_end:")
        a("s_endpgm")
        self.slow = True
        a("L_slow:")
        a.drain()
        a("s_barrier")
        a(f"s_lshr_b32 s{sCL}, s2, 4")
        a(f"s_and_b32 s{sC}, s2, 15")
        self.body()
        a("s_endpgm")
        lines, n = fix_hazards(a.lines)
        if self.opt["align"]:
            lines = align8(lines)
        head = HEADER.format(lds=LDS_SIZE, name=NAME)
        return head + "\n".join(lines) + "\n" + TAIL.format(name=NAME), n

HEADER = """; Two interleaved (Hedgehog linear attention, bilinear GLU) blocks in one persistent launch: 256 workgroups, one per CU.
; Work split: 16 clusters of 16 workgroups, one cluster per 128 token rows.  Phases per layer:
;   P1 k,v,q = LN(x) Wqkv (2 heads per workgroup), feature maps, partial phi_k^T [v 1]  -> exchange over the 16 clusters
; LayerNorm is applied after the product: LN(x) W = rstd * (x W - mean * colsum(W)).
; Hand-offs inside a cluster: when the table in d_debug (every workgroup publishes the XCD it really runs on) shows that each
; cluster sits on one XCD, they stay in that XCD's L2 (plain stores, L1-bypassing loads); under any other placement every
; workgroup jumps to L_slow, a copy that writes all hand-offs through to memory.  Hand-offs between clusters always write through.
; @launch grid=(256,1,1) block=(256,1,1) lds={lds}
.amdgcn_target "amdgcn-amd-amdhsa--gfx950"
.text
.globl {name}_kernel
.p2align 8
.type {name}_kernel,@function
{name}_kernel:
"""
TAIL = """.section .rodata,"a"
.p2align 6
.amdhsa_kernel {name}_kernel
  .amdhsa_next_free_vgpr 512
  .amdhsa_next_free_sgpr 102
  .amdhsa_accum_offset 256
  .amdhsa_group_segment_fixed_size 0
  .amdhsa_kernarg_size 88
  .amdhsa_user_sgpr_count 2
  .amdhsa_user_sgpr_kernarg_segment_ptr 1
  .amdhsa_system_sgpr_workgroup_id_x 1
.end_amdhsa_kernel
"""

if __name__ == "__main__":
    out = sys.argv[1]
    flags = sys.argv[2:]
    opt = {f.split("=")[0]: int(f.split("=")[1]) for f in flags if "=" in f}
    g = Gen(diag="diag" in flags, force_slow="slow" in flags, opt=opt)
    text, n = g.build()
    open(out, "w").write(text)
    if g.diag:
        open(out + ".stamps", "w").write("\n".join(g.stamps))
    print(f"{out}: {len(text)} bytes, {text.count(chr(10))} lines, {n} hazard nops")
```
